```python
import torch

def _softmax(x, axis=-1):
    return torch.softmax(x, dim=axis)
def _gelu(x):
    return torch.nn.functional.gelu(x, approximate="tanh")
def _silu(x):
    return torch.nn.functional.silu(x)
def _sigmoid(x):
    return torch.sigmoid(x)
def _layernorm(x, axis=-1, eps=1e-5):
    m = x.mean(dim=axis, keepdim=True)
    v = x.var(dim=axis, keepdim=True, unbiased=False)
    return (x - m) / torch.sqrt(v + eps)
def _scatter_add(tgt, idx, src, axis=0):
    return tgt.clone().index_add_(axis, idx, src)
def _segment_sum(src, seg, n):
    out = torch.zeros((n,) + src.shape[1:], dtype=src.dtype)
    return out.index_add_(0, seg, src)
def _pad(x, pw):
    flat = tuple(v for pair in reversed(pw) for v in pair)
    return torch.nn.functional.pad(x, flat)

kernel_name = 'gated_mix__mha_block__dense_activation_relu__prompt'

def setup_inputs():

    _w = (lambda a: (lambda t: t.to(torch.bfloat16) if t.is_floating_point() else t)(torch.as_tensor(a)))
    def _A_setup():
        B, S, D, H = 1, 2048, 640, 32
        return {
            "x": _w((lambda *s: torch.randn(*s, dtype=torch.bfloat16) * 0.05)(B, S, D)),
            "wqkv": _w((lambda *s: torch.randn(*s, dtype=torch.bfloat16) * 0.8)(D, 3 * D)),
            "wo": _w((lambda *s: torch.randn(*s, dtype=torch.bfloat16) * 0.2)(D, D)),
        }
    _A_in = _A_setup()

    def _B_setup():
        B, S, D, Dff = 1, 2048, 640, 1728
        return {
            "x": _w((lambda *s: torch.randn(*s, dtype=torch.bfloat16) * 0.05)(B, S, D)),
            "w1": _w((lambda *s: torch.randn(*s, dtype=torch.bfloat16) * 0.05)(D, Dff)),
            "w2": _w((lambda *s: torch.randn(*s, dtype=torch.bfloat16) * 0.05)(Dff, D)),
        }
    _B_in = _B_setup()

    return {
        "A_x": _A_in["x"],
        "A_wqkv": _A_in["wqkv"],
        "A_wo": _A_in["wo"],
        "B_x": _B_in["x"],
        "B_w1": _B_in["w1"],
        "B_w2": _B_in["w2"],
        "gate_w": _w((lambda *s: torch.randn(*s, dtype=torch.bfloat16) * 0.05)(640) * 16.0),
    }

def reference(A_x, A_wqkv, A_wo, B_x, B_w1, B_w2, gate_w):
    def _A_ref(x, wqkv, wo):
        B, S, D = x.shape
        H = 32
        Dh = D // H
        qkv = (lambda x, *d: x.permute(*d))((x @ wqkv).reshape(B, S, 3, H, Dh), 2, 0, 3, 1, 4)
        q, k, v = qkv[0], qkv[1], qkv[2]
        scores = torch.einsum("bhqd,bhkd->bhqk", q, k) * (Dh ** -0.5)
        p = _softmax(scores, axis=-1)
        o = torch.einsum("bhqk,bhkd->bhqd", p, v)
        return (lambda x, *d: x.permute(*d))(o, 0, 2, 1, 3).reshape(B, S, D) @ wo

    def _B_ref(x, w1, w2):
        h = torch.einsum("bsd,df->bsf", x, w1)
        zero = torch.zeros_like(h)
        h = torch.maximum(h, zero)
        return torch.einsum("bsf,fd->bsd", h, w2)

    x = A_x
    g = _sigmoid((x * gate_w).sum(-1, keepdims=True))
    a = _A_ref(x, A_wqkv, A_wo)
    b = _B_ref(x, B_w1, B_w2)
    return g * a + (1 - g) * b
```

```python
import math
from gen import *

K2_ATT = 256
K2_FFN = 160
CHUNK = 40960

V_DMA = 2
V_KE0 = 3
V_VV0 = 4
V_KM1 = 5
V_KE1 = 6
V_VV1 = 7
V_TMP = 8
V_Q1 = 12
V_Q2 = 16
V_K = 20
V_V = 36
V_P = 52
V_NM = 60
V_S = 76
V_O = 108
S_HEAD = 37
S_QT = 38
S_VMASK = 62


def att_dma(a, c):
    buf = c % 2
    for i in range(5):
        a(f"s_add_u32 m0, s{S_MW}, {buf*CHUNK + i*8192}")
        a(f"s_add_u32 s{S_T0}, s{S_AW}, {c*CHUNK + i*8192}")
        a(f"buffer_load_dwordx4 v{V_DMA}, s[{S_SRDA}:{S_SRDA+3}], s{S_T0} offen lds")


def att_read_k(a, t):
    kb = t % 2
    buf = (t // 16) % 2
    off = (t % 16) * 2560
    a(f"ds_read_b128 {vr(V_K + 8*kb, 4)}, v{V_DMA if buf == 0 else V_KM1} offset:{off}")
    a(f"ds_read_b32 v{V_K + 8*kb + 4}, v{V_KE0 if buf == 0 else V_KE1} offset:{off}")


def att_read_v(a, t):
    vb = t % 2
    buf = (t // 16) % 2
    off = (t % 16) * 2560
    a(f"s_mov_b64 exec, s[{S_VMASK}:{S_VMASK+1}]")
    for m in range(2):
        a(f"ds_read_b128 {vr(V_V + 8*vb + 4*m, 4)}, v{V_VV0 if buf == 0 else V_VV1} offset:{off + m*640}")
    a("s_mov_b64 exec, -1")


def att_qk(a, t, which, cin=None):
    kb = t % 2
    S = vr(V_S + 16 * (t % 2), 16)
    if which == 0:
        c = cin if cin is not None else vr(V_NM, 16)
        a(f"v_mfma_f32_32x32x16_bf16 {S}, {vr(V_K + 8*kb, 4)}, {vr(V_Q1, 4)}, {c}")
    else:
        a(f"v_mfma_f32_32x32x16_bf16 {S}, {vr(V_K + 8*kb + 4, 4)}, {vr(V_Q2, 4)}, {S}")


def att_pv(a, t, m):
    vb = t % 2
    O = vr(V_O, 16)
    cin = "0" if (t == 0 and m == 0) else O
    a(f"v_mfma_f32_32x32x16_bf16 {O}, {vr(V_V + 8*vb + 4*m, 4)}, {vr(V_P + 4*m, 4)}, {cin}")


def gen_k2(a):
    T = V_TMP
    a.label("k2_kernel")
    a(f"s_cmp_ge_u32 s2, {K2_ATT + K2_FFN}")
    a("s_cbranch_scc1 k2_end")
    load_ptrs(a)
    a("v_lshrrev_b32 v1, 6, v0")
    a("s_nop 0")
    a(f"v_readfirstlane_b32 s{S_WAVE}, v1")
    a("s_waitcnt lgkmcnt(0)")
    a(f"s_cmp_ge_u32 s2, {K2_ATT}")
    a("s_cbranch_scc1 k2_ffn")
    a(f"s_and_b32 s{S_T0}, s2, 7")
    a(f"s_lshl_b32 s{S_T0}, s{S_T0}, 2")
    a(f"s_lshr_b32 s{S_T1}, s2, 3")
    a(f"s_and_b32 s{S_T1}, s{S_T1}, 3")
    a(f"s_add_u32 s{S_HEAD}, s{S_T0}, s{S_T1}")
    a(f"s_lshr_b32 s{S_T0}, s2, 5")
    a(f"s_lshl_b32 s{S_T0}, s{S_T0}, 3")
    a(f"s_add_u32 s{S_QT}, s{S_T0}, s{S_WAVE}")
    make_srd(a, S_SRDA, P_WS, KV_OFF, KV_SIZE)
    make_srd(a, S_SRDB, P_WS, QF_OFF, QF_SIZE)
    make_srd(a, S_SRDO, P_WS, O_OFF, O_SIZE)
    a("v_and_b32 v1, 63, v0")
    a(f"v_lshlrev_b32 v{V_DMA}, 4, v1")
    a(f"v_and_b32 v{T}, 31, v1")
    a(f"v_lshrrev_b32 v{T+1}, 5, v1")
    a(f"v_lshlrev_b32 v{V_KE0}, 3, v{T}")
    a(f"v_lshl_add_u32 v{V_KE0}, v{T+1}, 2, v{V_KE0}")
    a(f"v_add_u32 v{V_KE0}, 0x400, v{V_KE0}")
    a(f"v_mul_u32_u24 v{V_VV0}, 320, v{T+1}")
    a(f"v_lshl_add_u32 v{V_VV0}, v{T}, 4, v{V_VV0}")
    a(f"v_add_u32 v{V_VV0}, 1280, v{V_VV0}")
    a(f"v_add_u32 v{V_KM1}, {CHUNK}, v{V_DMA}")
    a(f"v_add_u32 v{V_KE1}, {CHUNK}, v{V_KE0}")
    a(f"v_add_u32 v{V_VV1}, {CHUNK}, v{V_VV0}")
    a(f"s_lshl_b32 s{S_T0}, s{S_HEAD}, 6")
    a(f"s_add_u32 s{S_T0}, s{S_T0}, s{S_QT}")
    a(f"s_mul_i32 s{S_T0}, s{S_T0}, 1280")
    a(f"buffer_load_dwordx4 {vr(V_Q1,4)}, v{V_DMA}, s[{S_SRDB}:{S_SRDB+3}], s{S_T0} offen")
    a(f"buffer_load_dword v{V_Q2}, v{V_KE0}, s[{S_SRDB}:{S_SRDB+3}], s{S_T0} offen")
    a(f"s_lshl_b32 s{S_MW}, s{S_WAVE}, 10")
    a(f"s_mul_i32 s{S_AW}, s{S_HEAD}, {64*2560}")
    a(f"s_add_u32 s{S_AW}, s{S_AW}, s{S_MW}")
    att_dma(a, 0)
    att_dma(a, 1)
    for r in (V_Q2 + 1, V_Q2 + 2, V_Q2 + 3, V_K + 5, V_K + 6, V_K + 7, V_K + 13, V_K + 14, V_K + 15):
        a(f"v_mov_b32 v{r}, 0")
    a(f"v_cmp_eq_u32 vcc, 20, v{T}")
    a(f"v_cmp_eq_u32 s[{S_EX0}:{S_EX0+1}], 24, v{T}")
    a(f"s_or_b64 vcc, vcc, s[{S_EX0}:{S_EX0+1}]")
    a(f"v_mov_b32 v{T+2}, 0x3f803f80")
    a("s_nop 1")
    a(f"v_cndmask_b32 v{T+2}, 0, v{T+2}, vcc")
    for r in range(16):
        a(f"v_mov_b32 v{V_V + r}, v{T+2}")
    a(f"s_mov_b32 s{S_VMASK}, 0x000fffff")
    a(f"s_mov_b32 s{S_VMASK+1}, 0x000fffff")
    a("s_waitcnt vmcnt(5)")
    a("s_barrier")
    att_read_k(a, 0)
    att_read_k(a, 1)
    att_read_v(a, 0)
    a("s_waitcnt lgkmcnt(4)")
    att_qk(a, 0, 0, "0")
    att_qk(a, 0, 1)
    a("s_nop 15")
    a("s_nop 3")
    S0 = V_S
    a(f"v_max3_f32 v{T}, v{S0}, v{S0+1}, v{S0+2}")
    for i in range(3, 15, 2):
        a(f"v_max3_f32 v{T}, v{T}, v{S0+i}, v{S0+i+1}")
    a(f"v_max_f32 v{T}, v{T}, v{S0+15}")
    a(f"v_mov_b32 v{T+1}, v{T}")
    a("s_nop 1")
    a(f"v_permlane32_swap_b32 v{T}, v{T+1}")
    a("s_nop 1")
    a(f"v_max_f32 v{T}, v{T}, v{T+1}")
    a(f"v_sub_f32 v{T}, 0, v{T}")
    for r in range(16):
        a(f"v_mov_b32 v{V_NM + r}, v{T}")
    a("s_nop 1")
    att_qk(a, 0, 0)
    att_qk(a, 0, 1)
    a("s_nop 7")
    NT = 64
    for t in range(NT):
        S = V_S + 16 * (t % 2)
        e = lambda i: a(f"v_exp_f32 v{S+i}, v{S+i}")
        cv = lambda i: a(f"v_cvt_pk_bf16_f32 v{V_P+i}, v{S+2*i}, v{S+2*i+1}")
        if t in (16, 32):
            a("s_barrier")
            att_dma(a, t // 16 + 1)
        if t + 1 < NT:
            a("s_waitcnt lgkmcnt(2)")
            att_qk(a, t + 1, 0)
        for i in range(4):
            e(i)
        if t + 1 < NT:
            att_qk(a, t + 1, 1)
        nout = 0
        if t in (14, 30, 46):
            a("s_waitcnt vmcnt(0)")
            a("s_barrier")
        if t + 2 < NT:
            att_read_k(a, t + 2)
            nout += 2
        if t + 1 < NT:
            att_read_v(a, t + 1)
            nout += 2
        for i in range(4, 8):
            e(i)
        for i in range(4):
            cv(i)
        e(8)
        e(9)
        a(f"s_waitcnt lgkmcnt({nout})")
        att_pv(a, t, 0)
        for i in range(10, 16):
            e(i)
        for i in range(4, 8):
            cv(i)
        a("s_nop 1")
        att_pv(a, t, 1)
    a("s_nop 15")
    a("s_nop 3")
    a("v_cmp_gt_u32 vcc, 32, v1")
    a("s_nop 1")
    a(f"v_cndmask_b32 v{T}, v{V_O+8}, v{V_O+12}, vcc")
    a(f"v_rcp_f32 v{T+1}, v{T}")
    a("s_nop 0")
    for r in range(12):
        a(f"v_mul_f32 v{V_O+r}, v{V_O+r}, v{T+1}")
    for r in range(6):
        a(f"v_cvt_pk_bf16_f32 v{V_P+r}, v{V_O+2*r}, v{V_O+2*r+1}")
    a(f"v_and_b32 v{T}, 31, v1")
    a(f"v_mul_u32_u24 v{T}, 1280, v{T}")
    a(f"v_lshrrev_b32 v{T+1}, 5, v1")
    a(f"v_lshl_add_u32 v{T}, v{T+1}, 3, v{T}")
    a(f"s_mul_i32 s{S_T0}, s{S_QT}, {32*1280}")
    a(f"s_mul_i32 s{S_T1}, s{S_HEAD}, 40")
    a(f"s_add_u32 s{S_T0}, s{S_T0}, s{S_T1}")
    a(f"buffer_store_dwordx2 v[{V_P}:{V_P+1}], v{T}, s[{S_SRDO}:{S_SRDO+3}], s{S_T0} offen")
    a(f"buffer_store_dwordx2 v[{V_P+2}:{V_P+3}], v{T}, s[{S_SRDO}:{S_SRDO+3}], s{S_T0} offen offset:16")
    a("s_mov_b64 exec, vcc")
    a(f"buffer_store_dwordx2 v[{V_P+4}:{V_P+5}], v{T}, s[{S_SRDO}:{S_SRDO+3}], s{S_T0} offen offset:32")
    a("s_endpgm")

    c = GemmCfg(4, 2, 1, 1, 3, 27, 3456, 1280)
    T = c.V_T
    a.label("k2_ffn")
    a(f"s_lshr_b32 s{S_WM}, s{S_WAVE}, 1")
    a(f"s_and_b32 s{S_WN}, s{S_WAVE}, 1")
    a(f"s_sub_u32 s{S_T0}, s2, {K2_ATT}")
    a(f"s_and_b32 s{S_RT}, s{S_T0}, 15")
    a(f"s_lshr_b32 s{S_CT}, s{S_T0}, 4")
    make_srd(a, S_SRDA, P_WS, H_OFF, H_SIZE)
    make_srd(a, S_SRDB, P_W2, 0, 1728 * 1280)
    make_srd(a, S_SRDO, P_WS, B_OFF, O_SIZE)
    a(f"s_lshl_b32 s{S_T0}, s{S_RT}, 7")
    a(f"s_lshl_b32 s{S_T1}, s{S_WAVE}, 3")
    a(f"s_add_u32 s{S_T0}, s{S_T0}, s{S_T1}")
    a(f"s_mul_i32 s{S_AW}, s{S_T0}, 3456")
    a(f"s_lshl_b32 s{S_T0}, s{S_CT}, 7")
    a(f"s_mul_i32 s{S_T1}, s{S_WAVE}, {c.RB * 1280}")
    a(f"s_add_u32 s{S_BW}, s{S_T0}, s{S_T1}")
    gemm_setup_lane(a, c)
    gemm_main(a, c, False)
    a(f"s_lshl_b32 s{S_T1}, s{S_RT}, 7")
    a(f"s_lshl_b32 s{S_T2}, s{S_WM}, 5")
    a(f"s_add_u32 s{S_T1}, s{S_T1}, s{S_T2}")
    a(f"v_and_b32 v{T}, 31, v1")
    a(f"v_add_u32 v{T}, s{S_T1}, v{T}")
    a(f"v_mul_u32_u24 v{T}, 1280, v{T}")
    a(f"v_lshrrev_b32 v{T+1}, 5, v1")
    a(f"v_lshl_add_u32 v{T}, v{T+1}, 3, v{T}")
    a(f"s_lshl_b32 s{S_T0}, s{S_CT}, 7")
    a(f"s_lshl_b32 s{S_T1}, s{S_WN}, 6")
    a(f"s_add_u32 s{S_T0}, s{S_T0}, s{S_T1}")
    for g in range(4):
        r = c.acc(0, 0) + 4 * g
        a(f"v_cvt_pk_bf16_f32 v{T+8}, v{r}, v{r+1}")
        a(f"v_cvt_pk_bf16_f32 v{T+9}, v{r+2}, v{r+3}")
        a(f"buffer_store_dwordx2 v[{T+8}:{T+9}], v{T}, s[{S_SRDO}:{S_SRDO+3}], s{S_T0} offen offset:{16*g}")
        a("s_nop 1")
    a.label("k2_end")
    a("s_endpgm")
    return dict(name="k2_kernel", vgpr=124, sgpr=64, grid=K2_ATT + K2_FFN, block=512, lds=2 * CHUNK)


def gen_k3(a):
    c = GemmCfg(2, 2, 1, 1, 4, 10, 1280, 1280)
    T = c.V_T
    N = 320
    a.label("k3_kernel")
    a(f"s_cmp_ge_u32 s2, {N}")
    a("s_cbranch_scc1 k3_end")
    load_ptrs(a)
    wave_ids(a, c)
    a("s_waitcnt lgkmcnt(0)")
    a(f"s_and_b32 s{S_RT}, s2, 31")
    a(f"s_lshr_b32 s{S_CT}, s2, 5")
    make_srd(a, S_SRDA, P_WS, O_OFF, O_SIZE)
    make_srd(a, S_SRDB, P_WO, 0, 640 * 1280)
    make_srd(a, S_SRDO, P_OUT, 0, O_SIZE)
    make_srd(a, S_SRDX, P_WS, B_OFF, O_SIZE)
    make_srd(a, S_SRDY, P_WS, G_OFF, G_SIZE)
    a(f"s_lshl_b32 s{S_T0}, s{S_RT}, 6")
    a(f"s_lshl_b32 s{S_T1}, s{S_WAVE}, 3")
    a(f"s_add_u32 s{S_T0}, s{S_T0}, s{S_T1}")
    a(f"s_mul_i32 s{S_AW}, s{S_T0}, 1280")
    a(f"s_lshl_b32 s{S_T0}, s{S_CT}, 7")
    a(f"s_mul_i32 s{S_T1}, s{S_WAVE}, {c.RB * 1280}")
    a(f"s_add_u32 s{S_BW}, s{S_T0}, s{S_T1}")
    gemm_setup_lane(a, c)
    gemm_main(a, c, False)
    E = c.V_END
    a(f"s_lshl_b32 s{S_T1}, s{S_RT}, 6")
    a(f"s_lshl_b32 s{S_T2}, s{S_WM}, 5")
    a(f"s_add_u32 s{S_T1}, s{S_T1}, s{S_T2}")
    a(f"v_and_b32 v{T}, 31, v1")
    a(f"v_add_u32 v{T}, s{S_T1}, v{T}")
    a(f"v_lshlrev_b32 v{T+2}, 2, v{T}")
    a(f"buffer_load_dword v{T+3}, v{T+2}, s[{S_SRDY}:{S_SRDY+3}], 0 offen")
    a(f"v_mul_u32_u24 v{T}, 1280, v{T}")
    a(f"v_lshrrev_b32 v{T+1}, 5, v1")
    a(f"v_lshl_add_u32 v{T}, v{T+1}, 3, v{T}")
    a(f"s_lshl_b32 s{S_T0}, s{S_CT}, 7")
    a(f"s_lshl_b32 s{S_T1}, s{S_WN}, 6")
    a(f"s_add_u32 s{S_T0}, s{S_T0}, s{S_T1}")
    for g in range(4):
        a(f"buffer_load_dwordx2 v[{E+2*g}:{E+2*g+1}], v{T}, s[{S_SRDX}:{S_SRDX+3}], s{S_T0} offen offset:{16*g}")
    a("s_waitcnt vmcnt(0)")
    a(f"v_sub_f32 v{T+4}, 1.0, v{T+3}")
    a(f"v_cvt_pk_bf16_f32 v{T+4}, v{T+4}, v{T+4}")
    a(f"v_lshlrev_b32 v{T+4}, 16, v{T+4}")
    a(f"s_mov_b32 s{S_T1}, 0xffff0000")
    for g in range(4):
        r = c.acc(0, 0) + 4 * g
        for p in range(2):
            x0, x1 = r + 2 * p, r + 2 * p + 1
            bb = E + 2 * g + p
            a(f"v_cvt_pk_bf16_f32 v{T+5}, v{x0}, v{x1}")
            a(f"v_lshlrev_b32 v{x0}, 16, v{T+5}")
            a(f"v_and_b32 v{x1}, s{S_T1}, v{T+5}")
            a(f"v_mul_f32 v{x0}, v{x0}, v{T+3}")
            a(f"v_mul_f32 v{x1}, v{x1}, v{T+3}")
            a(f"v_cvt_pk_bf16_f32 v{T+5}, v{x0}, v{x1}")
            a(f"v_lshlrev_b32 v{T+6}, 16, v{bb}")
            a(f"v_and_b32 v{T+7}, s{S_T1}, v{bb}")
            a(f"v_mul_f32 v{T+6}, v{T+6}, v{T+4}")
            a(f"v_mul_f32 v{T+7}, v{T+7}, v{T+4}")
            a(f"v_cvt_pk_bf16_f32 v{T+6}, v{T+6}, v{T+7}")
            a(f"v_lshlrev_b32 v{x0}, 16, v{T+5}")
            a(f"v_and_b32 v{x1}, s{S_T1}, v{T+5}")
            a(f"v_lshlrev_b32 v{T+5}, 16, v{T+6}")
            a(f"v_and_b32 v{T+6}, s{S_T1}, v{T+6}")
            a(f"v_add_f32 v{x0}, v{x0}, v{T+5}")
            a(f"v_add_f32 v{x1}, v{x1}, v{T+6}")
            a(f"v_cvt_pk_bf16_f32 v{T+8+p}, v{x0}, v{x1}")
        a(f"buffer_store_dwordx2 v[{T+8}:{T+9}], v{T}, s[{S_SRDO}:{S_SRDO+3}], s{S_T0} offen offset:{16*g}")
        a("s_nop 1")
    a.label("k3_end")
    a("s_endpgm")
    return dict(name="k3_kernel", vgpr=c.V_END + 8, sgpr=64, grid=N, block=256, lds=4 * c.STG)


KERNELS = [gen_k2, gen_k3]
```

```python
import sys, math, struct

S_TOK = 2048
D = 640
DFF = 1728
NH = 32
DH = 20

QF_OFF = 0x0
KV_OFF = 0x280000
H_OFF = 0x780000
O_OFF = 0xE40000
B_OFF = 0x10C0000
G_OFF = 0x1340000
QF_SIZE = 32 * 64 * 1280
KV_SIZE = 32 * 64 * 2560
H_SIZE = 2048 * 3456
O_SIZE = 2048 * 1280
G_SIZE = 8192

QSCALE = math.log2(math.e) / math.sqrt(20.0)


def f32bits(x):
    return struct.unpack("<I", struct.pack("<f", x))[0]


import os
DBG = set(os.environ.get('GDBG','').split(','))

class Asm:
    def __init__(self):
        self.lines = []

    def __call__(self, s):
        self.lines.append("    " + s)

    def label(self, l):
        self.lines.append(l + ":")

    def raw(self, s):
        self.lines.append(s)

    def text(self):
        return "\n".join(self.lines) + "\n"


def vr(base, n):
    return f"v[{base}:{base + n - 1}]" if n > 1 else f"v{base}"


def sr(base, n):
    return f"s[{base}:{base + n - 1}]" if n > 1 else f"s{base}"


S_SRDA = 4
S_SRDB = 8
S_SRDO = 12
S_PTR = 16
P_X, P_WQKV, P_WO, P_BX, P_W1, P_W2, P_GW, P_OUT, P_DBG, P_WS = [16 + 2 * i for i in range(10)]
S_WAVE = 36
S_WM = 37
S_WN = 38
S_AW = 39
S_BW = 40
S_MW = 41
S_T0 = 42
S_T1 = 43
S_T2 = 44
S_RT = 45
S_CT = 46
S_T3 = 47
S_SRDX = 48
S_SRDY = 52
S_T4 = 56
S_T5 = 57
S_EX0 = 58
S_EX1 = 60


def load_ptrs(a):
    a(f"s_load_dwordx16 s[16:31], s[0:1], 0")
    a(f"s_load_dwordx4 s[32:35], s[0:1], 64")


def make_srd(a, dst, ptr, off, size):
    if off:
        a(f"s_add_u32 s{dst}, s{ptr}, {off}")
        a(f"s_addc_u32 s{dst + 1}, s{ptr + 1}, 0")
    else:
        a(f"s_mov_b32 s{dst}, s{ptr}")
        a(f"s_mov_b32 s{dst + 1}, s{ptr + 1}")
    a(f"s_mov_b32 s{dst + 2}, {size}")
    a(f"s_mov_b32 s{dst + 3}, 0x00020000")


class GemmCfg:
    def __init__(self, WM, WN, TM, TN, S, KSTEPS, lda, ldb):
        self.WM, self.WN, self.TM, self.TN, self.S, self.KSTEPS = WM, WN, TM, TN, S, KSTEPS
        self.lda, self.ldb = lda, ldb
        self.NW = WM * WN
        self.BM = WM * TM * 32
        self.BN = WN * TN * 32
        self.ASZ = self.BM * 128
        self.BSZ = self.BN * 128
        self.STG = self.ASZ + self.BSZ
        self.nA = self.BM // 8 // self.NW
        self.nB = self.BN // 8 // self.NW
        assert self.nA * 8 * self.NW == self.BM and self.nB * 8 * self.NW == self.BN
        self.RB = 512 // self.BN
        self.V_DA = 2
        self.V_DB = 3
        self.V_AA = 4
        self.V_BA = 8
        self.V_T = 12
        self.V_FR = 24
        self.FRSZ = (TM + TN) * 4
        self.V_ACC = self.V_FR + 2 * self.FRSZ
        self.V_END = self.V_ACC + TM * TN * 16

    def acc(self, tm, tn):
        return self.V_ACC + (tm * self.TN + tn) * 16


def gemm_setup_lane(a, c):
    T = c.V_T
    a("v_and_b32 v1, 63, v0")
    a(f"v_lshrrev_b32 v{T}, 3, v1")
    a(f"v_lshrrev_b32 v{T+1}, 4, v1")
    a(f"s_and_b32 s{S_T0}, s{S_WAVE}, 1")
    a(f"s_lshl_b32 s{S_T0}, s{S_T0}, 2")
    a(f"v_add_u32 v{T+1}, s{S_T0}, v{T+1}")
    a(f"v_and_b32 v{T+2}, 7, v1")
    a(f"v_xor_b32 v{T+2}, v{T+2}, v{T+1}")
    a(f"v_lshlrev_b32 v{T+2}, 4, v{T+2}")
    a(f"s_mov_b32 s{S_T0}, {c.lda}")
    a(f"v_mad_u32_u24 v{c.V_DA}, v{T}, s{S_T0}, v{T+2}")
    if c.BN == 64:
        a(f"v_lshrrev_b32 v{T}, 3, v1")
        a(f"v_and_b32 v{T+2}, 7, v1")
        a(f"v_lshrrev_b32 v{T+1}, 4, v1")
        a(f"v_and_b32 v{T+1}, 1, v{T+1}")
        a(f"v_lshlrev_b32 v{T+1}, 2, v{T+1}")
    elif c.BN == 128:
        a(f"v_lshrrev_b32 v{T}, 4, v1")
        a(f"v_and_b32 v{T+2}, 15, v1")
        a(f"v_lshlrev_b32 v{T+1}, 2, v{T}")
    else:
        raise NotImplementedError
    a(f"v_xor_b32 v{T+2}, v{T+2}, v{T+1}")
    a(f"v_lshlrev_b32 v{T+2}, 4, v{T+2}")
    a(f"s_mov_b32 s{S_T0}, {c.ldb}")
    a(f"v_mad_u32_u24 v{c.V_DB}, v{T}, s{S_T0}, v{T+2}")
    a(f"v_and_b32 v{T}, 31, v1")
    a(f"v_lshrrev_b32 v{T+1}, 5, v1")
    a(f"v_bfe_u32 v{T+2}, v1, 1, 3")
    a(f"s_mul_i32 s{S_T0}, s{S_WM}, {c.TM * 32 * 128}")
    a(f"v_lshlrev_b32 v{T+3}, 7, v{T}")
    a(f"v_add_u32 v{T+3}, s{S_T0}, v{T+3}")
    for ks in range(4):
        a(f"v_add_u32 v{T+4}, {2*ks}, v{T+1}")
        a(f"v_xor_b32 v{T+4}, v{T+4}, v{T+2}")
        a(f"v_lshlrev_b32 v{T+4}, 4, v{T+4}")
        a(f"v_add_u32 v{c.V_AA+ks}, v{T+3}, v{T+4}")
    rowb = c.BN * 2
    a(f"v_bfe_u32 v{T}, v1, 2, 2")
    a(f"v_and_b32 v{T+2}, 3, v1")
    a(f"v_bfe_u32 v{T+3}, v1, 4, 1")
    a(f"v_lshl_add_u32 v{T+4}, v{T+1}, 3, v{T}")
    a(f"v_mul_u32_u24 v{T+4}, {rowb}, v{T+4}")
    a(f"v_lshrrev_b32 v{T+5}, 1, v{T+2}")
    a(f"v_lshl_add_u32 v{T+5}, v{T+3}, 1, v{T+5}")
    a(f"v_lshlrev_b32 v{T+5}, 4, v{T+5}")
    a(f"v_and_b32 v{T+6}, 1, v{T+2}")
    a(f"v_lshl_add_u32 v{T+5}, v{T+6}, 3, v{T+5}")
    a(f"v_add_u32 v{T+4}, v{T+4}, v{T+5}")
    a(f"v_add_u32 v{T+4}, {c.ASZ}, v{T+4}")
    if c.BN == 64:
        a(f"v_lshrrev_b32 v{T+5}, 1, v{T}")
    else:
        a(f"v_mov_b32 v{T+5}, v{T}")
    for tn in range(c.TN):
        a(f"s_mul_i32 s{S_T0}, s{S_WN}, {c.TN}")
        a(f"s_add_u32 s{S_T0}, s{S_T0}, {tn}")
        a(f"v_xor_b32 v{T+6}, s{S_T0}, v{T+5}")
        a(f"v_lshlrev_b32 v{T+6}, 6, v{T+6}")
        a(f"v_add_u32 v{c.V_BA+tn}, v{T+4}, v{T+6}")
    a(f"s_lshl_b32 s{S_MW}, s{S_WAVE}, 10")


def gemm_dma(a, c, t):
    st = t % c.S
    if 'nodma' in DBG: return
    for i in range(c.nA):
        a(f"s_add_u32 m0, s{S_MW}, {st * c.STG + i * c.NW * 1024}")
        a(f"s_add_u32 s{S_T0}, s{S_AW}, {i * c.NW * 8 * c.lda + t * 128}")
        a(f"buffer_load_dwordx4 v{c.V_DA}, s[{S_SRDA}:{S_SRDA+3}], s{S_T0} offen lds")
    for i in range(c.nB):
        a(f"s_add_u32 m0, s{S_MW}, {st * c.STG + c.ASZ + i * c.NW * 1024}")
        a(f"s_add_u32 s{S_T0}, s{S_BW}, {(t * 64 + i * c.NW * c.RB) * c.ldb}")
        a(f"buffer_load_dwordx4 v{c.V_DB}, s[{S_SRDB}:{S_SRDB+3}], s{S_T0} offen lds")


def gemm_reads(a, c, t, ks, fset):
    st = t % c.S
    if 'noreads' in DBG: return
    fb = c.V_FR + fset * c.FRSZ
    rowb = c.BN * 2
    for tm in range(c.TM):
        a(f"ds_read_b128 {vr(fb + tm*4, 4)}, v{c.V_AA+ks} offset:{st*c.STG + tm*4096}")
    for tn in range(c.TN):
        for w in range(2):
            a(f"ds_read_b64_tr_b16 {vr(fb + c.TM*4 + tn*4 + w*2, 2)}, v{c.V_BA+tn} offset:{st*c.STG + (ks*16 + 4*w)*rowb}")


def gemm_mfmas(a, c, fset, swap, first):
    fb = c.V_FR + fset * c.FRSZ
    if 'nomfma' in DBG and not first: return
    for tm in range(c.TM):
        for tn in range(c.TN):
            A = vr(fb + tm * 4, 4)
            B = vr(fb + c.TM * 4 + tn * 4, 4)
            acc = vr(c.acc(tm, tn), 16)
            cin = "0" if first else acc
            if swap:
                a(f"v_mfma_f32_32x32x16_bf16 {acc}, {A}, {B}, {cin}")
            else:
                a(f"v_mfma_f32_32x32x16_bf16 {acc}, {B}, {A}, {cin}")


def gemm_main(a, c, swap):
    per = c.nA + c.nB
    nr = c.TM + 2 * c.TN
    for t in range(min(c.S - 1, c.KSTEPS)):
        gemm_dma(a, c, t)
    for t in range(c.KSTEPS):
        inflight_after = min(c.S - 2, c.KSTEPS - 1 - t)
        a(f"s_waitcnt vmcnt({inflight_after * per})")
        a("s_barrier")
        gemm_reads(a, c, t, 0, 0)
        gemm_reads(a, c, t, 1, 1)
        if t + c.S - 1 < c.KSTEPS:
            gemm_dma(a, c, t + c.S - 1)
        a(f"s_waitcnt lgkmcnt({nr})")
        gemm_mfmas(a, c, 0, swap, t == 0)
        gemm_reads(a, c, t, 2, 0)
        a(f"s_waitcnt lgkmcnt({nr})")
        gemm_mfmas(a, c, 1, swap, False)
        gemm_reads(a, c, t, 3, 1)
        a(f"s_waitcnt lgkmcnt({nr})")
        gemm_mfmas(a, c, 0, swap, False)
        a(f"s_waitcnt lgkmcnt(0)")
        gemm_mfmas(a, c, 1, swap, False)
    a("s_nop 15")
    a("s_nop 3")
    if 'noepi' in DBG: a("s_endpgm")


def wave_ids(a, c):
    a("v_lshrrev_b32 v1, 6, v0")
    a("s_nop 0")
    a(f"v_readfirstlane_b32 s{S_WAVE}, v1")
    a("s_nop 3")
    lg = int(math.log2(c.WN))
    a(f"s_lshr_b32 s{S_WM}, s{S_WAVE}, {lg}")
    a(f"s_and_b32 s{S_WN}, s{S_WAVE}, {c.WN - 1}")


K1_TILES = 16 * 29
K1_GATE = 16


def gen_k1(a):
    cq = GemmCfg(2, 2, 2, 2, 2, 10, 1280, 3840)
    ch = GemmCfg(2, 2, 2, 2, 2, 10, 1280, 3456)
    c = cq
    T = c.V_T
    a.label("k1_kernel")
    a(f"s_cmp_ge_u32 s2, {K1_TILES + K1_GATE}")
    a("s_cbranch_scc1 k1_end")
    load_ptrs(a)
    wave_ids(a, c)
    a("s_waitcnt lgkmcnt(0)")
    a(f"s_cmp_ge_u32 s2, {K1_TILES}")
    a("s_cbranch_scc1 k1_gate")
    a(f"s_and_b32 s{S_T0}, s2, 7")
    a(f"s_mul_i32 s{S_T0}, s{S_T0}, {K1_TILES // 8}")
    a(f"s_lshr_b32 s{S_T1}, s2, 3")
    a(f"s_add_u32 s{S_T0}, s{S_T0}, s{S_T1}")
    a(f"s_lshr_b32 s{S_CT}, s{S_T0}, 4")
    a(f"s_and_b32 s{S_RT}, s{S_T0}, 15")
    make_srd(a, S_SRDA, P_X, 0, 2048 * 1280)
    a(f"s_lshl_b32 s{S_T0}, s{S_RT}, 7")
    a(f"s_lshl_b32 s{S_T1}, s{S_WAVE}, 3")
    a(f"s_add_u32 s{S_T0}, s{S_T0}, s{S_T1}")
    a(f"s_mul_i32 s{S_AW}, s{S_T0}, 1280")
    a(f"s_cmp_ge_u32 s{S_CT}, 15")
    a("s_cbranch_scc1 k1_h")
    make_srd(a, S_SRDB, P_WQKV, 0, 640 * 3840)
    a(f"s_lshl_b32 s{S_T0}, s{S_CT}, 8")
    a(f"s_mul_i32 s{S_T1}, s{S_WAVE}, {cq.RB * 3840}")
    a(f"s_add_u32 s{S_BW}, s{S_T0}, s{S_T1}")
    gemm_setup_lane(a, cq)
    a(f"s_cmp_ge_u32 s{S_CT}, 10")
    a("s_cbranch_scc1 k1_v")
    gemm_main(a, cq, False)
    a(f"s_mov_b32 s{S_T0}, {f32bits(QSCALE)}")
    a(f"s_mov_b32 s{S_T1}, 1.0")
    a(f"s_cmp_lt_u32 s{S_CT}, 5")
    a(f"s_cselect_b32 s{S_T4}, s{S_T0}, s{S_T1}")
    a(f"s_movk_i32 s{S_T5}, 2560")
    a(f"s_cselect_b32 s{S_T5}, 1280, s{S_T5}")
    a(f"s_cselect_b32 s{S_T0}, {QF_OFF}, {KV_OFF}")
    a(f"s_mov_b32 s{S_T1}, {KV_SIZE}")
    a(f"s_cselect_b32 s{S_T1}, {QF_SIZE}, s{S_T1}")
    a(f"s_add_u32 s{S_SRDO}, s{P_WS}, s{S_T0}")
    a(f"s_addc_u32 s{S_SRDO+1}, s{P_WS+1}, 0")
    a(f"s_mov_b32 s{S_SRDO+2}, s{S_T1}")
    a(f"s_mov_b32 s{S_SRDO+3}, 0x00020000")
    a(f"s_cmp_lt_u32 s{S_CT}, 5")
    a(f"s_cselect_b32 s{S_T0}, 0, 5")
    a(f"s_sub_u32 s{S_T0}, s{S_CT}, s{S_T0}")
    a(f"s_lshl_b32 s{S_T0}, s{S_T0}, 7")
    a(f"s_lshl_b32 s{S_T1}, s{S_WN}, 6")
    a(f"s_add_u32 s{S_T0}, s{S_T0}, s{S_T1}")
    a(f"v_lshrrev_b32 v{T}, 5, v1")
    a(f"v_lshlrev_b32 v{T}, 2, v{T}")
    a(f"v_add_u32 v{T}, s{S_T0}, v{T}")
    a(f"v_and_b32 v{T+1}, 31, v1")
    a(f"s_lshl_b32 s{S_T2}, s{S_T5}, 6")
    a(f"s_lshl_b32 s{S_T0}, s{S_RT}, 2")
    a(f"s_lshl_b32 s{S_T1}, s{S_WM}, 1")
    a(f"s_add_u32 s{S_T0}, s{S_T0}, s{S_T1}")
    a(f"s_mul_i32 s{S_T0}, s{S_T0}, s{S_T5}")
    a(f"s_add_u32 s{S_T1}, s{S_T0}, s{S_T5}")
    a(f"s_mov_b32 s{S_T3}, 3277")
    for tn in range(2):
        for g in range(4):
            a(f"v_add_u32 v{T+2}, {tn*32 + 8*g}, v{T}")
            a(f"v_mul_u32_u24 v{T+3}, s{S_T3}, v{T+2}")
            a(f"v_lshrrev_b32 v{T+3}, 16, v{T+3}")
            a(f"v_mul_u32_u24 v{T+4}, 20, v{T+3}")
            a(f"v_sub_u32 v{T+4}, v{T+2}, v{T+4}")
            a(f"v_lshrrev_b32 v{T+5}, 3, v{T+4}")
            a(f"v_lshlrev_b32 v{T+5}, 9, v{T+5}")
            a(f"v_and_b32 v{T+6}, 4, v{T+4}")
            a(f"v_lshl_add_u32 v{T+5}, v{T+6}, 1, v{T+5}")
            a(f"v_lshl_add_u32 v{T+5}, v{T+1}, 4, v{T+5}")
            a(f"v_lshlrev_b32 v{T+6}, 3, v{T+1}")
            a(f"v_add_u32 v{T+6}, 0x400, v{T+6}")
            a(f"v_cmp_eq_u32 vcc, 16, v{T+4}")
            a(f"v_mul_lo_u32 v{T+3}, v{T+3}, s{S_T2}")
            a("s_nop 0")
            a(f"v_cndmask_b32 v{T+5}, v{T+5}, v{T+6}, vcc")
            a(f"v_add_u32 v{T+5}, v{T+5}, v{T+3}")
            for tm in range(2):
                r = c.acc(tm, tn) + 4 * g
                for i in range(4):
                    a(f"v_mul_f32 v{r+i}, s{S_T4}, v{r+i}")
                a(f"v_cvt_pk_bf16_f32 v{T+8}, v{r}, v{r+1}")
                a(f"v_cvt_pk_bf16_f32 v{T+9}, v{r+2}, v{r+3}")
                a(f"buffer_store_dwordx2 v[{T+8}:{T+9}], v{T+5}, s[{S_SRDO}:{S_SRDO+3}], s{S_T0 if tm == 0 else S_T1} offen")
                a("s_nop 1")
    a("s_endpgm")
    a.label("k1_v")
    gemm_main(a, cq, True)
    make_srd(a, S_SRDO, P_WS, KV_OFF, KV_SIZE)
    a(f"s_sub_u32 s{S_T0}, s{S_CT}, 10")
    a(f"s_lshl_b32 s{S_T0}, s{S_T0}, 7")
    a(f"s_lshl_b32 s{S_T1}, s{S_WN}, 6")
    a(f"s_add_u32 s{S_T0}, s{S_T0}, s{S_T1}")
    a(f"v_and_b32 v{T}, 31, v1")
    a(f"v_add_u32 v{T}, s{S_T0}, v{T}")
    a(f"v_lshrrev_b32 v{T+1}, 5, v1")
    a(f"v_mul_u32_u24 v{T+1}, 320, v{T+1}")
    a(f"v_add_u32 v{T+1}, 1280, v{T+1}")
    a(f"s_lshl_b32 s{S_T0}, s{S_RT}, 2")
    a(f"s_lshl_b32 s{S_T1}, s{S_WM}, 1")
    a(f"s_add_u32 s{S_T0}, s{S_T0}, s{S_T1}")
    a(f"s_mul_i32 s{S_T0}, s{S_T0}, 2560")
    a(f"s_add_u32 s{S_T1}, s{S_T0}, 2560")
    a(f"s_mov_b32 s{S_T3}, 3277")
    a(f"s_mov_b32 s{S_T2}, {64*2560}")
    for tn in range(2):
        a(f"v_add_u32 v{T+2}, {tn*32}, v{T}")
        a(f"v_mul_u32_u24 v{T+3}, s{S_T3}, v{T+2}")
        a(f"v_lshrrev_b32 v{T+3}, 16, v{T+3}")
        a(f"v_mul_u32_u24 v{T+4}, 20, v{T+3}")
        a(f"v_sub_u32 v{T+4}, v{T+2}, v{T+4}")
        a(f"v_mul_lo_u32 v{T+3}, v{T+3}, s{S_T2}")
        a(f"v_lshl_add_u32 v{T+5}, v{T+4}, 4, v{T+1}")
        a(f"v_add_u32 v{T+5}, v{T+5}, v{T+3}")
        for tm in range(2):
            for m in range(2):
                r = c.acc(tm, tn) + 8 * m
                for i in range(4):
                    a(f"v_cvt_pk_bf16_f32 v{T+8+i}, v{r+2*i}, v{r+2*i+1}")
                a(f"buffer_store_dwordx4 v[{T+8}:{T+11}], v{T+5}, s[{S_SRDO}:{S_SRDO+3}], s{S_T0 if tm == 0 else S_T1} offen offset:{m*640}")
                a("s_nop 1")
    a("s_endpgm")
    a.label("k1_h")
    make_srd(a, S_SRDB, P_W1, 0, 640 * 3456)
    a(f"s_sub_u32 s{S_CT}, s{S_CT}, 15")
    a(f"s_lshl_b32 s{S_T0}, s{S_CT}, 8")
    a(f"s_mul_i32 s{S_T1}, s{S_WAVE}, {ch.RB * 3456}")
    a(f"s_add_u32 s{S_BW}, s{S_T0}, s{S_T1}")
    gemm_setup_lane(a, ch)
    gemm_main(a, ch, False)
    a(f"s_lshl_b32 s{S_T0}, s{S_CT}, 7")
    a(f"s_lshl_b32 s{S_T1}, s{S_WN}, 6")
    a(f"s_add_u32 s{S_T0}, s{S_T0}, s{S_T1}")
    a(f"s_cmp_ge_u32 s{S_T0}, {DFF}")
    a("s_cbranch_scc1 k1_end")
    make_srd(a, S_SRDO, P_WS, H_OFF, H_SIZE)
    a(f"s_lshl_b32 s{S_T1}, s{S_RT}, 7")
    a(f"s_lshl_b32 s{S_T2}, s{S_WM}, 6")
    a(f"s_add_u32 s{S_T1}, s{S_T1}, s{S_T2}")
    a(f"v_and_b32 v{T}, 31, v1")
    a(f"v_add_u32 v{T}, s{S_T1}, v{T}")
    a(f"s_mov_b32 s{S_T2}, 3456")
    a(f"v_mul_lo_u32 v{T}, v{T}, s{S_T2}")
    a(f"v_lshrrev_b32 v{T+1}, 5, v1")
    a(f"v_lshlrev_b32 v{T+1}, 3, v{T+1}")
    a(f"v_add_u32 v{T}, v{T}, v{T+1}")
    a(f"s_lshl_b32 s{S_T0}, s{S_T0}, 1")
    a(f"v_add_u32 v{T}, s{S_T0}, v{T}")
    a(f"s_mov_b32 s{S_T1}, {32*3456}")
    for tm in range(2):
        for tn in range(2):
            for g in range(4):
                r = c.acc(tm, tn) + 4 * g
                for i in range(4):
                    a(f"v_max_f32 v{r+i}, 0, v{r+i}")
                a(f"v_cvt_pk_bf16_f32 v{T+8}, v{r}, v{r+1}")
                a(f"v_cvt_pk_bf16_f32 v{T+9}, v{r+2}, v{r+3}")
                so = "0" if tm == 0 else f"s{S_T1}"
                a(f"buffer_store_dwordx2 v[{T+8}:{T+9}], v{T}, s[{S_SRDO}:{S_SRDO+3}], {so} offen offset:{(tn*32+8*g)*2}")
                a("s_nop 1")
    a("s_endpgm")
    a.label("k1_gate")
    make_srd(a, S_SRDA, P_X, 0, 2048 * 1280)
    make_srd(a, S_SRDB, P_GW, 0, 1280)
    make_srd(a, S_SRDO, P_WS, G_OFF, G_SIZE)
    a("v_and_b32 v1, 63, v0")
    a("v_and_b32 v2, 15, v1")
    a("v_lshrrev_b32 v3, 4, v1")
    a("v_lshlrev_b32 v4, 4, v2")
    for i in range(5):
        a(f"buffer_load_dwordx4 v[{24+4*i}:{27+4*i}], v4, s[{S_SRDB}:{S_SRDB+3}], 0 offen offset:{i*256}")
    a(f"s_sub_u32 s{S_T0}, s2, {K1_TILES}")
    a(f"s_lshl_b32 s{S_T0}, s{S_T0}, 7")
    a(f"s_lshl_b32 s{S_T1}, s{S_WAVE}, 5")
    a(f"s_add_u32 s{S_T0}, s{S_T0}, s{S_T1}")
    a(f"v_add_u32 v5, s{S_T0}, v3")
    a(f"v_mul_u32_u24 v6, 1280, v5")
    a(f"v_add_u32 v6, v6, v4")
    a(f"v_lshlrev_b32 v7, 2, v5")
    a("v_cmp_eq_u32 vcc, 0, v2")
    a(f"s_mov_b64 s[{S_EX0}:{S_EX0+1}], vcc")
    for p in range(8):
        for i in range(5):
            a(f"s_mov_b32 s{S_T0}, {p*4*1280}")
            a(f"buffer_load_dwordx4 v[{48+4*i}:{51+4*i}], v6, s[{S_SRDA}:{S_SRDA+3}], s{S_T0} offen offset:{i*256}")
        a("s_waitcnt vmcnt(0)")
        a("v_mov_b32 v8, 0")
        for i in range(20):
            a(f"v_dot2_f32_bf16 v8, v{24+i}, v{48+i}, v8")
        a("s_nop 3")
        for sh in (8, 4, 2, 1):
            a("s_nop 1")
            a(f"v_add_f32_dpp v8, v8, v8 row_ror:{sh} row_mask:0xf bank_mask:0xf")
        a("s_nop 1")
        a("v_cvt_pk_bf16_f32 v8, v8, v8")
        a("v_lshlrev_b32 v8, 16, v8")
        a(f"v_mul_f32 v8, {f32bits(-math.log2(math.e))}, v8")
        a("v_exp_f32 v8, v8")
        a("s_nop 0")
        a("v_add_f32 v8, 1.0, v8")
        a("v_rcp_f32 v8, v8")
        a("s_nop 0")
        a("v_cvt_pk_bf16_f32 v8, v8, v8")
        a("v_lshlrev_b32 v8, 16, v8")
        a(f"s_mov_b64 exec, s[{S_EX0}:{S_EX0+1}]")
        a(f"buffer_store_dword v8, v7, s[{S_SRDO}:{S_SRDO+3}], 0 offen offset:{p*16}")
        a("s_mov_b64 exec, -1")
        a("s_nop 1")
    a.label("k1_end")
    a("s_endpgm")
    return dict(name="k1_kernel", vgpr=c.V_END, sgpr=64, grid=K1_TILES + K1_GATE, block=256, lds=2 * c.STG)


HEADER = """; generated by dev/gen.py
{launch}
.amdgcn_target "amdgcn-amd-amdhsa--gfx950"
.text
"""


def kd(k):
    v = (k["vgpr"] + 3) // 4 * 4
    return f""".p2align 6
.amdhsa_kernel {k['name']}
  .amdhsa_next_free_vgpr {v}
  .amdhsa_next_free_sgpr {k['sgpr']}
  .amdhsa_accum_offset {v}
  .amdhsa_group_segment_fixed_size 0
  .amdhsa_kernarg_size 80
  .amdhsa_user_sgpr_count 2
  .amdhsa_user_sgpr_kernarg_segment_ptr 1
  .amdhsa_system_sgpr_workgroup_id_x 1
.end_amdhsa_kernel
"""


def main(out):
    import gen_attn
    kernels = []
    body = ""
    for fn in [gen_k1] + gen_attn.KERNELS:
        a = Asm()
        k = fn(a)
        kernels.append(k)
        body += f".globl {k['name']}\n.p2align 8\n.type {k['name']},@function\n" + a.text()
    launch = "\n".join(f"; @launch kernel={k['name']} grid=({k['grid']},1,1) block=({k['block']},1,1) lds={k['lds']}" for k in kernels)
    src = HEADER.format(launch=launch) + body + '.section .rodata,"a"\n' + "".join(kd(k) for k in kernels)
    open(out, "w").write(src)


if __name__ == "__main__":
    sys.path.insert(0, "dev")
    main(sys.argv[1] if len(sys.argv) > 1 else "gated_mix__mha_block__dense_activation_relu__prompt.s")
```

```python
import math
from gen import *

K2_ATT = 256
K2_FFN = 160
CHUNK = 40960

V_DMA = 2
V_KE0 = 3
V_VV0 = 4
V_KM1 = 5
V_KE1 = 6
V_VV1 = 7
V_TMP = 8
V_Q1 = 12
V_Q2 = 16
V_K = 20
V_V = 36
V_P = 52
V_NM = 60
V_S = 76
V_O = 108
S_HEAD = 37
S_QT = 38
S_VMASK = 62


def att_dma(a, c):
    buf = c % 2
    for i in range(5):
        a(f"s_add_u32 m0, s{S_MW}, {buf*CHUNK + i*8192}")
        a(f"s_add_u32 s{S_T0}, s{S_AW}, {c*CHUNK + i*8192}")
        a(f"buffer_load_dwordx4 v{V_DMA}, s[{S_SRDA}:{S_SRDA+3}], s{S_T0} offen lds")


def att_read_k(a, t):
    kb = t % 2
    buf = (t // 16) % 2
    off = (t % 16) * 2560
    a(f"ds_read_b128 {vr(V_K + 8*kb, 4)}, v{V_DMA if buf == 0 else V_KM1} offset:{off}")
    a(f"ds_read_b32 v{V_K + 8*kb + 4}, v{V_KE0 if buf == 0 else V_KE1} offset:{off}")


def att_read_v(a, t):
    vb = t % 2
    buf = (t // 16) % 2
    off = (t % 16) * 2560
    a(f"s_mov_b64 exec, s[{S_VMASK}:{S_VMASK+1}]")
    for m in range(2):
        a(f"ds_read_b128 {vr(V_V + 8*vb + 4*m, 4)}, v{V_VV0 if buf == 0 else V_VV1} offset:{off + m*640}")
    a("s_mov_b64 exec, -1")


def att_qk(a, t, which, cin=None):
    kb = t % 2
    S = vr(V_S + 16 * (t % 2), 16)
    if which == 0:
        c = cin if cin is not None else vr(V_NM, 16)
        a(f"v_mfma_f32_32x32x16_bf16 {S}, {vr(V_K + 8*kb, 4)}, {vr(V_Q1, 4)}, {c}")
    else:
        a(f"v_mfma_f32_32x32x16_bf16 {S}, {vr(V_K + 8*kb + 4, 4)}, {vr(V_Q2, 4)}, {S}")


def att_pv(a, t, m):
    vb = t % 2
    O = vr(V_O, 16)
    cin = "0" if (t == 0 and m == 0) else O
    a(f"v_mfma_f32_32x32x16_bf16 {O}, {vr(V_V + 8*vb + 4*m, 4)}, {vr(V_P + 4*m, 4)}, {cin}")


def gen_k2(a):
    T = V_TMP
    a.label("k2_kernel")
    a(f"s_cmp_ge_u32 s2, {K2_ATT + K2_FFN}")
    a("s_cbranch_scc1 k2_end")
    load_ptrs(a)
    a("v_lshrrev_b32 v1, 6, v0")
    a("s_nop 0")
    a(f"v_readfirstlane_b32 s{S_WAVE}, v1")
    a("s_waitcnt lgkmcnt(0)")
    a(f"s_cmp_ge_u32 s2, {K2_ATT}")
    a("s_cbranch_scc1 k2_end" if 'noffn' in DBG else "s_cbranch_scc1 k2_ffn")
    if 'noatt' in DBG: a("s_endpgm")
    a(f"s_and_b32 s{S_T0}, s2, 7")
    a(f"s_lshl_b32 s{S_T0}, s{S_T0}, 2")
    a(f"s_lshr_b32 s{S_T1}, s2, 3")
    a(f"s_and_b32 s{S_T1}, s{S_T1}, 3")
    a(f"s_add_u32 s{S_HEAD}, s{S_T0}, s{S_T1}")
    a(f"s_lshr_b32 s{S_T0}, s2, 5")
    a(f"s_lshl_b32 s{S_T0}, s{S_T0}, 3")
    a(f"s_add_u32 s{S_QT}, s{S_T0}, s{S_WAVE}")
    make_srd(a, S_SRDA, P_WS, KV_OFF, KV_SIZE)
    make_srd(a, S_SRDB, P_WS, QF_OFF, QF_SIZE)
    make_srd(a, S_SRDO, P_WS, O_OFF, O_SIZE)
    a("v_and_b32 v1, 63, v0")
    a(f"v_lshlrev_b32 v{V_DMA}, 4, v1")
    a(f"v_and_b32 v{T}, 31, v1")
    a(f"v_lshrrev_b32 v{T+1}, 5, v1")
    a(f"v_lshlrev_b32 v{V_KE0}, 3, v{T}")
    a(f"v_lshl_add_u32 v{V_KE0}, v{T+1}, 2, v{V_KE0}")
    a(f"v_add_u32 v{V_KE0}, 0x400, v{V_KE0}")
    a(f"v_mul_u32_u24 v{V_VV0}, 320, v{T+1}")
    a(f"v_lshl_add_u32 v{V_VV0}, v{T}, 4, v{V_VV0}")
    a(f"v_add_u32 v{V_VV0}, 1280, v{V_VV0}")
    a(f"v_add_u32 v{V_KM1}, {CHUNK}, v{V_DMA}")
    a(f"v_add_u32 v{V_KE1}, {CHUNK}, v{V_KE0}")
    a(f"v_add_u32 v{V_VV1}, {CHUNK}, v{V_VV0}")
    a(f"s_lshl_b32 s{S_T0}, s{S_HEAD}, 6")
    a(f"s_add_u32 s{S_T0}, s{S_T0}, s{S_QT}")
    a(f"s_mul_i32 s{S_T0}, s{S_T0}, 1280")
    a(f"buffer_load_dwordx4 {vr(V_Q1,4)}, v{V_DMA}, s[{S_SRDB}:{S_SRDB+3}], s{S_T0} offen")
    a(f"buffer_load_dword v{V_Q2}, v{V_KE0}, s[{S_SRDB}:{S_SRDB+3}], s{S_T0} offen")
    a(f"s_lshl_b32 s{S_MW}, s{S_WAVE}, 10")
    a(f"s_mul_i32 s{S_AW}, s{S_HEAD}, {64*2560}")
    a(f"s_add_u32 s{S_AW}, s{S_AW}, s{S_MW}")
    att_dma(a, 0)
    att_dma(a, 1)
    for r in (V_Q2 + 1, V_Q2 + 2, V_Q2 + 3, V_K + 5, V_K + 6, V_K + 7, V_K + 13, V_K + 14, V_K + 15):
        a(f"v_mov_b32 v{r}, 0")
    a(f"v_cmp_eq_u32 vcc, 20, v{T}")
    a(f"v_cmp_eq_u32 s[{S_EX0}:{S_EX0+1}], 24, v{T}")
    a(f"s_or_b64 vcc, vcc, s[{S_EX0}:{S_EX0+1}]")
    a(f"v_mov_b32 v{T+2}, 0x3f803f80")
    a("s_nop 1")
    a(f"v_cndmask_b32 v{T+2}, 0, v{T+2}, vcc")
    for r in range(16):
        a(f"v_mov_b32 v{V_V + r}, v{T+2}")
    a(f"s_mov_b32 s{S_VMASK}, 0x000fffff")
    a(f"s_mov_b32 s{S_VMASK+1}, 0x000fffff")
    if 'stamp' in DBG:
        a("s_memtime s[64:65]")
    a("s_waitcnt vmcnt(5)")
    a("s_barrier")
    if 'stamp' in DBG:
        a("s_memtime s[66:67]")
    att_read_k(a, 0)
    att_read_k(a, 1)
    att_read_v(a, 0)
    a("s_waitcnt lgkmcnt(4)")
    att_qk(a, 0, 0, "0")
    att_qk(a, 0, 1)
    a("s_nop 15")
    a("s_nop 3")
    S0 = V_S
    a(f"v_max3_f32 v{T}, v{S0}, v{S0+1}, v{S0+2}")
    for i in range(3, 15, 2):
        a(f"v_max3_f32 v{T}, v{T}, v{S0+i}, v{S0+i+1}")
    a(f"v_max_f32 v{T}, v{T}, v{S0+15}")
    a(f"v_mov_b32 v{T+1}, v{T}")
    a("s_nop 1")
    a(f"v_permlane32_swap_b32 v{T}, v{T+1}")
    a("s_nop 1")
    a(f"v_max_f32 v{T}, v{T}, v{T+1}")
    a(f"v_sub_f32 v{T}, 0, v{T}")
    for r in range(16):
        a(f"v_mov_b32 v{V_NM + r}, v{T}")
    a("s_nop 1")
    att_qk(a, 0, 0)
    att_qk(a, 0, 1)
    a("s_nop 7")
    NT = 64
    for t in range(NT):
        S = V_S + 16 * (t % 2)
        e = lambda i: a(f"v_exp_f32 v{S+i}, v{S+i}")
        cv = lambda i: a(f"v_cvt_pk_bf16_f32 v{V_P+i}, v{S+2*i}, v{S+2*i+1}")
        if t in (16, 32):
            a("s_barrier")
            att_dma(a, t // 16 + 1)
        if t + 1 < NT:
            a("s_waitcnt lgkmcnt(2)")
            att_qk(a, t + 1, 0)
        for i in range(4):
            e(i)
        if t > 0:
            att_pv(a, t - 1, 1)
        nout = 0
        if t in (14, 30, 46):
            a("s_waitcnt vmcnt(0)")
            a("s_barrier")
        if t + 2 < NT:
            att_read_k(a, t + 2)
            nout += 2
        if t + 1 < NT:
            att_read_v(a, t + 1)
            nout += 2
        for i in range(4, 8):
            e(i)
        if t + 1 < NT:
            att_qk(a, t + 1, 1)
        for i in range(4):
            cv(i)
        e(8)
        e(9)
        a(f"s_waitcnt lgkmcnt({nout})")
        att_pv(a, t, 0)
        for i in range(10, 16):
            e(i)
        for i in range(4, 8):
            cv(i)
    a("s_nop 1")
    att_pv(a, NT - 1, 1)
    a("s_nop 15")
    a("s_nop 3")
    if 'stamp' in DBG:
        a("s_memtime s[68:69]")
        a("s_memrealtime s[70:71]")
        a("s_waitcnt lgkmcnt(0)")
        make_srd(a, S_SRDX, P_DBG, 0, 256)
        a("s_sub_u32 s64, s66, s64")
        a("s_sub_u32 s65, s68, s66")
        a(f"v_mov_b32 v{T}, s64")
        a(f"v_mov_b32 v{T+1}, s65")
        a(f"s_lshl_b32 s66, s{S_WAVE}, 3")
        a(f"v_mov_b32 v{T+2}, s66")
        a("s_cmp_eq_u32 s2, 5")
        a("s_cbranch_scc0 k2_nostamp")
        a(f"buffer_store_dwordx2 v[{T}:{T+1}], v{T+2}, s[{S_SRDX}:{S_SRDX+3}], 0 offen")
        a.label("k2_nostamp")
    a("v_cmp_gt_u32 vcc, 32, v1")
    a(f"s_mov_b32 s{S_T0}, 0x5f800000")
    a(f"s_movk_i32 s{S_T1}, 0x207")
    a(f"v_cndmask_b32 v{T}, v{V_O+8}, v{V_O+12}, vcc")
    a(f"v_cmp_nlt_f32 vcc, v{T}, s{S_T0}")
    for r in range(16):
        a(f"v_cmp_class_f32 s[{S_EX0}:{S_EX0+1}], v{V_O+r}, s{S_T1}")
        a(f"s_or_b64 vcc, vcc, s[{S_EX0}:{S_EX0+1}]")
    if 'forcefb' not in DBG:
        a("s_cbranch_vccz k2_norm")
    M = V_NM
    a(f"v_mov_b32 v{M}, 0xff800000")
    for r in range(16):
        a(f"v_mov_b32 v{V_O+r}, 0")
    a(f"s_mul_i32 s{S_T0}, s{S_HEAD}, {64*2560}")
    a(f"s_mov_b32 s{S_T1}, 64")
    a.label("k2_slow")
    a(f"buffer_load_dwordx4 {vr(V_K,4)}, v{V_DMA}, s[{S_SRDA}:{S_SRDA+3}], s{S_T0} offen")
    a(f"buffer_load_dword v{V_K+4}, v{V_KE0}, s[{S_SRDA}:{S_SRDA+3}], s{S_T0} offen")
    a(f"s_mov_b64 exec, s[{S_VMASK}:{S_VMASK+1}]")
    a(f"buffer_load_dwordx4 {vr(V_V,4)}, v{V_VV0}, s[{S_SRDA}:{S_SRDA+3}], s{S_T0} offen")
    a(f"buffer_load_dwordx4 {vr(V_V+4,4)}, v{V_VV0}, s[{S_SRDA}:{S_SRDA+3}], s{S_T0} offen offset:640")
    a("s_mov_b64 exec, -1")
    a("s_waitcnt vmcnt(0)")
    a(f"v_mfma_f32_32x32x16_bf16 {vr(V_S,16)}, {vr(V_K,4)}, {vr(V_Q1,4)}, 0")
    a(f"v_mfma_f32_32x32x16_bf16 {vr(V_S,16)}, {vr(V_K+4,4)}, {vr(V_Q2,4)}, {vr(V_S,16)}")
    a("s_nop 15")
    a("s_nop 3")
    a(f"v_max3_f32 v{T}, v{S0}, v{S0+1}, v{S0+2}")
    for i in range(3, 15, 2):
        a(f"v_max3_f32 v{T}, v{T}, v{S0+i}, v{S0+i+1}")
    a(f"v_max_f32 v{T}, v{T}, v{S0+15}")
    a(f"v_mov_b32 v{T+1}, v{T}")
    a("s_nop 1")
    a(f"v_permlane32_swap_b32 v{T}, v{T+1}")
    a("s_nop 1")
    a(f"v_max3_f32 v{T}, v{T}, v{T+1}, v{M}")
    a(f"v_sub_f32 v{T+1}, v{M}, v{T}")
    a(f"v_exp_f32 v{T+1}, v{T+1}")
    a(f"v_mov_b32 v{M}, v{T}")
    for r in range(16):
        a(f"v_sub_f32 v{S0+r}, v{S0+r}, v{T}")
        a(f"v_exp_f32 v{S0+r}, v{S0+r}")
    for r in range(16):
        a(f"v_mul_f32 v{V_O+r}, v{V_O+r}, v{T+1}")
    for i in range(8):
        a(f"v_cvt_pk_bf16_f32 v{V_P+i}, v{S0+2*i}, v{S0+2*i+1}")
    a("s_nop 3")
    a(f"v_mfma_f32_32x32x16_bf16 {vr(V_O,16)}, {vr(V_V,4)}, {vr(V_P,4)}, {vr(V_O,16)}")
    a(f"v_mfma_f32_32x32x16_bf16 {vr(V_O,16)}, {vr(V_V+4,4)}, {vr(V_P+4,4)}, {vr(V_O,16)}")
    a("s_nop 15")
    a("s_nop 3")
    a(f"s_add_u32 s{S_T0}, s{S_T0}, 2560")
    a(f"s_sub_u32 s{S_T1}, s{S_T1}, 1")
    a(f"s_cmp_lg_u32 s{S_T1}, 0")
    a("s_cbranch_scc1 k2_slow")
    a.label("k2_norm")
    a("v_cmp_gt_u32 vcc, 32, v1")
    a("s_nop 1")
    a(f"v_cndmask_b32 v{T}, v{V_O+8}, v{V_O+12}, vcc")
    a(f"v_rcp_f32 v{T+1}, v{T}")
    a("s_nop 0")
    for r in range(12):
        a(f"v_mul_f32 v{V_O+r}, v{V_O+r}, v{T+1}")
    for r in range(6):
        a(f"v_cvt_pk_bf16_f32 v{V_P+r}, v{V_O+2*r}, v{V_O+2*r+1}")
    a(f"v_and_b32 v{T}, 31, v1")
    a(f"v_mul_u32_u24 v{T}, 1280, v{T}")
    a(f"v_lshrrev_b32 v{T+1}, 5, v1")
    a(f"v_lshl_add_u32 v{T}, v{T+1}, 3, v{T}")
    a(f"s_mul_i32 s{S_T0}, s{S_QT}, {32*1280}")
    a(f"s_mul_i32 s{S_T1}, s{S_HEAD}, 40")
    a(f"s_add_u32 s{S_T0}, s{S_T0}, s{S_T1}")
    a(f"buffer_store_dwordx2 v[{V_P}:{V_P+1}], v{T}, s[{S_SRDO}:{S_SRDO+3}], s{S_T0} offen")
    a(f"buffer_store_dwordx2 v[{V_P+2}:{V_P+3}], v{T}, s[{S_SRDO}:{S_SRDO+3}], s{S_T0} offen offset:16")
    a("s_mov_b64 exec, vcc")
    a(f"buffer_store_dwordx2 v[{V_P+4}:{V_P+5}], v{T}, s[{S_SRDO}:{S_SRDO+3}], s{S_T0} offen offset:32")
    a("s_endpgm")

    c = GemmCfg(4, 2, 1, 1, 3, 27, 3456, 1280)
    T = c.V_T
    a.label("k2_ffn")
    a(f"s_lshr_b32 s{S_WM}, s{S_WAVE}, 1")
    a(f"s_and_b32 s{S_WN}, s{S_WAVE}, 1")
    a(f"s_sub_u32 s{S_T0}, s2, {K2_ATT}")
    a(f"s_and_b32 s{S_RT}, s{S_T0}, 15")
    a(f"s_lshr_b32 s{S_CT}, s{S_T0}, 4")
    make_srd(a, S_SRDA, P_WS, H_OFF, H_SIZE)
    make_srd(a, S_SRDB, P_W2, 0, 1728 * 1280)
    make_srd(a, S_SRDO, P_WS, B_OFF, O_SIZE)
    a(f"s_lshl_b32 s{S_T0}, s{S_RT}, 7")
    a(f"s_lshl_b32 s{S_T1}, s{S_WAVE}, 3")
    a(f"s_add_u32 s{S_T0}, s{S_T0}, s{S_T1}")
    a(f"s_mul_i32 s{S_AW}, s{S_T0}, 3456")
    a(f"s_lshl_b32 s{S_T0}, s{S_CT}, 7")
    a(f"s_mul_i32 s{S_T1}, s{S_WAVE}, {c.RB * 1280}")
    a(f"s_add_u32 s{S_BW}, s{S_T0}, s{S_T1}")
    gemm_setup_lane(a, c)
    gemm_main(a, c, False)
    a(f"s_lshl_b32 s{S_T1}, s{S_RT}, 7")
    a(f"s_lshl_b32 s{S_T2}, s{S_WM}, 5")
    a(f"s_add_u32 s{S_T1}, s{S_T1}, s{S_T2}")
    a(f"v_and_b32 v{T}, 31, v1")
    a(f"v_add_u32 v{T}, s{S_T1}, v{T}")
    a(f"v_mul_u32_u24 v{T}, 1280, v{T}")
    a(f"v_lshrrev_b32 v{T+1}, 5, v1")
    a(f"v_lshl_add_u32 v{T}, v{T+1}, 3, v{T}")
    a(f"s_lshl_b32 s{S_T0}, s{S_CT}, 7")
    a(f"s_lshl_b32 s{S_T1}, s{S_WN}, 6")
    a(f"s_add_u32 s{S_T0}, s{S_T0}, s{S_T1}")
    for g in range(4):
        r = c.acc(0, 0) + 4 * g
        a(f"v_cvt_pk_bf16_f32 v{T+8}, v{r}, v{r+1}")
        a(f"v_cvt_pk_bf16_f32 v{T+9}, v{r+2}, v{r+3}")
        a(f"buffer_store_dwordx2 v[{T+8}:{T+9}], v{T}, s[{S_SRDO}:{S_SRDO+3}], s{S_T0} offen offset:{16*g}")
        a("s_nop 1")
    a.label("k2_end")
    a("s_endpgm")
    return dict(name="k2_kernel", vgpr=124, sgpr=80, grid=K2_ATT + K2_FFN, block=512, lds=2 * CHUNK)


def gen_k3(a):
    c = GemmCfg(2, 2, 1, 1, 4, 10, 1280, 1280)
    T = c.V_T
    N = 320
    a.label("k3_kernel")
    a(f"s_cmp_ge_u32 s2, {N}")
    a("s_cbranch_scc1 k3_end")
    load_ptrs(a)
    wave_ids(a, c)
    a("s_waitcnt lgkmcnt(0)")
    a(f"s_and_b32 s{S_RT}, s2, 31")
    a(f"s_lshr_b32 s{S_CT}, s2, 5")
    make_srd(a, S_SRDA, P_WS, O_OFF, O_SIZE)
    make_srd(a, S_SRDB, P_WO, 0, 640 * 1280)
    make_srd(a, S_SRDO, P_OUT, 0, O_SIZE)
    make_srd(a, S_SRDX, P_WS, B_OFF, O_SIZE)
    make_srd(a, S_SRDY, P_WS, G_OFF, G_SIZE)
    a(f"s_lshl_b32 s{S_T0}, s{S_RT}, 6")
    a(f"s_lshl_b32 s{S_T1}, s{S_WAVE}, 3")
    a(f"s_add_u32 s{S_T0}, s{S_T0}, s{S_T1}")
    a(f"s_mul_i32 s{S_AW}, s{S_T0}, 1280")
    a(f"s_lshl_b32 s{S_T0}, s{S_CT}, 7")
    a(f"s_mul_i32 s{S_T1}, s{S_WAVE}, {c.RB * 1280}")
    a(f"s_add_u32 s{S_BW}, s{S_T0}, s{S_T1}")
    gemm_setup_lane(a, c)
    E = c.V_END
    a(f"s_lshl_b32 s{S_T1}, s{S_RT}, 6")
    a(f"s_lshl_b32 s{S_T2}, s{S_WM}, 5")
    a(f"s_add_u32 s{S_T1}, s{S_T1}, s{S_T2}")
    a(f"v_and_b32 v{T}, 31, v1")
    a(f"v_add_u32 v{T}, s{S_T1}, v{T}")
    a(f"v_lshlrev_b32 v{T+2}, 2, v{T}")
    a(f"buffer_load_dword v{E+9}, v{T+2}, s[{S_SRDY}:{S_SRDY+3}], 0 offen")
    a(f"v_mul_u32_u24 v{T}, 1280, v{T}")
    a(f"v_lshrrev_b32 v{T+1}, 5, v1")
    a(f"v_lshl_add_u32 v{E+8}, v{T+1}, 3, v{T}")
    a(f"s_lshl_b32 s{S_T4}, s{S_CT}, 7")
    a(f"s_lshl_b32 s{S_T1}, s{S_WN}, 6")
    a(f"s_add_u32 s{S_T4}, s{S_T4}, s{S_T1}")
    for g in range(4):
        a(f"buffer_load_dwordx2 v[{E+2*g}:{E+2*g+1}], v{E+8}, s[{S_SRDX}:{S_SRDX+3}], s{S_T4} offen offset:{16*g}")
    gemm_main(a, c, False)
    a(f"v_mov_b32 v{T}, v{E+8}")
    a(f"v_mov_b32 v{T+3}, v{E+9}")
    a(f"s_mov_b32 s{S_T0}, s{S_T4}")
    a("s_waitcnt vmcnt(0)")
    a(f"v_sub_f32 v{T+4}, 1.0, v{T+3}")
    a(f"v_cvt_pk_bf16_f32 v{T+4}, v{T+4}, v{T+4}")
    a(f"v_lshlrev_b32 v{T+4}, 16, v{T+4}")
    a(f"s_mov_b32 s{S_T1}, 0xffff0000")
    for g in range(4):
        r = c.acc(0, 0) + 4 * g
        for p in range(2):
            x0, x1 = r + 2 * p, r + 2 * p + 1
            bb = E + 2 * g + p
            a(f"v_cvt_pk_bf16_f32 v{T+5}, v{x0}, v{x1}")
            a(f"v_lshlrev_b32 v{x0}, 16, v{T+5}")
            a(f"v_and_b32 v{x1}, s{S_T1}, v{T+5}")
            a(f"v_mul_f32 v{x0}, v{x0}, v{T+3}")
            a(f"v_mul_f32 v{x1}, v{x1}, v{T+3}")
            a(f"v_cvt_pk_bf16_f32 v{T+5}, v{x0}, v{x1}")
            a(f"v_lshlrev_b32 v{T+6}, 16, v{bb}")
            a(f"v_and_b32 v{T+7}, s{S_T1}, v{bb}")
            a(f"v_mul_f32 v{T+6}, v{T+6}, v{T+4}")
            a(f"v_mul_f32 v{T+7}, v{T+7}, v{T+4}")
            a(f"v_cvt_pk_bf16_f32 v{T+6}, v{T+6}, v{T+7}")
            a(f"v_lshlrev_b32 v{x0}, 16, v{T+5}")
            a(f"v_and_b32 v{x1}, s{S_T1}, v{T+5}")
            a(f"v_lshlrev_b32 v{T+5}, 16, v{T+6}")
            a(f"v_and_b32 v{T+6}, s{S_T1}, v{T+6}")
            a(f"v_add_f32 v{x0}, v{x0}, v{T+5}")
            a(f"v_add_f32 v{x1}, v{x1}, v{T+6}")
            a(f"v_cvt_pk_bf16_f32 v{T+8+p}, v{x0}, v{x1}")
        a(f"buffer_store_dwordx2 v[{T+8}:{T+9}], v{T}, s[{S_SRDO}:{S_SRDO+3}], s{S_T0} offen offset:{16*g}")
        a("s_nop 1")
    a.label("k3_end")
    a("s_endpgm")
    return dict(name="k3_kernel", vgpr=c.V_END + 10, sgpr=64, grid=N, block=256, lds=4 * c.STG)


KERNELS = [gen_k2, gen_k3]
```

```python
import math
from gen import *

K2_ATT = 256
K2_FFN = 160
CHUNK = 40960

V_DMA = 2
V_KE0 = 3
V_VV0 = 4
V_KM1 = 5
V_KE1 = 6
V_VV1 = 7
V_TMP = 8
V_Q1 = 12
V_Q2 = 16
V_K = 20
V_V = 36
V_P = 52
V_NM = 60
V_S = 76
V_O = 108
S_HEAD = 37
S_QT = 38
S_VMASK = 62


S_ST = 64
def stamp(a, i):
    if 'fstamp' in DBG:
        a(f"s_memrealtime s[{S_ST+2*i}:{S_ST+2*i+1}]")
def stamp_out(a, n, idx_sgpr, T):
    if 'fstamp' not in DBG: return
    a("s_waitcnt lgkmcnt(0)")
    make_srd(a, S_SRDY, P_WS, 0x2000000, 0x100000)
    a(f"s_lshl_b32 s{S_T5}, s{idx_sgpr}, 6")
    a(f"v_mov_b32 v{T+2}, s{S_T5}")
    a("s_mov_b64 exec, 1")
    for i in range(n):
        a(f"v_mov_b32 v{T+3}, s{S_ST+2*i}")
        a(f"buffer_store_dword v{T+3}, v{T+2}, s[{S_SRDY}:{S_SRDY+3}], 0 offen offset:{4*i}")
    a("s_mov_b64 exec, -1")


def att_dma(a, c):
    buf = c % 2
    for i in range(5):
        a(f"s_add_u32 m0, s{S_MW}, {buf*CHUNK + i*8192}")
        a(f"s_add_u32 s{S_T0}, s{S_AW}, {c*CHUNK + i*8192}")
        a(f"buffer_load_dwordx4 v{V_DMA}, s[{S_SRDA}:{S_SRDA+3}], s{S_T0} offen lds")


def att_read_k(a, t):
    kb = t % 2
    buf = (t // 16) % 2
    off = (t % 16) * 2560
    a(f"ds_read_b128 {vr(V_K + 8*kb, 4)}, v{V_DMA if buf == 0 else V_KM1} offset:{off}")
    a(f"ds_read_b32 v{V_K + 8*kb + 4}, v{V_KE0 if buf == 0 else V_KE1} offset:{off}")


def att_read_v(a, t):
    vb = t % 2
    buf = (t // 16) % 2
    off = (t % 16) * 2560
    a(f"s_mov_b64 exec, s[{S_VMASK}:{S_VMASK+1}]")
    for m in range(2):
        a(f"ds_read_b128 {vr(V_V + 8*vb + 4*m, 4)}, v{V_VV0 if buf == 0 else V_VV1} offset:{off + m*640}")
    a("s_mov_b64 exec, -1")


def att_qk(a, t, which, cin=None):
    kb = t % 2
    S = vr(V_S + 16 * (t % 2), 16)
    if which == 0:
        c = cin if cin is not None else vr(V_NM, 16)
        a(f"v_mfma_f32_32x32x16_bf16 {S}, {vr(V_K + 8*kb, 4)}, {vr(V_Q1, 4)}, {c}")
    else:
        a(f"v_mfma_f32_32x32x16_bf16 {S}, {vr(V_K + 8*kb + 4, 4)}, {vr(V_Q2, 4)}, {S}")


def att_pv(a, t, m):
    vb = t % 2
    O = vr(V_O, 16)
    cin = "0" if (t == 0 and m == 0) else O
    a(f"v_mfma_f32_32x32x16_bf16 {O}, {vr(V_V + 8*vb + 4*m, 4)}, {vr(V_P + 4*m, 4)}, {cin}")


def gen_k2(a):
    T = V_TMP
    a.label("k2_kernel")
    tl_start(a)
    a(f"s_cmp_ge_u32 s2, {K2_ATT + K2_FFN}")
    a("s_cbranch_scc1 k2_end")
    load_ptrs(a)
    a("v_lshrrev_b32 v1, 6, v0")
    a("s_nop 0")
    a(f"v_readfirstlane_b32 s{S_WAVE}, v1")
    a("s_waitcnt lgkmcnt(0)")
    a(f"s_cmp_ge_u32 s2, {K2_ATT}")
    a("s_cbranch_scc1 k2_end" if 'noffn' in DBG else "s_cbranch_scc1 k2_ffn")
    if 'noatt' in DBG: a("s_endpgm")
    if 'aprio' in DBG: a("s_setprio 3")
    a(f"s_and_b32 s{S_T0}, s2, 7")
    a(f"s_lshl_b32 s{S_T0}, s{S_T0}, 2")
    a(f"s_lshr_b32 s{S_T1}, s2, 3")
    a(f"s_and_b32 s{S_T1}, s{S_T1}, 3")
    a(f"s_add_u32 s{S_HEAD}, s{S_T0}, s{S_T1}")
    a(f"s_lshr_b32 s{S_T0}, s2, 5")
    a(f"s_lshl_b32 s{S_T0}, s{S_T0}, 3")
    a(f"s_add_u32 s{S_QT}, s{S_T0}, s{S_WAVE}")
    make_srd(a, S_SRDA, P_WS, KV_OFF, KV_SIZE)
    make_srd(a, S_SRDB, P_WS, QF_OFF, QF_SIZE)
    make_srd(a, S_SRDO, P_WS, O_OFF, O_SIZE)
    a("v_and_b32 v1, 63, v0")
    a(f"v_lshlrev_b32 v{V_DMA}, 4, v1")
    a(f"v_and_b32 v{T}, 31, v1")
    a(f"v_lshrrev_b32 v{T+1}, 5, v1")
    a(f"v_lshlrev_b32 v{V_KE0}, 3, v{T}")
    a(f"v_lshl_add_u32 v{V_KE0}, v{T+1}, 2, v{V_KE0}")
    a(f"v_add_u32 v{V_KE0}, 0x400, v{V_KE0}")
    a(f"v_mul_u32_u24 v{V_VV0}, 320, v{T+1}")
    a(f"v_lshl_add_u32 v{V_VV0}, v{T}, 4, v{V_VV0}")
    a(f"v_add_u32 v{V_VV0}, 1280, v{V_VV0}")
    a(f"v_add_u32 v{V_KM1}, {CHUNK}, v{V_DMA}")
    a(f"v_add_u32 v{V_KE1}, {CHUNK}, v{V_KE0}")
    a(f"v_add_u32 v{V_VV1}, {CHUNK}, v{V_VV0}")
    a(f"s_lshl_b32 s{S_T0}, s{S_HEAD}, 6")
    a(f"s_add_u32 s{S_T0}, s{S_T0}, s{S_QT}")
    a(f"s_mul_i32 s{S_T0}, s{S_T0}, 1280")
    a(f"buffer_load_dwordx4 {vr(V_Q1,4)}, v{V_DMA}, s[{S_SRDB}:{S_SRDB+3}], s{S_T0} offen")
    a(f"buffer_load_dword v{V_Q2}, v{V_KE0}, s[{S_SRDB}:{S_SRDB+3}], s{S_T0} offen")
    a(f"s_lshl_b32 s{S_MW}, s{S_WAVE}, 10")
    a(f"s_mul_i32 s{S_AW}, s{S_HEAD}, {64*2560}")
    a(f"s_add_u32 s{S_AW}, s{S_AW}, s{S_MW}")
    att_dma(a, 0)
    att_dma(a, 1)
    for r in (V_Q2 + 1, V_Q2 + 2, V_Q2 + 3, V_K + 5, V_K + 6, V_K + 7, V_K + 13, V_K + 14, V_K + 15):
        a(f"v_mov_b32 v{r}, 0")
    a(f"v_cmp_eq_u32 vcc, 20, v{T}")
    a(f"v_cmp_eq_u32 s[{S_EX0}:{S_EX0+1}], 24, v{T}")
    a(f"s_or_b64 vcc, vcc, s[{S_EX0}:{S_EX0+1}]")
    a(f"v_mov_b32 v{T+2}, 0x3f803f80")
    a("s_nop 1")
    a(f"v_cndmask_b32 v{T+2}, 0, v{T+2}, vcc")
    for r in range(16):
        a(f"v_mov_b32 v{V_V + r}, v{T+2}")
    a(f"s_mov_b32 s{S_VMASK}, 0x000fffff")
    a(f"s_mov_b32 s{S_VMASK+1}, 0x000fffff")
    if 'stamp' in DBG:
        a("s_memtime s[64:65]")
    a("s_waitcnt vmcnt(5)")
    a("s_barrier")
    if 'stamp' in DBG:
        a("s_memtime s[66:67]")
    att_read_k(a, 0)
    att_read_k(a, 1)
    att_read_v(a, 0)
    a("s_waitcnt lgkmcnt(4)")
    att_qk(a, 0, 0, "0")
    att_qk(a, 0, 1)
    a("s_nop 15")
    a("s_nop 3")
    S0 = V_S
    a(f"v_max3_f32 v{T}, v{S0}, v{S0+1}, v{S0+2}")
    for i in range(3, 15, 2):
        a(f"v_max3_f32 v{T}, v{T}, v{S0+i}, v{S0+i+1}")
    a(f"v_max_f32 v{T}, v{T}, v{S0+15}")
    a(f"v_mov_b32 v{T+1}, v{T}")
    a("s_nop 1")
    a(f"v_permlane32_swap_b32 v{T}, v{T+1}")
    a("s_nop 1")
    a(f"v_max_f32 v{T}, v{T}, v{T+1}")
    a(f"v_sub_f32 v{T}, 0, v{T}")
    for r in range(16):
        a(f"v_mov_b32 v{V_NM + r}, v{T}")
    a("s_nop 1")
    att_qk(a, 0, 0)
    att_qk(a, 0, 1)
    a("s_nop 7")
    NT = 64
    for t in range(NT):
        S = V_S + 16 * (t % 2)
        e = lambda i: a(f"v_exp_f32 v{S+i}, v{S+i}")
        cv = lambda i: a(f"v_cvt_pk_bf16_f32 v{V_P+i}, v{S+2*i}, v{S+2*i+1}")
        if t in (16, 32):
            a("s_barrier")
            att_dma(a, t // 16 + 1)
        if t + 1 < NT:
            a("s_waitcnt lgkmcnt(2)")
            att_qk(a, t + 1, 0)
        for i in range(4):
            e(i)
        if t > 0:
            att_pv(a, t - 1, 1)
        nout = 0
        if t in (14, 30, 46):
            a("s_waitcnt vmcnt(0)")
            a("s_barrier")
        if t + 2 < NT:
            att_read_k(a, t + 2)
            nout += 2
        if t + 1 < NT:
            att_read_v(a, t + 1)
            nout += 2
        for i in range(4, 8):
            e(i)
        if t + 1 < NT:
            att_qk(a, t + 1, 1)
        for i in range(4):
            cv(i)
        e(8)
        e(9)
        a(f"s_waitcnt lgkmcnt({nout})")
        att_pv(a, t, 0)
        for i in range(10, 16):
            e(i)
        for i in range(4, 8):
            cv(i)
    a("s_nop 1")
    att_pv(a, NT - 1, 1)
    a("s_nop 15")
    a("s_nop 3")
    if 'stamp' in DBG:
        a("s_memtime s[68:69]")
        a("s_memrealtime s[70:71]")
        a("s_waitcnt lgkmcnt(0)")
        make_srd(a, S_SRDX, P_DBG, 0, 256)
        a("s_sub_u32 s64, s66, s64")
        a("s_sub_u32 s65, s68, s66")
        a(f"v_mov_b32 v{T}, s64")
        a(f"v_mov_b32 v{T+1}, s65")
        a(f"s_lshl_b32 s66, s{S_WAVE}, 3")
        a(f"v_mov_b32 v{T+2}, s66")
        a("s_cmp_eq_u32 s2, 5")
        a("s_cbranch_scc0 k2_nostamp")
        a(f"buffer_store_dwordx2 v[{T}:{T+1}], v{T+2}, s[{S_SRDX}:{S_SRDX+3}], 0 offen")
        a.label("k2_nostamp")
    a("v_cmp_gt_u32 vcc, 32, v1")
    a(f"s_mov_b32 s{S_T0}, 0x5f800000")
    a(f"s_movk_i32 s{S_T1}, 0x207")
    a(f"v_cndmask_b32 v{T}, v{V_O+8}, v{V_O+12}, vcc")
    a(f"v_cmp_nlt_f32 vcc, v{T}, s{S_T0}")
    for r in range(16):
        a(f"v_cmp_class_f32 s[{S_EX0}:{S_EX0+1}], v{V_O+r}, s{S_T1}")
        a(f"s_or_b64 vcc, vcc, s[{S_EX0}:{S_EX0+1}]")
    if 'forcefb' not in DBG:
        a("s_cbranch_vccz k2_norm")
    M = V_NM
    a(f"v_mov_b32 v{M}, 0xff800000")
    for r in range(16):
        a(f"v_mov_b32 v{V_O+r}, 0")
    a(f"s_mul_i32 s{S_T0}, s{S_HEAD}, {64*2560}")
    a(f"s_mov_b32 s{S_T1}, 64")
    a.label("k2_slow")
    a(f"buffer_load_dwordx4 {vr(V_K,4)}, v{V_DMA}, s[{S_SRDA}:{S_SRDA+3}], s{S_T0} offen")
    a(f"buffer_load_dword v{V_K+4}, v{V_KE0}, s[{S_SRDA}:{S_SRDA+3}], s{S_T0} offen")
    a(f"s_mov_b64 exec, s[{S_VMASK}:{S_VMASK+1}]")
    a(f"buffer_load_dwordx4 {vr(V_V,4)}, v{V_VV0}, s[{S_SRDA}:{S_SRDA+3}], s{S_T0} offen")
    a(f"buffer_load_dwordx4 {vr(V_V+4,4)}, v{V_VV0}, s[{S_SRDA}:{S_SRDA+3}], s{S_T0} offen offset:640")
    a("s_mov_b64 exec, -1")
    a("s_waitcnt vmcnt(0)")
    a(f"v_mfma_f32_32x32x16_bf16 {vr(V_S,16)}, {vr(V_K,4)}, {vr(V_Q1,4)}, 0")
    a(f"v_mfma_f32_32x32x16_bf16 {vr(V_S,16)}, {vr(V_K+4,4)}, {vr(V_Q2,4)}, {vr(V_S,16)}")
    a("s_nop 15")
    a("s_nop 3")
    a(f"v_max3_f32 v{T}, v{S0}, v{S0+1}, v{S0+2}")
    for i in range(3, 15, 2):
        a(f"v_max3_f32 v{T}, v{T}, v{S0+i}, v{S0+i+1}")
    a(f"v_max_f32 v{T}, v{T}, v{S0+15}")
    a(f"v_mov_b32 v{T+1}, v{T}")
    a("s_nop 1")
    a(f"v_permlane32_swap_b32 v{T}, v{T+1}")
    a("s_nop 1")
    a(f"v_max3_f32 v{T}, v{T}, v{T+1}, v{M}")
    a(f"v_sub_f32 v{T+1}, v{M}, v{T}")
    a(f"v_exp_f32 v{T+1}, v{T+1}")
    a(f"v_mov_b32 v{M}, v{T}")
    for r in range(16):
        a(f"v_sub_f32 v{S0+r}, v{S0+r}, v{T}")
        a(f"v_exp_f32 v{S0+r}, v{S0+r}")
    for r in range(16):
        a(f"v_mul_f32 v{V_O+r}, v{V_O+r}, v{T+1}")
    for i in range(8):
        a(f"v_cvt_pk_bf16_f32 v{V_P+i}, v{S0+2*i}, v{S0+2*i+1}")
    a("s_nop 3")
    a(f"v_mfma_f32_32x32x16_bf16 {vr(V_O,16)}, {vr(V_V,4)}, {vr(V_P,4)}, {vr(V_O,16)}")
    a(f"v_mfma_f32_32x32x16_bf16 {vr(V_O,16)}, {vr(V_V+4,4)}, {vr(V_P+4,4)}, {vr(V_O,16)}")
    a("s_nop 15")
    a("s_nop 3")
    a(f"s_add_u32 s{S_T0}, s{S_T0}, 2560")
    a(f"s_sub_u32 s{S_T1}, s{S_T1}, 1")
    a(f"s_cmp_lg_u32 s{S_T1}, 0")
    a("s_cbranch_scc1 k2_slow")
    a.label("k2_norm")
    a("v_cmp_gt_u32 vcc, 32, v1")
    a("s_nop 1")
    a(f"v_cndmask_b32 v{T}, v{V_O+8}, v{V_O+12}, vcc")
    a(f"v_rcp_f32 v{T+1}, v{T}")
    a("s_nop 0")
    for r in range(12):
        a(f"v_mul_f32 v{V_O+r}, v{V_O+r}, v{T+1}")
    for r in range(6):
        a(f"v_cvt_pk_bf16_f32 v{V_P+r}, v{V_O+2*r}, v{V_O+2*r+1}")
    a(f"v_and_b32 v{T}, 31, v1")
    a(f"v_mul_u32_u24 v{T}, 1280, v{T}")
    a(f"v_lshrrev_b32 v{T+1}, 5, v1")
    a(f"v_lshl_add_u32 v{T}, v{T+1}, 3, v{T}")
    a(f"s_mul_i32 s{S_T0}, s{S_QT}, {32*1280}")
    a(f"s_mul_i32 s{S_T1}, s{S_HEAD}, 40")
    a(f"s_add_u32 s{S_T0}, s{S_T0}, s{S_T1}")
    a(f"buffer_store_dwordx2 v[{V_P}:{V_P+1}], v{T}, s[{S_SRDO}:{S_SRDO+3}], s{S_T0} offen sc1")
    a(f"buffer_store_dwordx2 v[{V_P+2}:{V_P+3}], v{T}, s[{S_SRDO}:{S_SRDO+3}], s{S_T0} offen offset:16 sc1")
    a("s_mov_b64 exec, vcc")
    a(f"buffer_store_dwordx2 v[{V_P+4}:{V_P+5}], v{T}, s[{S_SRDO}:{S_SRDO+3}], s{S_T0} offen offset:32 sc1")
    a("s_mov_b64 exec, -1")
    make_srd(a, S_SRDX, P_WS, FL_OFF, FL_SIZE)
    a(f"s_lshr_b32 s{S_T0}, s2, 5")
    a(f"s_lshl_b32 s{S_T0}, s{S_T0}, 8")
    a(f"v_mov_b32 v{T}, s{S_T0}")
    a(f"v_mov_b32 v{T+1}, 1")
    a("s_waitcnt vmcnt(0)")
    a("s_barrier")
    a(f"s_cmp_lg_u32 s{S_WAVE}, 0")
    a("s_cbranch_scc1 k2_asig")
    a("s_mov_b64 exec, 1")
    a(f"buffer_atomic_add v{T+1}, v{T}, s[{S_SRDX}:{S_SRDX+3}], 0 offen")
    a("s_mov_b64 exec, -1")
    a.label("k2_asig")
    tl_end(a, 1)
    a("s_endpgm")

    a.label("k2_ffn")
    stamp(a, 0)
    if 'prio' in DBG: a("s_setprio 3")
    c = GemmCfg(4, 2, 1, 1, 3, 27, 3456, 1280)
    c2 = GemmCfg(4, 2, 1, 1, 3, 10, 1280, 1280)
    T = c.V_T
    GSC = 3 * c.STG
    V_BB = c.V_END
    a(f"s_lshr_b32 s{S_WM}, s{S_WAVE}, 1")
    a(f"s_and_b32 s{S_WN}, s{S_WAVE}, 1")
    a("v_and_b32 v1, 63, v0")
    a(f"s_sub_u32 s{S_T0}, s2, {K2_ATT}")
    a(f"s_and_b32 s{S_T1}, s{S_T0}, 7")
    a(f"s_lshl_b32 s{S_T1}, s{S_T1}, 1")
    a(f"s_bfe_u32 s{S_T4}, s{S_T0}, 0x10003")
    a(f"s_add_u32 s{S_RT}, s{S_T1}, s{S_T4}")
    a(f"s_lshr_b32 s{S_CT}, s{S_T0}, 4")
    make_srd(a, S_SRDA, P_WS, H_OFF, H_SIZE)
    make_srd(a, S_SRDB, P_W2, 0, 1728 * 1280)
    a(f"s_lshl_b32 s{S_T0}, s{S_RT}, 7")
    a(f"s_lshl_b32 s{S_T1}, s{S_WAVE}, 3")
    a(f"s_add_u32 s{S_T0}, s{S_T0}, s{S_T1}")
    a(f"s_mul_i32 s{S_AW}, s{S_T0}, 3456")
    a(f"s_lshl_b32 s{S_T0}, s{S_CT}, 7")
    a(f"s_mul_i32 s{S_T1}, s{S_WAVE}, {c.RB * 1280}")
    a(f"s_add_u32 s{S_BW}, s{S_T0}, s{S_T1}")
    gemm_setup_lane(a, c)

    gemm_main2(a, c, False)
    for g in range(4):
        r = c.acc(0, 0) + 4 * g
        a(f"v_cvt_pk_bf16_f32 v{V_BB+2*g}, v{r}, v{r+1}")
        a(f"v_cvt_pk_bf16_f32 v{V_BB+2*g+1}, v{r+2}, v{r+3}")
    stamp(a, 1)
    make_srd(a, S_SRDA, P_WS, O_OFF, O_SIZE)
    make_srd(a, S_SRDB, P_WO, 0, 640 * 1280)
    make_srd(a, S_SRDO, P_OUT, 0, O_SIZE)
    make_srd(a, S_SRDX, P_WS, FL_OFF, FL_SIZE)
    a(f"s_lshl_b32 s{S_T0}, s{S_RT}, 7")
    a(f"s_lshl_b32 s{S_T1}, s{S_WAVE}, 3")
    a(f"s_add_u32 s{S_T0}, s{S_T0}, s{S_T1}")
    a(f"s_mul_i32 s{S_AW}, s{S_T0}, 1280")
    gemm_setup_lane(a, c2)
    make_srd(a, S_SRDY, P_WS, G_OFF, G_SIZE)
    a(f"v_and_b32 v{T}, 31, v1")
    a(f"v_lshlrev_b32 v{T}, 2, v{T}")
    a(f"s_lshl_b32 s{S_T0}, s{S_RT}, 9")
    a(f"s_lshl_b32 s{S_T1}, s{S_WM}, 7")
    a(f"s_add_u32 s{S_T0}, s{S_T0}, s{S_T1}")
    a(f"buffer_load_dword v64, v{T}, s[{S_SRDY}:{S_SRDY+3}], s{S_T0} offen")
    a("s_barrier")

    def wait_hook():
        a(f"s_cmp_lg_u32 s{S_WAVE}, 0")
        a("s_cbranch_scc1 k2_ogo")
        a(f"s_lshr_b32 s{S_T0}, s{S_RT}, 1")
        a(f"s_lshl_b32 s{S_T0}, s{S_T0}, 8")
        a(f"v_mov_b32 v{T}, s{S_T0}")
        a.label("k2_opoll")
        a(f"buffer_load_dword v{T+1}, v{T}, s[{S_SRDX}:{S_SRDX+3}], 0 offen sc1")
        a("s_waitcnt vmcnt(0)")
        a(f"v_readfirstlane_b32 s{S_T0}, v{T+1}")
        a(f"s_cmp_ge_u32 s{S_T0}, 32")
        a("s_cbranch_scc1 k2_oacq")
        a("s_sleep 8")
        a("s_branch k2_opoll")
        a.label("k2_oacq")
        stamp(a, 2)
        a("buffer_inv sc1")
        a.label("k2_ogo")
        a("s_waitcnt vmcnt(0)")
        a("s_barrier")
        stamp(a, 3)
    gemm_main2(a, c2, False, mid_hook=wait_hook)
    stamp(a, 4)
    a(f"v_and_b32 v{T}, 31, v1")
    a(f"s_lshl_b32 s{S_T2}, s{S_WM}, 5")
    a(f"v_add_u32 v{T}, s{S_T2}, v{T}")
    a(f"v_mov_b32 v{T+3}, v64")
    a(f"s_lshl_b32 s{S_T1}, s{S_RT}, 7")
    a(f"v_add_u32 v{T}, s{S_T1}, v{T}")
    a(f"v_mul_u32_u24 v{T}, 1280, v{T}")
    a(f"v_lshrrev_b32 v{T+1}, 5, v1")
    a(f"v_lshl_add_u32 v{T}, v{T+1}, 3, v{T}")
    a(f"s_lshl_b32 s{S_T0}, s{S_CT}, 7")
    a(f"s_lshl_b32 s{S_T1}, s{S_WN}, 6")
    a(f"s_add_u32 s{S_T0}, s{S_T0}, s{S_T1}")
    a("s_waitcnt lgkmcnt(0)")
    a(f"v_sub_f32 v{T+4}, 1.0, v{T+3}")
    a(f"v_cvt_pk_bf16_f32 v{T+4}, v{T+4}, v{T+4}")
    a(f"v_lshlrev_b32 v{T+4}, 16, v{T+4}")
    a(f"s_mov_b32 s{S_T1}, 0xffff0000")
    for g in range(4):
        r = c2.acc(0, 0) + 4 * g
        for p in range(2):
            x0, x1 = r + 2 * p, r + 2 * p + 1
            bb = V_BB + 2 * g + p
            a(f"v_cvt_pk_bf16_f32 v{T+5}, v{x0}, v{x1}")
            a(f"v_lshlrev_b32 v{x0}, 16, v{T+5}")
            a(f"v_and_b32 v{x1}, s{S_T1}, v{T+5}")
            a(f"v_mul_f32 v{x0}, v{x0}, v{T+3}")
            a(f"v_mul_f32 v{x1}, v{x1}, v{T+3}")
            a(f"v_cvt_pk_bf16_f32 v{T+5}, v{x0}, v{x1}")
            a(f"v_lshlrev_b32 v{T+6}, 16, v{bb}")
            a(f"v_and_b32 v{T+7}, s{S_T1}, v{bb}")
            a(f"v_mul_f32 v{T+6}, v{T+6}, v{T+4}")
            a(f"v_mul_f32 v{T+7}, v{T+7}, v{T+4}")
            a(f"v_cvt_pk_bf16_f32 v{T+6}, v{T+6}, v{T+7}")
            a(f"v_lshlrev_b32 v{x0}, 16, v{T+5}")
            a(f"v_and_b32 v{x1}, s{S_T1}, v{T+5}")
            a(f"v_lshlrev_b32 v{T+5}, 16, v{T+6}")
            a(f"v_and_b32 v{T+6}, s{S_T1}, v{T+6}")
            a(f"v_add_f32 v{x0}, v{x0}, v{T+5}")
            a(f"v_add_f32 v{x1}, v{x1}, v{T+6}")
            a(f"v_cvt_pk_bf16_f32 v{T+8+p}, v{x0}, v{x1}")
        a(f"buffer_store_dwordx2 v[{T+8}:{T+9}], v{T}, s[{S_SRDO}:{S_SRDO+3}], s{S_T0} offen offset:{16*g}")
        a("s_nop 1")
    if 'fstamp' in DBG:
        a("s_waitcnt vmcnt(0)")
        stamp(a, 5)
        a(f"s_cmp_lg_u32 s{S_WAVE}, 0")
        a("s_cbranch_scc1 k2_end")
        a(f"s_sub_u32 s{S_T3}, s2, 256")
        stamp_out(a, 6, S_T3, T)
    tl_end(a, 1)
    a.label("k2_end")
    a("s_endpgm")
    return dict(name="k2_kernel", vgpr=124, sgpr=80, grid=K2_ATT + K2_FFN, block=512, lds=2 * CHUNK)


def gen_k3(a):
    c = GemmCfg(2, 2, 1, 1, 4, 10, 1280, 1280)
    T = c.V_T
    N = 320
    a.label("k3_kernel")
    tl_start(a)
    a(f"s_cmp_ge_u32 s2, {N}")
    a("s_cbranch_scc1 k3_end")
    load_ptrs(a)
    wave_ids(a, c)
    a("s_waitcnt lgkmcnt(0)")
    a(f"s_and_b32 s{S_RT}, s2, 31")
    a(f"s_lshr_b32 s{S_CT}, s2, 5")
    make_srd(a, S_SRDA, P_WS, O_OFF, O_SIZE)
    make_srd(a, S_SRDB, P_WO, 0, 640 * 1280)
    make_srd(a, S_SRDO, P_OUT, 0, O_SIZE)
    make_srd(a, S_SRDX, P_WS, B_OFF, O_SIZE)
    make_srd(a, S_SRDY, P_WS, G_OFF, G_SIZE)
    a(f"s_lshl_b32 s{S_T0}, s{S_RT}, 6")
    a(f"s_lshl_b32 s{S_T1}, s{S_WAVE}, 3")
    a(f"s_add_u32 s{S_T0}, s{S_T0}, s{S_T1}")
    a(f"s_mul_i32 s{S_AW}, s{S_T0}, 1280")
    a(f"s_lshl_b32 s{S_T0}, s{S_CT}, 7")
    a(f"s_mul_i32 s{S_T1}, s{S_WAVE}, {c.RB * 1280}")
    a(f"s_add_u32 s{S_BW}, s{S_T0}, s{S_T1}")
    gemm_setup_lane(a, c)
    E = c.V_END
    a(f"s_lshl_b32 s{S_T1}, s{S_RT}, 6")
    a(f"s_lshl_b32 s{S_T2}, s{S_WM}, 5")
    a(f"s_add_u32 s{S_T1}, s{S_T1}, s{S_T2}")
    a(f"v_and_b32 v{T}, 31, v1")
    a(f"v_add_u32 v{T}, s{S_T1}, v{T}")
    a(f"v_lshlrev_b32 v{T+2}, 2, v{T}")
    a(f"buffer_load_dword v{E+9}, v{T+2}, s[{S_SRDY}:{S_SRDY+3}], 0 offen")
    a(f"v_mul_u32_u24 v{T}, 1280, v{T}")
    a(f"v_lshrrev_b32 v{T+1}, 5, v1")
    a(f"v_lshl_add_u32 v{E+8}, v{T+1}, 3, v{T}")
    a(f"s_lshl_b32 s{S_T4}, s{S_CT}, 7")
    a(f"s_lshl_b32 s{S_T1}, s{S_WN}, 6")
    a(f"s_add_u32 s{S_T4}, s{S_T4}, s{S_T1}")
    for g in range(4):
        a(f"buffer_load_dwordx2 v[{E+2*g}:{E+2*g+1}], v{E+8}, s[{S_SRDX}:{S_SRDX+3}], s{S_T4} offen offset:{16*g}")
    gemm_main2(a, c, False)
    a(f"v_mov_b32 v{T}, v{E+8}")
    a(f"v_mov_b32 v{T+3}, v{E+9}")
    a(f"s_mov_b32 s{S_T0}, s{S_T4}")
    a("s_waitcnt vmcnt(0)")
    a(f"v_sub_f32 v{T+4}, 1.0, v{T+3}")
    a(f"v_cvt_pk_bf16_f32 v{T+4}, v{T+4}, v{T+4}")
    a(f"v_lshlrev_b32 v{T+4}, 16, v{T+4}")
    a(f"s_mov_b32 s{S_T1}, 0xffff0000")
    for g in range(4):
        r = c.acc(0, 0) + 4 * g
        for p in range(2):
            x0, x1 = r + 2 * p, r + 2 * p + 1
            bb = E + 2 * g + p
            a(f"v_cvt_pk_bf16_f32 v{T+5}, v{x0}, v{x1}")
            a(f"v_lshlrev_b32 v{x0}, 16, v{T+5}")
            a(f"v_and_b32 v{x1}, s{S_T1}, v{T+5}")
            a(f"v_mul_f32 v{x0}, v{x0}, v{T+3}")
            a(f"v_mul_f32 v{x1}, v{x1}, v{T+3}")
            a(f"v_cvt_pk_bf16_f32 v{T+5}, v{x0}, v{x1}")
            a(f"v_lshlrev_b32 v{T+6}, 16, v{bb}")
            a(f"v_and_b32 v{T+7}, s{S_T1}, v{bb}")
            a(f"v_mul_f32 v{T+6}, v{T+6}, v{T+4}")
            a(f"v_mul_f32 v{T+7}, v{T+7}, v{T+4}")
            a(f"v_cvt_pk_bf16_f32 v{T+6}, v{T+6}, v{T+7}")
            a(f"v_lshlrev_b32 v{x0}, 16, v{T+5}")
            a(f"v_and_b32 v{x1}, s{S_T1}, v{T+5}")
            a(f"v_lshlrev_b32 v{T+5}, 16, v{T+6}")
            a(f"v_and_b32 v{T+6}, s{S_T1}, v{T+6}")
            a(f"v_add_f32 v{x0}, v{x0}, v{T+5}")
            a(f"v_add_f32 v{x1}, v{x1}, v{T+6}")
            a(f"v_cvt_pk_bf16_f32 v{T+8+p}, v{x0}, v{x1}")
        a(f"buffer_store_dwordx2 v[{T+8}:{T+9}], v{T}, s[{S_SRDO}:{S_SRDO+3}], s{S_T0} offen offset:{16*g}")
        a("s_nop 1")
    tl_end(a, 2)
    a.label("k3_end")
    a("s_endpgm")
    return dict(name="k3_kernel", vgpr=c.V_END + 10, sgpr=64, grid=N, block=256, lds=4 * c.STG)


KERNELS = [gen_k2]
```

```python
import math
from gen import *

K1_WGS = 256
K1_S = 3
ASZ = 128 * 128
STG = 49152
QOFF = ASZ
V_DA = 2
V_DB = 3
V_DP = 8
V_AA = 9
V_BQ = 21
V_BP = 24
V_T = 30
V_FR = 44
V_ACC = 116
KST = 10
S_PW = 62
S_SRDP = 64
S_ST = 68


def stamp(a, i):
    if 'kstamp' in DBG:
        a(f"{'s_memtime' if 'cyc' in DBG else 's_memrealtime'} s[{S_ST+2*i}:{S_ST+2*i+1}]")


def stamp_out(a, n):
    if 'kstamp' not in DBG: return
    T = V_T
    a("s_waitcnt vmcnt(0) lgkmcnt(0)")
    stamp(a, n - 1)
    a("s_waitcnt lgkmcnt(0)")
    make_srd(a, S_SRDY, P_WS, 0x2000000, 0x100000)
    a(f"s_lshl_b32 s{S_T5}, s2, 2")
    a(f"s_add_u32 s{S_T5}, s{S_T5}, s{S_WAVE}")
    a(f"s_lshl_b32 s{S_T5}, s{S_T5}, 6")
    a(f"v_mov_b32 v{T+2}, s{S_T5}")
    a("s_mov_b64 exec, 1")
    for i in range(n):
        a(f"v_mov_b32 v{T+3}, s{S_ST+2*i}")
        a(f"buffer_store_dword v{T+3}, v{T+2}, s[{S_SRDY}:{S_SRDY+3}], 0 offen offset:{4*i}")
    a("s_mov_b64 exec, -1")


class Kind:
    def __init__(self, hasq, npan, swapq):
        self.hasq, self.npan, self.swapq = hasq, npan, swapq
        self.poff = ASZ + (20480 if hasq else 0)
        self.units = [('q', tn) for tn in range(5)] if hasq else []
        self.units += [('p', p, j) for p in range(npan) for j in range(2)]
        self.nu = len(self.units)
        self.per = 4 + (5 if hasq else 0) + 2 * npan
        self.nr = 1 + 2 * self.nu


def dma_list(k, t):
    st = t % K1_S
    out = []
    if 'nodma' in DBG: return out
    for i in range(4):
        out.append([f"s_add_u32 m0, s{S_MW}, {st * STG + i * 4096}",
                    f"s_add_u32 s{S_T0}, s{S_AW}, {i * 32 * 1280 + t * 128}",
                    f"buffer_load_dwordx4 v{V_DA}, s[{S_SRDA}:{S_SRDA+3}], s{S_T0} offen lds"])
    if k.hasq:
        for i in range(5):
            out.append([f"s_add_u32 m0, s{S_MW}, {st * STG + QOFF + i * 4096}",
                        f"s_add_u32 s{S_T0}, s{S_BW}, {t * 64 * 3840}",
                        f"buffer_load_dwordx4 v{V_DB+i}, s[{S_SRDB}:{S_SRDB+3}], s{S_T0} offen lds"])
    for p in range(k.npan):
        for i in range(2):
            out.append([f"s_add_u32 m0, s{S_MW}, {st * STG + k.poff + p * 8192 + i * 4096}",
                        f"s_add_u32 s{S_T0}, s{S_PW}, {(t * 64 + i * 32) * 3456 + p * 128}",
                        f"buffer_load_dwordx4 v{V_DP}, s[{S_SRDP}:{S_SRDP+3}], s{S_T0} offen lds"])
    return out


def rd(k, t, ks, u):
    st = t % K1_S
    if 'noreads' in DBG: return []
    fb = V_FR + (ks % 2) * 36
    if u == 'A':
        return [f"ds_read_b128 {vr(fb, 4)}, v{V_AA + st*4 + ks}"]
    un = k.units[u]
    if un[0] == 'q':
        return [f"ds_read_b64_tr_b16 {vr(fb + 4 + u*4 + w*2, 2)}, v{V_BQ+st} offset:{(ks*16 + 4*w)*320 + un[1]*64}" for w in range(2)]
    return [f"ds_read_b64_tr_b16 {vr(fb + 4 + u*4 + w*2, 2)}, v{V_BP+st*2+un[2]} offset:{k.poff + un[1]*8192 + (ks*16 + 4*w)*128}" for w in range(2)]


def mfma(k, ks, u, first):
    fb = V_FR + (ks % 2) * 36
    A = vr(fb, 4)
    B = vr(fb + 4 + u * 4, 4)
    acc = vr(V_ACC + u * 16, 16)
    cin = "0" if first else acc
    if k.swapq and k.units[u][0] == 'q':
        return f"v_mfma_f32_32x32x16_bf16 {acc}, {A}, {B}, {cin}"
    return f"v_mfma_f32_32x32x16_bf16 {acc}, {B}, {A}, {cin}"


def k1_main(a, k):
    per = 0 if 'nodma' in DBG else k.per
    gate = k.hasq and not k.swapq
    T = V_T
    GW = V_FR
    GX = V_FR + 20
    if gate:
        a(f"s_cmp_lg_u32 s{S_CT}, 0")
        a("s_cbranch_scc1 k1_ng1")
        make_srd(a, S_SRDY, P_GW, 0, 1280)
        a(f"v_and_b32 v{T}, 15, v1")
        a(f"v_lshrrev_b32 v{T+1}, 4, v1")
        a(f"v_lshlrev_b32 v{T}, 4, v{T}")
        for i in range(5):
            a(f"buffer_load_dwordx4 v[{GW+4*i}:{GW+4*i+3}], v{T}, s[{S_SRDY}:{S_SRDY+3}], 0 offen offset:{i*256}")
        a(f"v_mul_u32_u24 v{T+1}, 1280, v{T+1}")
        a(f"v_add_u32 v{T}, v{T}, v{T+1}")
        a(f"s_lshl_b32 s{S_T0}, s{S_RT}, 7")
        a(f"s_lshl_b32 s{S_T1}, s{S_WAVE}, 5")
        a(f"s_add_u32 s{S_T0}, s{S_T0}, s{S_T1}")
        a(f"s_mul_i32 s{S_T0}, s{S_T0}, 1280")
        for p in range(8):
            for i in range(5):
                a(f"buffer_load_dwordx4 v[{GX+20*p+4*i}:{GX+20*p+4*i+3}], v{T}, s[{S_SRDA}:{S_SRDA+3}], s{S_T0} offen offset:{i*256}")
            if p < 7:
                a(f"s_add_u32 s{S_T0}, s{S_T0}, {4*1280}")
        a("s_waitcnt vmcnt(20)")
        a.label("k1_ng1")
    for t in range(K1_S):
        for g in dma_list(k, t):
            for l in g: a(l)
    if gate:
        a(f"s_cmp_lg_u32 s{S_CT}, 0")
        a("s_cbranch_scc1 k1_ng2")
        a(f"s_waitcnt vmcnt({K1_S * per})")
        for p in range(8):
            a(f"v_mov_b32 v{T+p}, 0")
        for i in range(20):
            for p in range(8):
                a(f"v_dot2_f32_bf16 v{T+p}, v{GW+i}, v{GX+20*p+i}, v{T+p}")
        a("s_nop 3")
        for sh in (8, 4, 2, 1):
            a("s_nop 1")
            for p in range(8):
                a(f"v_add_f32_dpp v{T+p}, v{T+p}, v{T+p} row_ror:{sh} row_mask:0xf bank_mask:0xf")
        a("s_nop 1")
        for p in range(8):
            a(f"v_cvt_pk_bf16_f32 v{T+p}, v{T+p}, v{T+p}")
            a(f"v_lshlrev_b32 v{T+p}, 16, v{T+p}")
            a(f"v_mul_f32 v{T+p}, {f32bits(-math.log2(math.e))}, v{T+p}")
            a(f"v_exp_f32 v{T+p}, v{T+p}")
        a("s_nop 0")
        for p in range(8):
            a(f"v_add_f32 v{T+p}, 1.0, v{T+p}")
            a(f"v_rcp_f32 v{T+p}, v{T+p}")
        a("s_nop 0")
        for p in range(8):
            a(f"v_cvt_pk_bf16_f32 v{T+p}, v{T+p}, v{T+p}")
            a(f"v_lshlrev_b32 v{T+p}, 16, v{T+p}")
        make_srd(a, S_SRDY, P_WS, G_OFF, G_SIZE)
        a(f"v_lshrrev_b32 v{T+8}, 4, v1")
        a(f"v_lshlrev_b32 v{T+8}, 2, v{T+8}")
        a(f"s_lshl_b32 s{S_T0}, s{S_RT}, 9")
        a(f"s_lshl_b32 s{S_T1}, s{S_WAVE}, 7")
        a(f"s_add_u32 s{S_T0}, s{S_T0}, s{S_T1}")
        a(f"v_and_b32 v{T+9}, 15, v1")
        a(f"v_cmp_eq_u32 vcc, 0, v{T+9}")
        a("s_mov_b64 exec, vcc")
        for p in range(8):
            a(f"buffer_store_dword v{T+p}, v{T+8}, s[{S_SRDY}:{S_SRDY+3}], s{S_T0} offen offset:{16*p}")
        a("s_mov_b64 exec, -1")
        a.label("k1_ng2")
    a(f"s_waitcnt vmcnt({(K1_S - 1) * per})")
    a("s_barrier")
    stamp(a, 1)
    for ks in range(2):
        for w in ['A'] + list(range(k.nu)):
            for l in rd(k, 0, ks, w): a(l)
    for t in range(KST):
        dma = dma_list(k, t + K1_S) if t + K1_S < KST else []
        for ks in range(4):
            nt, nks = (t, ks + 2) if ks < 2 else (t + 1, ks - 2)
            has = nt < KST
            last = (t == KST - 1 and ks == 3)
            a(f"s_waitcnt lgkmcnt({0 if last else min(k.nr, 15)})")
            pend = []
            for u in range(k.nu):
                a(mfma(k, ks, u, t == 0 and ks == 0))
                if has:
                    pend += rd(k, nt, nks, u)
                if ks == 2 and has and u == 0:
                    continue
                if ks == 2 and has and u == 1:
                    a(f"s_waitcnt vmcnt({per * min(K1_S - 2, KST - 2 - t)}) lgkmcnt(0)")
                    a("s_barrier")
                    if t in (0, 4): stamp(a, {0: 2, 4: 3}[t])
                for l in pend: a(l)
                pend = []
                if ks >= 2 and dma and not (ks == 2 and u < 1):
                    for l in dma.pop(0): a(l)
            if has:
                for l in rd(k, nt, nks, 'A'): a(l)
        assert not dma
    a("s_nop 15")
    a("s_nop 3")
    stamp(a, 4)
    if 'noepi' in DBG: a("s_endpgm")


def h_epilogue(a, k, lds_base):
    T = V_T
    u0 = 5 if k.hasq else 0
    make_srd(a, S_SRDX, P_WS, H_OFF, H_SIZE)
    a(f"s_mul_i32 s{S_T0}, s{S_WAVE}, {k.npan * 4608}")
    a(f"s_add_u32 s{S_T0}, s{S_T0}, {lds_base}")
    a(f"v_and_b32 v{T}, 31, v1")
    a(f"v_mul_u32_u24 v{T}, 144, v{T}")
    a(f"v_lshrrev_b32 v{T+1}, 5, v1")
    a(f"v_lshl_add_u32 v{T}, v{T+1}, 3, v{T}")
    a(f"v_add_u32 v{T}, s{S_T0}, v{T}")
    a(f"v_lshrrev_b32 v{T+1}, 3, v1")
    a(f"v_and_b32 v{T+2}, 7, v1")
    a(f"v_mul_u32_u24 v{T+3}, 144, v{T+1}")
    a(f"v_lshl_add_u32 v{T+3}, v{T+2}, 4, v{T+3}")
    a(f"v_add_u32 v{T+3}, s{S_T0}, v{T+3}")
    a(f"v_mul_u32_u24 v{T+4}, 3456, v{T+1}")
    a(f"v_lshl_add_u32 v{T+4}, v{T+2}, 4, v{T+4}")
    kk = 0
    for p in range(k.npan):
        for j in range(2):
            for g in range(4):
                r = V_ACC + (u0 + p * 2 + j) * 16 + 4 * g
                dd = T + 6 + 2 * (kk % 2)
                kk += 1
                for i in range(4):
                    a(f"v_max_f32 v{r+i}, 0, v{r+i}")
                a(f"v_cvt_pk_bf16_f32 v{dd}, v{r}, v{r+1}")
                a(f"v_cvt_pk_bf16_f32 v{dd+1}, v{r+2}, v{r+3}")
                a(f"ds_write_b64 v{T}, v[{dd}:{dd+1}] offset:{p*4608 + (j*32 + 8*g)*2}")
    a("s_waitcnt lgkmcnt(0)")
    n = 4 * k.npan
    for p in range(k.npan):
        for i in range(4):
            a(f"ds_read_b128 {vr(V_FR + 4*(p*4+i), 4)}, v{T+3} offset:{p*4608 + i*8*144}")
    a(f"s_lshl_b32 s{S_T0}, s{S_RT}, 7")
    a(f"s_lshl_b32 s{S_T1}, s{S_WAVE}, 5")
    a(f"s_add_u32 s{S_T0}, s{S_T0}, s{S_T1}")
    a(f"s_mul_i32 s{S_T0}, s{S_T0}, 3456")
    a(f"s_lshl_b32 s{S_T1}, s{S_T4}, 1")
    a(f"s_add_u32 s{S_T0}, s{S_T0}, s{S_T1}")
    for p in range(k.npan):
        if p == 3:
            a(f"s_cmp_ge_u32 s{S_T4}, {DFF - 192}")
            a("s_cbranch_scc1 k1_hdone")
        for i in range(4):
            a(f"s_add_u32 s{S_T1}, s{S_T0}, {i*8*3456 + p*128}")
            a(f"s_waitcnt lgkmcnt({n - 1 - (p*4+i)})")
            a(f"buffer_store_dwordx4 {vr(V_FR + 4*(p*4+i), 4)}, v{T+4}, s[{S_SRDX}:{S_SRDX+3}], s{S_T1} offen")
    if k.npan == 4:
        a.label("k1_hdone")


def gen_k1(a):
    T = V_T
    kqk, kv, kh = Kind(True, 1, False), Kind(True, 1, True), Kind(False, 4, False)
    a.label("k1_kernel")
    tl_start(a)
    stamp(a, 0)
    a(f"s_cmp_ge_u32 s2, {K1_WGS}")
    a("s_cbranch_scc1 k1_end")
    load_ptrs(a)
    a("v_lshrrev_b32 v1, 6, v0")
    a("s_nop 0")
    a(f"v_readfirstlane_b32 s{S_WAVE}, v1")
    a("v_and_b32 v1, 63, v0")
    a(f"s_and_b32 s{S_T0}, s2, 1")
    a(f"s_lshl_b32 s{S_T0}, s{S_T0}, 3")
    a(f"s_bfe_u32 s{S_T1}, s2, 0x30003")
    a(f"s_add_u32 s{S_RT}, s{S_T0}, s{S_T1}")
    a(f"s_bfe_u32 s{S_T0}, s2, 0x20001")
    a(f"s_lshl_b32 s{S_T0}, s{S_T0}, 2")
    a(f"s_lshr_b32 s{S_T1}, s2, 6")
    a(f"s_add_u32 s{S_CT}, s{S_T0}, s{S_T1}")
    a(f"s_lshl_b32 s{S_T0}, s{S_RT}, 7")
    a(f"s_lshl_b32 s{S_T1}, s{S_WAVE}, 3")
    a(f"s_add_u32 s{S_T0}, s{S_T0}, s{S_T1}")
    a(f"s_mul_i32 s{S_AW}, s{S_T0}, 1280")
    a(f"s_mul_i32 s{S_BW}, s{S_CT}, 320")
    a(f"s_lshl_b32 s{S_MW}, s{S_WAVE}, 10")
    a(f"s_lshl_b32 s{S_T0}, s{S_CT}, 6")
    a(f"s_lshl_b32 s{S_T1}, s{S_CT}, 8")
    a(f"s_sub_u32 s{S_T1}, s{S_T1}, {12*256 - 768}")
    a(f"s_cmp_lt_u32 s{S_CT}, 12")
    a(f"s_cselect_b32 s{S_T4}, s{S_T0}, s{S_T1}")
    a(f"s_lshl_b32 s{S_T0}, s{S_T4}, 1")
    a(f"s_mul_i32 s{S_T1}, s{S_WAVE}, {8*3456}")
    a(f"s_add_u32 s{S_PW}, s{S_T0}, s{S_T1}")
    a(f"v_lshrrev_b32 v{T}, 3, v1")
    a(f"v_lshrrev_b32 v{T+1}, 4, v1")
    a(f"s_and_b32 s{S_T0}, s{S_WAVE}, 1")
    a(f"s_lshl_b32 s{S_T0}, s{S_T0}, 2")
    a(f"v_add_u32 v{T+3}, s{S_T0}, v{T+1}")
    a(f"v_and_b32 v{T+2}, 7, v1")
    a(f"v_xor_b32 v{T+3}, v{T+2}, v{T+3}")
    a(f"v_lshlrev_b32 v{T+3}, 4, v{T+3}")
    a(f"s_movk_i32 s{S_T0}, 1280")
    a(f"v_mad_u32_u24 v{V_DA}, v{T}, s{S_T0}, v{T+3}")
    a(f"v_and_b32 v{T+1}, 1, v{T+1}")
    a(f"v_lshlrev_b32 v{T+1}, 2, v{T+1}")
    a(f"v_xor_b32 v{T+3}, v{T+2}, v{T+1}")
    a(f"v_lshlrev_b32 v{T+3}, 4, v{T+3}")
    a(f"s_movk_i32 s{S_T0}, 3456")
    a(f"v_mad_u32_u24 v{V_DP}, v{T}, s{S_T0}, v{T+3}")
    a(f"v_lshlrev_b32 v{T}, 4, v1")
    a(f"v_add_u32 v{T}, s{S_MW}, v{T}")
    a(f"s_movk_i32 s{S_T0}, 205")
    a(f"s_movk_i32 s{S_T1}, {3840 - 320}")
    for i in range(5):
        a(f"v_add_u32 v{T+1}, {i*4096}, v{T}")
        a(f"v_lshrrev_b32 v{T+2}, 6, v{T+1}")
        a(f"v_mul_u32_u24 v{T+2}, s{S_T0}, v{T+2}")
        a(f"v_lshrrev_b32 v{T+2}, 10, v{T+2}")
        a(f"v_mad_u32_u24 v{V_DB+i}, v{T+2}, s{S_T1}, v{T+1}")
    a(f"v_and_b32 v{T}, 31, v1")
    a(f"v_lshrrev_b32 v{T+1}, 5, v1")
    a(f"v_bfe_u32 v{T+2}, v1, 1, 3")
    a(f"s_lshl_b32 s{S_T0}, s{S_WAVE}, 12")
    a(f"v_lshlrev_b32 v{T+3}, 7, v{T}")
    a(f"v_add_u32 v{T+3}, s{S_T0}, v{T+3}")
    for ks in range(4):
        a(f"v_add_u32 v{T+4}, {2*ks}, v{T+1}")
        a(f"v_xor_b32 v{T+4}, v{T+4}, v{T+2}")
        a(f"v_lshlrev_b32 v{T+4}, 4, v{T+4}")
        a(f"v_add_u32 v{V_AA+ks}, v{T+3}, v{T+4}")
    a(f"s_mov_b32 s{S_T0}, {STG}")
    a(f"s_mov_b32 s{S_T1}, {2*STG}")
    for ks in range(4):
        a(f"v_add_u32 v{V_AA+4+ks}, s{S_T0}, v{V_AA+ks}")
        a(f"v_add_u32 v{V_AA+8+ks}, s{S_T1}, v{V_AA+ks}")
    a(f"v_bfe_u32 v{T}, v1, 2, 2")
    a(f"v_and_b32 v{T+2}, 3, v1")
    a(f"v_bfe_u32 v{T+3}, v1, 4, 1")
    a(f"v_lshl_add_u32 v{T+4}, v{T+1}, 3, v{T}")
    a(f"v_lshlrev_b32 v{T+5}, 3, v{T+2}")
    a(f"v_lshl_add_u32 v{T+5}, v{T+3}, 5, v{T+5}")
    a(f"v_mul_u32_u24 v{T+6}, 320, v{T+4}")
    a(f"v_add_u32 v{T+6}, v{T+6}, v{T+5}")
    a(f"v_add_u32 v{V_BQ}, {QOFF}, v{T+6}")
    a(f"v_add_u32 v{V_BQ+1}, s{S_T0}, v{V_BQ}")
    a(f"v_add_u32 v{V_BQ+2}, s{S_T1}, v{V_BQ}")
    a(f"v_lshl_add_u32 v{T+6}, v{T+4}, 7, v{T+5}")
    a(f"v_lshrrev_b32 v{T+7}, 1, v{T}")
    for j in range(2):
        a(f"v_xor_b32 v{T+8}, {j}, v{T+7}")
        a(f"v_lshl_add_u32 v{V_BP+j}, v{T+8}, 6, v{T+6}")
        a(f"v_add_u32 v{V_BP+2+j}, s{S_T0}, v{V_BP+j}")
        a(f"v_add_u32 v{V_BP+4+j}, s{S_T1}, v{V_BP+j}")
    a("s_waitcnt lgkmcnt(0)")
    make_srd(a, S_SRDA, P_X, 0, 2048 * 1280)
    make_srd(a, S_SRDB, P_WQKV, 0, 640 * 3840)
    make_srd(a, S_SRDP, P_W1, 0, 640 * 3456)
    a("s_cmp_ge_u32 s2, 8")
    a("s_cbranch_scc1 k1_nz")
    make_srd(a, S_SRDX, P_WS, FL_OFF, FL_SIZE)
    a(f"s_lshl_b32 s{S_T0}, s2, 8")
    a(f"v_lshlrev_b32 v{T}, 2, v1")
    a(f"v_mov_b32 v{T+1}, 0")
    a(f"buffer_store_dword v{T+1}, v{T}, s[{S_SRDX}:{S_SRDX+3}], s{S_T0} offen")
    a.label("k1_nz")
    a(f"s_cmp_ge_u32 s{S_CT}, 12")
    a("s_cbranch_scc1 k1_h")
    a(f"s_cmp_ge_u32 s{S_CT}, 8")
    a("s_cbranch_scc1 k1_v")
    k1_main(a, kqk)
    EB = STG
    h_epilogue(a, kqk, EB + 40960)
    a(f"s_mov_b32 s{S_T0}, {f32bits(QSCALE)}")
    a(f"s_cmp_lt_u32 s{S_CT}, 4")
    a(f"s_cselect_b32 s{S_T4}, s{S_T0}, 1.0")
    a(f"s_mov_b32 s{S_T5}, s{S_T4}")
    a(f"s_movk_i32 s{S_T3}, 2560")
    a(f"s_cselect_b32 s{S_T3}, 1280, s{S_T3}")
    a(f"s_cselect_b32 s{S_T0}, {QF_OFF}, {KV_OFF}")
    a(f"s_mov_b32 s{S_T1}, {KV_SIZE}")
    a(f"s_cselect_b32 s{S_T1}, {QF_SIZE}, s{S_T1}")
    a(f"s_add_u32 s{S_SRDO}, s{P_WS}, s{S_T0}")
    a(f"s_addc_u32 s{S_SRDO+1}, s{P_WS+1}, 0")
    a(f"s_mov_b32 s{S_SRDO+2}, s{S_T1}")
    a(f"s_mov_b32 s{S_SRDO+3}, 0x00020000")
    a(f"s_mul_i32 s{S_T0}, s{S_WAVE}, 10240")
    a(f"s_add_u32 s{S_T0}, s{S_T0}, {EB}")
    a(f"v_and_b32 v{T}, 31, v1")
    a(f"v_lshrrev_b32 v{T+1}, 5, v1")
    a(f"v_lshlrev_b32 v{T+2}, 4, v{T}")
    a(f"v_add_u32 v{T+2}, s{S_T0}, v{T+2}")
    a(f"v_lshlrev_b32 v{T+3}, 3, v{T}")
    a(f"v_add_u32 v{T+3}, s{S_T0}, v{T+3}")
    a("v_cmp_gt_u32 vcc, 32, v1")

    def off(n):
        hd, d = n // 20, n % 20
        if d < 16:
            return hd * 1280 + (d >> 3) * 512 + ((d >> 2) & 1) * 8, False
        return hd * 1280 + 1024, True
    kk = 0
    for tn in range(5):
        for g in range(4):
            r = V_ACC + tn * 16 + 4 * g
            n0 = tn * 32 + 8 * g
            (c0, e0), (c1, e1) = off(n0), off(n0 + 4)
            ad = T + 4 + (kk % 2)
            dd = T + 6 + 2 * (kk % 2)
            kk += 1
            b0 = T + 3 if e0 else T + 2
            b1 = T + 3 if e1 else T + 2
            if e0 == e1:
                a(f"v_mad_u32_u24 v{ad}, v{T+1}, {c1 - c0}, v{b0}" if c1 - c0 <= 64 else f"v_mov_b32 v{ad}, {c1-c0}")
                if c1 - c0 > 64:
                    a(f"v_mad_u32_u24 v{ad}, v{T+1}, v{ad}, v{b0}")
            else:
                a(f"v_add_u32 v{ad}, {c1 - c0}, v{b1}")
                a(f"v_cndmask_b32 v{ad}, v{ad}, v{b0}, vcc")
            a(f"v_pk_mul_f32 v[{r}:{r+1}], v[{r}:{r+1}], s[{S_T4}:{S_T5}]")
            a(f"v_pk_mul_f32 v[{r+2}:{r+3}], v[{r+2}:{r+3}], s[{S_T4}:{S_T5}]")
            a(f"v_cvt_pk_bf16_f32 v{dd}, v{r}, v{r+1}")
            a(f"v_cvt_pk_bf16_f32 v{dd+1}, v{r+2}, v{r+3}")
            a(f"ds_write_b64 v{ad}, v[{dd}:{dd+1}] offset:{c0}")
    a(f"v_lshlrev_b32 v{T}, 4, v1")
    a(f"v_add_u32 v{T+1}, s{S_T0}, v{T}")
    a(f"v_lshrrev_b32 v{T+2}, 4, v1")
    a(f"s_and_b32 s{S_T0}, s{S_CT}, 3")
    a(f"s_lshl_b32 s{S_T0}, s{S_T0}, 9")
    a(f"s_lshl_b32 s{S_T1}, s{S_RT}, 2")
    a(f"s_add_u32 s{S_T0}, s{S_T0}, s{S_T1}")
    a(f"s_add_u32 s{S_T0}, s{S_T0}, s{S_WAVE}")
    a(f"s_mul_i32 s{S_T0}, s{S_T0}, s{S_T3}")
    a(f"s_lshl_b32 s{S_T1}, s{S_T3}, 6")
    a(f"s_sub_u32 s{S_T1}, s{S_T1}, 1280")
    a(f"s_movk_i32 s{S_T2}, 205")
    a("s_waitcnt lgkmcnt(0)")
    QD = V_FR + 16
    for i in range(10):
        a(f"ds_read_b128 {vr(QD + 4*i, 4)}, v{T+1} offset:{i*1024}")
    for i in range(10):
        ad = V_ACC + i
        a(f"v_add_u32 v{ad}, {4*i}, v{T+2}")
        a(f"v_mul_u32_u24 v{ad}, s{S_T2}, v{ad}")
        a(f"v_lshrrev_b32 v{ad}, 10, v{ad}")
        a(f"v_mul_lo_u32 v{ad}, v{ad}, s{S_T1}")
        a(f"v_add_u32 v{ad}, v{ad}, v{T}")
        if i:
            a(f"v_add_u32 v{ad}, {i*1024}, v{ad}")
    for i in range(10):
        a(f"s_waitcnt lgkmcnt({9-i})")
        a(f"buffer_store_dwordx4 {vr(QD + 4*i, 4)}, v{V_ACC+i}, s[{S_SRDO}:{S_SRDO+3}], s{S_T0} offen")
    stamp_out(a, 6)
    tl_end(a, 0)
    a("s_endpgm")
    a.label("k1_v")
    k1_main(a, kv)
    h_epilogue(a, kv, EB)
    make_srd(a, S_SRDO, P_WS, KV_OFF, KV_SIZE)
    a(f"v_and_b32 v{T}, 31, v1")
    a(f"v_lshrrev_b32 v{T+1}, 5, v1")
    a(f"v_mul_u32_u24 v{T+1}, 320, v{T+1}")
    a(f"v_add_u32 v{T+1}, 1280, v{T+1}")
    a(f"s_sub_u32 s{S_T0}, s{S_CT}, 8")
    a(f"s_lshl_b32 s{S_T0}, s{S_T0}, 9")
    a(f"s_lshl_b32 s{S_T1}, s{S_RT}, 2")
    a(f"s_add_u32 s{S_T0}, s{S_T0}, s{S_T1}")
    a(f"s_add_u32 s{S_T0}, s{S_T0}, s{S_WAVE}")
    a(f"s_mul_i32 s{S_T0}, s{S_T0}, 2560")
    a(f"s_movk_i32 s{S_T3}, 3277")
    a(f"s_mov_b32 s{S_T2}, {64*2560}")
    VD = V_FR + 16
    for tn in range(5):
        a(f"v_add_u32 v{T+2}, {tn*32}, v{T}")
        a(f"v_mul_u32_u24 v{T+3}, s{S_T3}, v{T+2}")
        a(f"v_lshrrev_b32 v{T+3}, 16, v{T+3}")
        a(f"v_mul_u32_u24 v{T+4}, 20, v{T+3}")
        a(f"v_sub_u32 v{T+4}, v{T+2}, v{T+4}")
        a(f"v_mul_lo_u32 v{T+3}, v{T+3}, s{S_T2}")
        a(f"v_lshl_add_u32 v{T+5}, v{T+4}, 4, v{T+1}")
        a(f"v_add_u32 v{VD+40+tn}, v{T+5}, v{T+3}")
        for m in range(2):
            r = V_ACC + tn * 16 + 8 * m
            dd = VD + (tn * 2 + m) * 4
            for i in range(4):
                a(f"v_cvt_pk_bf16_f32 v{dd+i}, v{r+2*i}, v{r+2*i+1}")
            a(f"buffer_store_dwordx4 v[{dd}:{dd+3}], v{VD+40+tn}, s[{S_SRDO}:{S_SRDO+3}], s{S_T0} offen offset:{m*640}")
    stamp_out(a, 6)
    tl_end(a, 0)
    a("s_endpgm")
    a.label("k1_h")
    k1_main(a, kh)
    h_epilogue(a, kh, EB)
    stamp_out(a, 6)
    tl_end(a, 0)
    a.label("k1_end")
    a("s_endpgm")
    return dict(name="k1_kernel", vgpr=V_ACC + 128, sgpr=84, grid=K1_WGS, block=256, lds=K1_S * STG)


def gen_gate(a, s_idx, wave8=True):
    make_srd(a, S_SRDA, P_X, 0, 2048 * 1280)
    make_srd(a, S_SRDB, P_GW, 0, 1280)
    make_srd(a, S_SRDO, P_WS, G_OFF, G_SIZE)
    a("v_and_b32 v2, 15, v1")
    a("v_lshrrev_b32 v3, 4, v1")
    a("v_lshlrev_b32 v4, 4, v2")
    for i in range(5):
        a(f"buffer_load_dwordx4 v[{24+4*i}:{27+4*i}], v4, s[{S_SRDB}:{S_SRDB+3}], 0 offen offset:{i*256}")
    a(f"s_lshl_b32 s{S_T0}, s{s_idx}, 8")
    a(f"s_lshl_b32 s{S_T1}, s{S_WAVE}, 5")
    a(f"s_add_u32 s{S_T0}, s{S_T0}, s{S_T1}")
    a(f"v_add_u32 v5, s{S_T0}, v3")
    a(f"v_mul_u32_u24 v6, 1280, v5")
    a(f"v_add_u32 v6, v6, v4")
    a(f"v_lshlrev_b32 v7, 2, v5")
    a("v_cmp_eq_u32 vcc, 0, v2")
    a(f"s_mov_b64 s[{S_EX0}:{S_EX0+1}], vcc")
    for p in range(8):
        for i in range(5):
            a(f"s_mov_b32 s{S_T0}, {p*4*1280}")
            a(f"buffer_load_dwordx4 v[{48+4*i}:{51+4*i}], v6, s[{S_SRDA}:{S_SRDA+3}], s{S_T0} offen offset:{i*256}")
        a("s_waitcnt vmcnt(0)")
        a("v_mov_b32 v8, 0")
        for i in range(20):
            a(f"v_dot2_f32_bf16 v8, v{24+i}, v{48+i}, v8")
        a("s_nop 3")
        for sh in (8, 4, 2, 1):
            a("s_nop 1")
            a(f"v_add_f32_dpp v8, v8, v8 row_ror:{sh} row_mask:0xf bank_mask:0xf")
        a("s_nop 1")
        a("v_cvt_pk_bf16_f32 v8, v8, v8")
        a("v_lshlrev_b32 v8, 16, v8")
        a(f"v_mul_f32 v8, {f32bits(-math.log2(math.e))}, v8")
        a("v_exp_f32 v8, v8")
        a("s_nop 0")
        a("v_add_f32 v8, 1.0, v8")
        a("v_rcp_f32 v8, v8")
        a("s_nop 0")
        a("v_cvt_pk_bf16_f32 v8, v8, v8")
        a("v_lshlrev_b32 v8, 16, v8")
        a(f"s_mov_b64 exec, s[{S_EX0}:{S_EX0+1}]")
        a(f"buffer_store_dword v8, v7, s[{S_SRDO}:{S_SRDO+3}], 0 offen offset:{p*16}")
        a("s_mov_b64 exec, -1")
        a("s_nop 1")
    a("s_endpgm")
```

```python
import sys, math, struct

S_TOK = 2048
D = 640
DFF = 1728
NH = 32
DH = 20

QF_OFF = 0x0
KV_OFF = 0x280000
H_OFF = 0x780000
O_OFF = 0xE40000
B_OFF = 0x10C0000
G_OFF = 0x1340000
FL_OFF = 0x1350000
FL_SIZE = 4096
QF_SIZE = 32 * 64 * 1280
KV_SIZE = 32 * 64 * 2560
H_SIZE = 2048 * 3456
O_SIZE = 2048 * 1280
G_SIZE = 8192

QSCALE = math.log2(math.e) / math.sqrt(20.0)


def f32bits(x):
    return struct.unpack("<I", struct.pack("<f", x))[0]


import os
DBG = set(os.environ.get('GDBG','').split(','))

class Asm:
    def __init__(self):
        self.lines = []

    def __call__(self, s):
        self.lines.append("    " + s)

    def label(self, l):
        self.lines.append(l + ":")

    def raw(self, s):
        self.lines.append(s)

    def text(self):
        return "\n".join(self.lines) + "\n"


def vr(base, n):
    return f"v[{base}:{base + n - 1}]" if n > 1 else f"v{base}"


def sr(base, n):
    return f"s[{base}:{base + n - 1}]" if n > 1 else f"s{base}"


S_SRDA = 4
S_SRDB = 8
S_SRDO = 12
S_PTR = 16
P_X, P_WQKV, P_WO, P_BX, P_W1, P_W2, P_GW, P_OUT, P_DBG, P_WS = [16 + 2 * i for i in range(10)]
S_WAVE = 36
S_WM = 37
S_WN = 38
S_AW = 39
S_BW = 40
S_MW = 41
S_T0 = 42
S_T1 = 43
S_T2 = 44
S_RT = 45
S_CT = 46
S_T3 = 47
S_SRDX = 48
S_SRDY = 52
S_T4 = 56
S_T5 = 57
S_EX0 = 58
S_EX1 = 60


def tl_start(a):
    if 'tl' in DBG:
        a("s_memrealtime s[96:97]")


def tl_end(a, k):
    if 'tl' not in DBG: return
    a("s_waitcnt vmcnt(0) lgkmcnt(0)")
    a("s_memrealtime s[98:99]")
    a(f"s_add_u32 s88, s{P_WS}, {0x3000000 + k * 0x10000}")
    a(f"s_addc_u32 s89, s{P_WS+1}, 0")
    a("s_mov_b32 s90, 0x10000")
    a("s_mov_b32 s91, 0x00020000")
    a("s_lshl_b32 s92, s2, 3")
    a(f"s_add_u32 s92, s92, s{S_WAVE}")
    a("s_lshl_b32 s92, s92, 3")
    a("s_waitcnt lgkmcnt(0)")
    a("v_mov_b32 v2, s92")
    a("v_mov_b32 v4, s96")
    a("v_mov_b32 v5, s98")
    a("s_mov_b64 exec, 1")
    a("buffer_store_dwordx2 v[4:5], v2, s[88:91], 0 offen")


def load_ptrs(a):
    a(f"s_load_dwordx16 s[16:31], s[0:1], 0")
    a(f"s_load_dwordx4 s[32:35], s[0:1], 64")


def make_srd(a, dst, ptr, off, size):
    if off:
        a(f"s_add_u32 s{dst}, s{ptr}, {off}")
        a(f"s_addc_u32 s{dst + 1}, s{ptr + 1}, 0")
    else:
        a(f"s_mov_b32 s{dst}, s{ptr}")
        a(f"s_mov_b32 s{dst + 1}, s{ptr + 1}")
    a(f"s_mov_b32 s{dst + 2}, {size}")
    a(f"s_mov_b32 s{dst + 3}, 0x00020000")


class GemmCfg:
    def __init__(self, WM, WN, TM, TN, S, KSTEPS, lda, ldb):
        self.WM, self.WN, self.TM, self.TN, self.S, self.KSTEPS = WM, WN, TM, TN, S, KSTEPS
        self.lda, self.ldb = lda, ldb
        self.NW = WM * WN
        self.BM = WM * TM * 32
        self.BN = WN * TN * 32
        self.ASZ = self.BM * 128
        self.BSZ = self.BN * 128
        self.STG = self.ASZ + self.BSZ
        self.nA = self.BM // 8 // self.NW
        self.nB = self.BN // 8 // self.NW
        assert self.nA * 8 * self.NW == self.BM and self.nB * 8 * self.NW == self.BN
        self.RB = 512 // self.BN
        self.V_DA = 2
        self.V_DB = 3
        self.V_AA = 4
        self.V_BA = 8
        self.V_T = 12
        self.V_FR = 24
        self.FRSZ = (TM + TN) * 4
        self.V_ACC = self.V_FR + 2 * self.FRSZ
        self.V_END = self.V_ACC + TM * TN * 16

    def acc(self, tm, tn):
        return self.V_ACC + (tm * self.TN + tn) * 16


def gemm_setup_lane(a, c):
    T = c.V_T
    a("v_and_b32 v1, 63, v0")
    a(f"v_lshrrev_b32 v{T}, 3, v1")
    a(f"v_lshrrev_b32 v{T+1}, 4, v1")
    a(f"s_and_b32 s{S_T0}, s{S_WAVE}, 1")
    a(f"s_lshl_b32 s{S_T0}, s{S_T0}, 2")
    a(f"v_add_u32 v{T+1}, s{S_T0}, v{T+1}")
    a(f"v_and_b32 v{T+2}, 7, v1")
    a(f"v_xor_b32 v{T+2}, v{T+2}, v{T+1}")
    a(f"v_lshlrev_b32 v{T+2}, 4, v{T+2}")
    a(f"s_mov_b32 s{S_T0}, {c.lda}")
    a(f"v_mad_u32_u24 v{c.V_DA}, v{T}, s{S_T0}, v{T+2}")
    if c.BN == 64:
        a(f"v_lshrrev_b32 v{T}, 3, v1")
        a(f"v_and_b32 v{T+2}, 7, v1")
        a(f"v_lshrrev_b32 v{T+1}, 4, v1")
        a(f"v_and_b32 v{T+1}, 1, v{T+1}")
        a(f"v_lshlrev_b32 v{T+1}, 2, v{T+1}")
    elif c.BN == 128:
        a(f"v_lshrrev_b32 v{T}, 4, v1")
        a(f"v_and_b32 v{T+2}, 15, v1")
        a(f"v_lshlrev_b32 v{T+1}, 2, v{T}")
    else:
        raise NotImplementedError
    a(f"v_xor_b32 v{T+2}, v{T+2}, v{T+1}")
    a(f"v_lshlrev_b32 v{T+2}, 4, v{T+2}")
    a(f"s_mov_b32 s{S_T0}, {c.ldb}")
    a(f"v_mad_u32_u24 v{c.V_DB}, v{T}, s{S_T0}, v{T+2}")
    a(f"v_and_b32 v{T}, 31, v1")
    a(f"v_lshrrev_b32 v{T+1}, 5, v1")
    a(f"v_bfe_u32 v{T+2}, v1, 1, 3")
    a(f"s_mul_i32 s{S_T0}, s{S_WM}, {c.TM * 32 * 128}")
    a(f"v_lshlrev_b32 v{T+3}, 7, v{T}")
    a(f"v_add_u32 v{T+3}, s{S_T0}, v{T+3}")
    for ks in range(4):
        a(f"v_add_u32 v{T+4}, {2*ks}, v{T+1}")
        a(f"v_xor_b32 v{T+4}, v{T+4}, v{T+2}")
        a(f"v_lshlrev_b32 v{T+4}, 4, v{T+4}")
        a(f"v_add_u32 v{c.V_AA+ks}, v{T+3}, v{T+4}")
    rowb = c.BN * 2
    a(f"v_bfe_u32 v{T}, v1, 2, 2")
    a(f"v_and_b32 v{T+2}, 3, v1")
    a(f"v_bfe_u32 v{T+3}, v1, 4, 1")
    a(f"v_lshl_add_u32 v{T+4}, v{T+1}, 3, v{T}")
    a(f"v_mul_u32_u24 v{T+4}, {rowb}, v{T+4}")
    a(f"v_lshrrev_b32 v{T+5}, 1, v{T+2}")
    a(f"v_lshl_add_u32 v{T+5}, v{T+3}, 1, v{T+5}")
    a(f"v_lshlrev_b32 v{T+5}, 4, v{T+5}")
    a(f"v_and_b32 v{T+6}, 1, v{T+2}")
    a(f"v_lshl_add_u32 v{T+5}, v{T+6}, 3, v{T+5}")
    a(f"v_add_u32 v{T+4}, v{T+4}, v{T+5}")
    a(f"v_add_u32 v{T+4}, {c.ASZ}, v{T+4}")
    if c.BN == 64:
        a(f"v_lshrrev_b32 v{T+5}, 1, v{T}")
    else:
        a(f"v_mov_b32 v{T+5}, v{T}")
    for tn in range(c.TN):
        a(f"s_mul_i32 s{S_T0}, s{S_WN}, {c.TN}")
        a(f"s_add_u32 s{S_T0}, s{S_T0}, {tn}")
        a(f"v_xor_b32 v{T+6}, s{S_T0}, v{T+5}")
        a(f"v_lshlrev_b32 v{T+6}, 6, v{T+6}")
        a(f"v_add_u32 v{c.V_BA+tn}, v{T+4}, v{T+6}")
    a(f"s_lshl_b32 s{S_MW}, s{S_WAVE}, 10")


def gemm_dma(a, c, t):
    st = t % c.S
    if 'nodma' in DBG: return
    for i in range(c.nA):
        a(f"s_add_u32 m0, s{S_MW}, {st * c.STG + i * c.NW * 1024}")
        a(f"s_add_u32 s{S_T0}, s{S_AW}, {i * c.NW * 8 * c.lda + t * 128}")
        a(f"buffer_load_dwordx4 v{c.V_DA}, s[{S_SRDA}:{S_SRDA+3}], s{S_T0} offen lds")
    for i in range(c.nB):
        a(f"s_add_u32 m0, s{S_MW}, {st * c.STG + c.ASZ + i * c.NW * 1024}")
        a(f"s_add_u32 s{S_T0}, s{S_BW}, {(t * 64 + i * c.NW * c.RB) * c.ldb}")
        a(f"buffer_load_dwordx4 v{c.V_DB}, s[{S_SRDB}:{S_SRDB+3}], s{S_T0} offen lds")


def gemm_reads(a, c, t, ks, fset):
    st = t % c.S
    if 'noreads' in DBG: return
    fb = c.V_FR + fset * c.FRSZ
    rowb = c.BN * 2
    for tm in range(c.TM):
        a(f"ds_read_b128 {vr(fb + tm*4, 4)}, v{c.V_AA+ks} offset:{st*c.STG + tm*4096}")
    for tn in range(c.TN):
        for w in range(2):
            a(f"ds_read_b64_tr_b16 {vr(fb + c.TM*4 + tn*4 + w*2, 2)}, v{c.V_BA+tn} offset:{st*c.STG + (ks*16 + 4*w)*rowb}")


def gemm_mfmas(a, c, fset, swap, first):
    fb = c.V_FR + fset * c.FRSZ
    if 'nomfma' in DBG and not first: return
    for tm in range(c.TM):
        for tn in range(c.TN):
            A = vr(fb + tm * 4, 4)
            B = vr(fb + c.TM * 4 + tn * 4, 4)
            acc = vr(c.acc(tm, tn), 16)
            cin = "0" if first else acc
            if swap:
                a(f"v_mfma_f32_32x32x16_bf16 {acc}, {A}, {B}, {cin}")
            else:
                a(f"v_mfma_f32_32x32x16_bf16 {acc}, {B}, {A}, {cin}")


def gemm_main(a, c, swap, pre=True):
    per = c.nA + c.nB
    nr = c.TM + 2 * c.TN
    if pre:
        for t in range(min(c.S - 1, c.KSTEPS)):
            gemm_dma(a, c, t)
    for t in range(c.KSTEPS):
        inflight_after = min(c.S - 2, c.KSTEPS - 1 - t)
        a(f"s_waitcnt vmcnt({inflight_after * per}) lgkmcnt(0)")
        a("s_barrier")
        if 'fstamp' in DBG and c.KSTEPS == 10 and c.NW == 8 and t in (0, 1, 2, 5):
            i = {0: 4, 1: 5, 2: 6, 5: 7}[t]
            a(f"s_memrealtime s[{64+2*i}:{64+2*i+1}]")
        gemm_reads(a, c, t, 0, 0)
        if t + c.S - 1 < c.KSTEPS:
            gemm_dma(a, c, t + c.S - 1)
        if t > 0:
            gemm_mfmas(a, c, 1, swap, False)
        gemm_reads(a, c, t, 1, 1)
        a(f"s_waitcnt lgkmcnt({nr})")
        gemm_mfmas(a, c, 0, swap, t == 0)
        gemm_reads(a, c, t, 2, 0)
        a(f"s_waitcnt lgkmcnt({nr})")
        gemm_mfmas(a, c, 1, swap, False)
        gemm_reads(a, c, t, 3, 1)
        a(f"s_waitcnt lgkmcnt({nr})")
        gemm_mfmas(a, c, 0, swap, False)
    a(f"s_waitcnt lgkmcnt(0)")
    gemm_mfmas(a, c, 1, swap, False)
    a("s_nop 15")
    a("s_nop 3")
    if 'noepi' in DBG: a("s_endpgm")


def gemm_dma_list(c, t):
    st = t % c.S
    out = []
    if 'nodma' in DBG: return out
    for i in range(c.nA):
        out.append([f"s_add_u32 m0, s{S_MW}, {st * c.STG + i * c.NW * 1024}",
                    f"s_add_u32 s{S_T0}, s{S_AW}, {i * c.NW * 8 * c.lda + t * 128}",
                    f"buffer_load_dwordx4 v{c.V_DA}, s[{S_SRDA}:{S_SRDA+3}], s{S_T0} offen lds"])
    for i in range(c.nB):
        out.append([f"s_add_u32 m0, s{S_MW}, {st * c.STG + c.ASZ + i * c.NW * 1024}",
                    f"s_add_u32 s{S_T0}, s{S_BW}, {(t * 64 + i * c.NW * c.RB) * c.ldb}",
                    f"buffer_load_dwordx4 v{c.V_DB}, s[{S_SRDB}:{S_SRDB+3}], s{S_T0} offen lds"])
    return out


def gemm_rd(c, t, ks, kind, idx):
    st = t % c.S
    fb = c.V_FR + (ks % 2) * c.FRSZ
    rowb = c.BN * 2
    if kind == 'A':
        return [f"ds_read_b128 {vr(fb + idx*4, 4)}, v{c.V_AA+ks} offset:{st*c.STG + idx*4096}"]
    return [f"ds_read_b64_tr_b16 {vr(fb + c.TM*4 + idx*4 + w*2, 2)}, v{c.V_BA+idx} offset:{st*c.STG + (ks*16 + 4*w)*rowb}" for w in range(2)]


def gemm_main2(a, c, swap, mid_hook=None, post_hook=None):
    nr = c.TM + 2 * c.TN
    K = c.KSTEPS
    issued = []

    def emit(g, t):
        for l in g: a(l)
        issued.append(t)

    def need(t):
        if 'nodma' in DBG: return 0
        last = max(i for i, x in enumerate(issued) if x == t)
        return len(issued) - 1 - last
    if mid_hook:
        for t in range(c.S):
            for g in gemm_dma_list(c, t)[c.nA:]: emit(g, t)
        mid_hook()
        for t in range(c.S):
            for g in gemm_dma_list(c, t)[:c.nA]: emit(g, t)
    else:
        for t in range(c.S):
            for g in gemm_dma_list(c, t): emit(g, t)
    if post_hook:
        post_hook(len(issued))
    a(f"s_waitcnt vmcnt({need(0)})")
    a("s_barrier")
    for ks in range(2):
        for i in range(c.TM):
            for l in gemm_rd(c, 0, ks, 'A', i): a(l)
        for i in range(c.TN):
            for l in gemm_rd(c, 0, ks, 'B', i): a(l)
    nm = c.TM * c.TN
    for t in range(K):
        dma = gemm_dma_list(c, t + c.S) if t + c.S < K else []
        slots = 2 * nm - (1 if nm > 1 else 0)
        perslot = (len(dma) + slots - 1) // slots if dma else 0
        for ks in range(4):
            nt, nks = (t, ks + 2) if ks < 2 else (t + 1, ks - 2)
            has = nt < K
            last = (t == K - 1 and ks == 3)
            a(f"s_waitcnt lgkmcnt({0 if last else nr})")
            pend = []
            fb = c.V_FR + (ks % 2) * c.FRSZ
            j = 0
            for tm in range(c.TM):
                for tn in range(c.TN):
                    A = vr(fb + tm * 4, 4)
                    B = vr(fb + c.TM * 4 + tn * 4, 4)
                    acc = vr(c.acc(tm, tn), 16)
                    cin = "0" if (t == 0 and ks == 0) else acc
                    a(f"v_mfma_f32_32x32x16_bf16 {acc}, {A}, {B}, {cin}" if swap else f"v_mfma_f32_32x32x16_bf16 {acc}, {B}, {A}, {cin}")
                    if has:
                        if tm == c.TM - 1:
                            pend += gemm_rd(c, nt, nks, 'B', tn)
                        if tn == c.TN - 1:
                            pend += gemm_rd(c, nt, nks, 'A', tm)
                    bar_at = 1 if nm > 1 else 0
                    if ks == 2 and has and j < bar_at:
                        j += 1
                        continue
                    if ks == 2 and has and j == bar_at:
                        a(f"s_waitcnt vmcnt({need(t + 1)}) lgkmcnt(0)")
                        a("s_barrier")
                    for l in pend: a(l)
                    pend = []
                    if ks >= 2:
                        for _ in range(perslot):
                            if dma:
                                emit(dma.pop(0), t + c.S)
                    j += 1
        assert not dma, (t, len(dma))
    a("s_nop 15")
    a("s_nop 3")
    if 'noepi' in DBG: a("s_endpgm")


def wave_ids(a, c):
    a("v_lshrrev_b32 v1, 6, v0")
    a("s_nop 0")
    a(f"v_readfirstlane_b32 s{S_WAVE}, v1")
    a("s_nop 3")
    lg = int(math.log2(c.WN))
    a(f"s_lshr_b32 s{S_WM}, s{S_WAVE}, {lg}")
    a(f"s_and_b32 s{S_WN}, s{S_WAVE}, {c.WN - 1}")


HEADER = """; generated by dev/gen.py
{launch}
.amdgcn_target "amdgcn-amd-amdhsa--gfx950"
.text
"""


def kd(k):
    v = (k["vgpr"] + 3) // 4 * 4
    return f""".p2align 6
.amdhsa_kernel {k['name']}
  .amdhsa_next_free_vgpr {v}
  .amdhsa_next_free_sgpr {100 if 'tl' in DBG else k['sgpr']}
  .amdhsa_accum_offset {v}
  .amdhsa_group_segment_fixed_size 0
  .amdhsa_kernarg_size 80
  .amdhsa_user_sgpr_count 2
  .amdhsa_user_sgpr_kernarg_segment_ptr 1
  .amdhsa_system_sgpr_workgroup_id_x 1
.end_amdhsa_kernel
"""


def main(out):
    import gen_attn, gen_k1
    kernels = []
    body = ""
    for fn in [gen_k1.gen_k1] + gen_attn.KERNELS:
        a = Asm()
        k = fn(a)
        kernels.append(k)
        body += f".globl {k['name']}\n.p2align 8\n.type {k['name']},@function\n" + a.text()
    launch = "\n".join(f"; @launch kernel={k['name']} grid=({k['grid']},1,1) block=({k['block']},1,1) lds={k['lds']}" for k in kernels)
    src = HEADER.format(launch=launch) + body + '.section .rodata,"a"\n' + "".join(kd(k) for k in kernels)
    open(out, "w").write(src)


if __name__ == "__main__":
    sys.path.insert(0, "dev")
    main(sys.argv[1] if len(sys.argv) > 1 else "gated_mix__mha_block__dense_activation_relu__prompt.s")
```

```python
import math
from gen import *

K1_WGS = 256
K1_S = 3
K1_P = 3 if 'p3' in DBG else 2
ASZ = 128 * 128
STG = 49152
QOFF = ASZ
V_DA = 2
V_DB = 3
V_DP = 8
V_AA = 9
V_BQ = 21
V_BP = 24
V_T = 30
V_FR = 44
V_ACC = 116
KST = 10
S_PW = 62
S_SRDP = 64
S_ST = 68


def stamp(a, i):
    if 'kstamp' in DBG:
        a(f"{'s_memtime' if 'cyc' in DBG else 's_memrealtime'} s[{S_ST+2*i}:{S_ST+2*i+1}]")


def sentinel(a):
    T = V_T
    make_srd(a, S_SRDX, P_WS, O_OFF, O_SIZE)
    a(f"s_mul_i32 s{S_T0}, s2, 10240")
    a(f"s_add_u32 s{S_T0}, s{S_T0}, s{S_MW}")
    a(f"v_lshlrev_b32 v{T+4}, 4, v1")
    a(f"v_add_u32 v{T+4}, s{S_T0}, v{T+4}")
    for i in range(4):
        a(f"v_mov_b32 v{T+6+i}, -1")
    for i in range(3):
        a(f"s_movk_i32 s{S_T0}, {i*4096}")
        a(f"buffer_store_dwordx4 v[{T+6}:{T+9}], v{T+4}, s[{S_SRDX}:{S_SRDX+3}], s{S_T0} offen")


def stamp_out(a, n):
    sentinel(a)
    if 'kstamp' not in DBG: return
    T = V_T
    a("s_waitcnt vmcnt(0) lgkmcnt(0)")
    stamp(a, n - 1)
    a("s_waitcnt lgkmcnt(0)")
    make_srd(a, S_SRDY, P_WS, 0x2000000, 0x100000)
    a(f"s_lshl_b32 s{S_T5}, s2, 2")
    a(f"s_add_u32 s{S_T5}, s{S_T5}, s{S_WAVE}")
    a(f"s_lshl_b32 s{S_T5}, s{S_T5}, 6")
    a(f"v_mov_b32 v{T+2}, s{S_T5}")
    a("s_mov_b64 exec, 1")
    for i in range(n):
        a(f"v_mov_b32 v{T+3}, s{S_ST+2*i}")
        a(f"buffer_store_dword v{T+3}, v{T+2}, s[{S_SRDY}:{S_SRDY+3}], 0 offen offset:{4*i}")
    a("s_mov_b64 exec, -1")


class Kind:
    def __init__(self, hasq, npan, swapq):
        self.hasq, self.npan, self.swapq = hasq, npan, swapq
        self.poff = ASZ + (20480 if hasq else 0)
        self.units = [('q', tn) for tn in range(5)] if hasq else []
        self.units += [('p', p, j) for p in range(npan) for j in range(2)]
        self.nu = len(self.units)
        self.per = 4 + (5 if hasq else 0) + 2 * npan
        self.nr = 1 + 2 * self.nu


def dma_list(k, t):
    st = t % K1_S
    out = []
    if 'nodma' in DBG: return out
    for i in range(4):
        out.append([f"s_add_u32 m0, s{S_MW}, {st * STG + i * 4096}",
                    f"s_add_u32 s{S_T0}, s{S_AW}, {i * 32 * 1280 + t * 128}",
                    f"buffer_load_dwordx4 v{V_DA}, s[{S_SRDA}:{S_SRDA+3}], s{S_T0} offen lds"])
    if k.hasq:
        for i in range(5):
            out.append([f"s_add_u32 m0, s{S_MW}, {st * STG + QOFF + i * 4096}",
                        f"s_add_u32 s{S_T0}, s{S_BW}, {t * 64 * 3840}",
                        f"buffer_load_dwordx4 v{V_DB+i}, s[{S_SRDB}:{S_SRDB+3}], s{S_T0} offen lds"])
    for p in range(k.npan):
        for i in range(2):
            out.append([f"s_add_u32 m0, s{S_MW}, {st * STG + k.poff + p * 8192 + i * 4096}",
                        f"s_add_u32 s{S_T0}, s{S_PW}, {(t * 64 + i * 32) * 3456 + p * 128}",
                        f"buffer_load_dwordx4 v{V_DP}, s[{S_SRDP}:{S_SRDP+3}], s{S_T0} offen lds"])
    return out


def rd(k, t, ks, u):
    st = t % K1_S
    if 'noreads' in DBG: return []
    fb = V_FR + (ks % 2) * 36
    if u == 'A':
        return [f"ds_read_b128 {vr(fb, 4)}, v{V_AA + st*4 + ks}"]
    un = k.units[u]
    if un[0] == 'q':
        return [f"ds_read_b64_tr_b16 {vr(fb + 4 + u*4 + w*2, 2)}, v{V_BQ+st} offset:{(ks*16 + 4*w)*320 + un[1]*64}" for w in range(2)]
    return [f"ds_read_b64_tr_b16 {vr(fb + 4 + u*4 + w*2, 2)}, v{V_BP+st*2+un[2]} offset:{k.poff + un[1]*8192 + (ks*16 + 4*w)*128}" for w in range(2)]


def mfma(k, ks, u, first):
    fb = V_FR + (ks % 2) * 36
    A = vr(fb, 4)
    B = vr(fb + 4 + u * 4, 4)
    acc = vr(V_ACC + u * 16, 16)
    cin = "0" if first else acc
    if k.swapq and k.units[u][0] == 'q':
        return f"v_mfma_f32_32x32x16_bf16 {acc}, {A}, {B}, {cin}"
    return f"v_mfma_f32_32x32x16_bf16 {acc}, {B}, {A}, {cin}"


def k1_main(a, k):
    per = 0 if 'nodma' in DBG else k.per
    T = V_T
    tag = f"{int(k.hasq)}{int(k.swapq)}"
    GW = V_FR
    GX = V_FR + 20
    vm = VM()

    def emit(g, t):
        for l in g: a(l)
        vm.add(t)
    for g in dma_list(k, 0): emit(g, 0)
    a(f"s_mov_b32 s{S_GR}, 0x100000")
    a(f"s_cmp_ge_u32 s{S_WAVE}, 2")
    a(f"s_cbranch_scc1 k1_ng1{tag}")
    make_srd(a, S_SRDY, P_GW, 0, 1280)
    a(f"v_and_b32 v{T}, 15, v1")
    a(f"v_lshrrev_b32 v{T+1}, 4, v1")
    a(f"v_lshlrev_b32 v{T}, 4, v{T}")
    for i in range(5):
        a(f"buffer_load_dwordx4 v[{GW+4*i}:{GW+4*i+3}], v{T}, s[{S_SRDY}:{S_SRDY+3}], 0 offen offset:{i*256}")
    a(f"v_mul_u32_u24 v{T+1}, 1280, v{T+1}")
    a(f"v_add_u32 v{T}, v{T}, v{T+1}")
    a(f"s_lshl_b32 s{S_T0}, s{S_RT}, 7")
    a(f"s_lshl_b32 s{S_T1}, s{S_CT}, 3")
    a(f"s_add_u32 s{S_T0}, s{S_T0}, s{S_T1}")
    a(f"s_lshl_b32 s{S_T1}, s{S_WAVE}, 2")
    a(f"s_add_u32 s{S_GR}, s{S_T0}, s{S_T1}")
    a(f"s_mul_i32 s{S_T0}, s{S_GR}, 1280")
    for i in range(5):
        a(f"buffer_load_dwordx4 v[{GX+4*i}:{GX+4*i+3}], v{T}, s[{S_SRDA}:{S_SRDA+3}], s{S_T0} offen offset:{i*256}")
    a.label(f"k1_ng1{tag}")
    tr_loads(a, tag)
    for t in range(1, K1_P):
        for g in dma_list(k, t): emit(g, t)
    tr_stores(a, tag, (K1_P - 1) * per)
    for _ in range(4): vm.add('st')
    a(f"s_cmp_ge_u32 s{S_WAVE}, 2")
    a(f"s_cbranch_scc1 k1_ng2{tag}")
    a(f"v_mov_b32 v{T}, 0")
    a(f"v_mov_b32 v{T+1}, 0")
    for i in range(20):
        a(f"v_dot2_f32_bf16 v{T+i%2}, v{GW+i}, v{GX+i}, v{T+i%2}")
    a("s_nop 3")
    a(f"v_add_f32 v{T}, v{T}, v{T+1}")
    for sh in (8, 4, 2, 1):
        a("s_nop 1")
        a(f"v_add_f32_dpp v{T}, v{T}, v{T} row_ror:{sh} row_mask:0xf bank_mask:0xf")
    a("s_nop 1")
    a(f"v_cvt_pk_bf16_f32 v{T}, v{T}, v{T}")
    a(f"v_lshlrev_b32 v{T}, 16, v{T}")
    a(f"v_mul_f32 v{T}, {f32bits(-math.log2(math.e))}, v{T}")
    a(f"v_exp_f32 v{T}, v{T}")
    a("s_nop 0")
    a(f"v_add_f32 v{T}, 1.0, v{T}")
    a(f"v_rcp_f32 v{T}, v{T}")
    a("s_nop 0")
    a(f"v_cvt_pk_bf16_f32 v{T}, v{T}, v{T}")
    a(f"v_lshlrev_b32 v{T}, 16, v{T}")
    a.label(f"k1_ng2{tag}")
    make_srd(a, S_SRDY, P_WS, G_OFF, G_SIZE)
    a(f"v_lshrrev_b32 v{T+8}, 4, v1")
    a(f"v_lshlrev_b32 v{T+8}, 2, v{T+8}")
    a(f"s_lshl_b32 s{S_T0}, s{S_GR}, 2")
    a(f"v_and_b32 v{T+9}, 15, v1")
    a(f"v_cmp_eq_u32 vcc, 0, v{T+9}")
    a("s_mov_b64 exec, vcc")
    a(f"buffer_store_dword v{T}, v{T+8}, s[{S_SRDY}:{S_SRDY+3}], s{S_T0} offen{SC1}")
    a("s_mov_b64 exec, -1")
    vm.add('st')
    a("s_barrier")
    stamp(a, 1)
    for ks in range(2):
        for w in ['A'] + list(range(k.nu)):
            for l in rd(k, 0, ks, w): a(l)
    for t in range(KST):
        dma = dma_list(k, t + K1_S) if t + K1_S < KST else []
        early = [(g, tt) for tt in range(K1_P, K1_S) for g in dma_list(k, tt)] if t == 0 else []
        for ks in range(4):
            nt, nks = (t, ks + 2) if ks < 2 else (t + 1, ks - 2)
            has = nt < KST
            last = (t == KST - 1 and ks == 3)
            a(f"s_waitcnt lgkmcnt({0 if last else min(k.nr, 15)})")
            pend = []
            for u in range(k.nu):
                a(mfma(k, ks, u, t == 0 and ks == 0))
                if has:
                    pend += rd(k, nt, nks, u)
                if ks == 2 and has and u == 0:
                    continue
                if ks == 2 and has and u == 1:
                    assert not early
                    a(f"s_waitcnt vmcnt({0 if 'nodma' in DBG else vm.need(t + 1)}) lgkmcnt(0)")
                    a("s_barrier")
                    if t in (0, 4): stamp(a, {0: 2, 4: 3}[t])
                for l in pend: a(l)
                pend = []
                if ks < 2 and early:
                    emit(*early.pop(0))
                if ks >= 2 and dma and not (ks == 2 and u < 1):
                    emit(dma.pop(0), t + K1_S)
            if has:
                for l in rd(k, nt, nks, 'A'): a(l)
        assert not dma
    a("s_nop 15")
    a("s_nop 3")
    stamp(a, 4)
    if 'noepi' in DBG: a("s_endpgm")


def h_epilogue(a, k, lds_base):
    T = V_T
    u0 = 5 if k.hasq else 0
    make_srd(a, S_SRDX, P_WS, H_OFF, H_SIZE)
    a(f"v_lshlrev_b32 v{T}, 4, v1")
    a(f"s_lshl_b32 s{S_T0}, s{S_RT}, 2")
    a(f"s_add_u32 s{S_T0}, s{S_T0}, s{S_WAVE}")
    a(f"s_mul_i32 s{S_T0}, s{S_T0}, {108*1024}")
    a(f"s_lshl_b32 s{S_T1}, s{S_T4}, 6")
    a(f"s_add_u32 s{S_T0}, s{S_T0}, s{S_T1}")
    kk = 0
    for p in range(k.npan):
        if p == 3:
            a(f"s_cmp_ge_u32 s{S_T4}, {DFF - 192}")
            a("s_cbranch_scc1 k1_hdone")
        if p:
            a(f"s_add_u32 s{S_T0}, s{S_T0}, 4096")
        for j in range(2):
            for sg in range(2):
                r = V_ACC + (u0 + p * 2 + j) * 16 + 8 * sg
                dd = V_FR + 4 * (kk % 8)
                kk += 1
                for i in range(4):
                    a(f"v_cvt_pk_bf16_f32 v{dd+i}, v{r+2*i}, v{r+2*i+1}")
                for i in range(4):
                    a(f"v_pk_max_i16 v{dd+i}, v{dd+i}, 0")
                a(f"buffer_store_dwordx4 {vr(dd, 4)}, v{T}, s[{S_SRDX}:{S_SRDX+3}], s{S_T0} offen offset:{(j*2+sg)*1024}{SC1}")
    if k.npan == 4:
        a.label("k1_hdone")


S_TSRD = 84
S_TP = 88
S_TF = 89
S_GR = 90
SC1 = ' sc1' if 'sc1' in DBG else ''
V_TL = V_ACC
V_TR = V_ACC + 16


def tr_loads(a, tag):
    T = V_T
    a(f"s_mov_b32 s{S_TP}, 0x40000000")
    a(f"s_lshl_b32 s{S_T0}, s{S_CT}, 4")
    a(f"s_add_u32 s{S_T0}, s{S_T0}, s{S_RT}")
    a(f"s_lshl_b32 s{S_T0}, s{S_T0}, 2")
    a(f"s_add_u32 s{S_T0}, s{S_T0}, s{S_WAVE}")
    a(f"s_cmp_lt_u32 s{S_T0}, 740")
    a(f"s_cselect_b32 s{S_TF}, 1, 0")
    a(f"s_cbranch_scc0 k1_ntl{tag}")
    a(f"s_mul_i32 s{S_T1}, s{S_T0}, 205")
    a(f"s_lshr_b32 s{S_T1}, s{S_T1}, 10")
    a(f"s_mul_i32 s{S_T2}, s{S_T1}, 5")
    a(f"s_sub_u32 s{S_T2}, s{S_T0}, s{S_T2}")
    a(f"s_mul_i32 s{S_TP}, s{S_T1}, 20")
    a(f"s_lshl_b32 s{S_T0}, s{S_T2}, 2")
    a(f"s_add_u32 s{S_TP}, s{S_TP}, s{S_T0}")
    a(f"s_lshl_b32 s{S_TP}, s{S_TP}, 10")
    a(f"s_sub_u32 s{S_T0}, s{S_T1}, 108")
    a(f"s_cmp_lt_u32 s{S_T1}, 108")
    a(f"s_cselect_b32 s{S_T1}, s{S_T1}, s{S_T0}")
    a(f"s_cselect_b32 s{S_TSRD}, s{P_W2}, s{P_WO}")
    a(f"s_cselect_b32 s{S_TSRD+1}, s{P_W2+1}, s{P_WO+1}")
    a(f"s_mov_b32 s{S_T0}, {640*1280}")
    a(f"s_cselect_b32 s{S_TSRD+2}, {1728*1280}, s{S_T0}")
    a(f"s_mov_b32 s{S_TSRD+3}, 0x00020000")
    a(f"s_mul_i32 s{S_T1}, s{S_T1}, {16*1280}")
    a(f"s_lshl_b32 s{S_T2}, s{S_T2}, 8")
    a(f"s_add_u32 s{S_T1}, s{S_T1}, s{S_T2}")
    a(f"v_lshlrev_b32 v{T}, 2, v1")
    for kk in range(16):
        if kk and kk % 3 == 0:
            a(f"s_add_u32 s{S_T1}, s{S_T1}, {3*1280}")
        a(f"buffer_load_dword v{V_TL+kk}, v{T}, s[{S_TSRD}:{S_TSRD+3}], s{S_T1} offen offset:{(kk%3)*1280}")
    a.label(f"k1_ntl{tag}")


def tr_stores(a, tag, nafter):
    T = V_T
    make_srd(a, S_SRDY, P_WS, WF_OFF, WF_SIZE)
    a(f"v_lshrrev_b32 v{T}, 4, v1")
    a(f"v_lshlrev_b32 v{T}, 10, v{T}")
    a(f"v_and_b32 v{T+1}, 15, v1")
    a(f"v_lshl_add_u32 v{T}, v{T+1}, 5, v{T}")
    a(f"s_mov_b32 s{S_T0}, 0x05040100")
    a(f"s_mov_b32 s{S_T1}, 0x07060302")
    a(f"s_waitcnt vmcnt({nafter})")
    for e in range(2):
        for h in range(2):
            dd = V_TR + (e * 2 + h) * 4
            for i, ka in enumerate((4 * h, 4 * h + 2, 8 + 4 * h, 8 + 4 * h + 2)):
                a(f"v_perm_b32 v{dd+i}, v{V_TL+ka+1}, v{V_TL+ka}, s{S_T1 if e else S_T0}")
            a(f"buffer_store_dwordx4 {vr(dd, 4)}, v{T}, s[{S_SRDY}:{S_SRDY+3}], s{S_TP} offen offset:{e*16 + h*512}")


def gen_k1(a):
    T = V_T
    kqk, kv, kh = Kind(True, 1, False), Kind(True, 1, True), Kind(False, 4, False)
    a.label("k1_kernel")
    tl_start(a)
    stamp(a, 0)
    a(f"s_cmp_ge_u32 s2, {K1_WGS}")
    a("s_cbranch_scc1 k1_end")
    load_ptrs(a)
    a("v_lshrrev_b32 v1, 6, v0")
    a("s_nop 0")
    a(f"v_readfirstlane_b32 s{S_WAVE}, v1")
    a("v_and_b32 v1, 63, v0")
    a(f"s_and_b32 s{S_T0}, s2, 1")
    a(f"s_lshl_b32 s{S_T0}, s{S_T0}, 3")
    a(f"s_bfe_u32 s{S_T1}, s2, 0x30003")
    a(f"s_add_u32 s{S_RT}, s{S_T0}, s{S_T1}")
    a(f"s_bfe_u32 s{S_T0}, s2, 0x20001")
    a(f"s_lshl_b32 s{S_T0}, s{S_T0}, 2")
    a(f"s_lshr_b32 s{S_T1}, s2, 6")
    a(f"s_add_u32 s{S_CT}, s{S_T0}, s{S_T1}")
    a(f"s_lshl_b32 s{S_T0}, s{S_RT}, 7")
    a(f"s_lshl_b32 s{S_T1}, s{S_WAVE}, 3")
    a(f"s_add_u32 s{S_T0}, s{S_T0}, s{S_T1}")
    a(f"s_mul_i32 s{S_AW}, s{S_T0}, 1280")
    a(f"s_mul_i32 s{S_BW}, s{S_CT}, 320")
    a(f"s_lshl_b32 s{S_MW}, s{S_WAVE}, 10")
    a(f"s_lshl_b32 s{S_T0}, s{S_CT}, 6")
    a(f"s_lshl_b32 s{S_T1}, s{S_CT}, 8")
    a(f"s_sub_u32 s{S_T1}, s{S_T1}, {12*256 - 768}")
    a(f"s_cmp_lt_u32 s{S_CT}, 12")
    a(f"s_cselect_b32 s{S_T4}, s{S_T0}, s{S_T1}")
    a(f"s_lshl_b32 s{S_T0}, s{S_T4}, 1")
    a(f"s_mul_i32 s{S_T1}, s{S_WAVE}, {8*3456}")
    a(f"s_add_u32 s{S_PW}, s{S_T0}, s{S_T1}")
    a(f"v_lshrrev_b32 v{T}, 3, v1")
    a(f"v_lshrrev_b32 v{T+1}, 4, v1")
    a(f"s_and_b32 s{S_T0}, s{S_WAVE}, 1")
    a(f"s_lshl_b32 s{S_T0}, s{S_T0}, 2")
    a(f"v_add_u32 v{T+3}, s{S_T0}, v{T+1}")
    a(f"v_and_b32 v{T+2}, 7, v1")
    a(f"v_xor_b32 v{T+3}, v{T+2}, v{T+3}")
    a(f"v_lshlrev_b32 v{T+3}, 4, v{T+3}")
    a(f"s_movk_i32 s{S_T0}, 1280")
    a(f"v_mad_u32_u24 v{V_DA}, v{T}, s{S_T0}, v{T+3}")
    a(f"v_and_b32 v{T+1}, 1, v{T+1}")
    a(f"v_lshlrev_b32 v{T+1}, 2, v{T+1}")
    a(f"v_xor_b32 v{T+3}, v{T+2}, v{T+1}")
    a(f"v_lshlrev_b32 v{T+3}, 4, v{T+3}")
    a(f"s_movk_i32 s{S_T0}, 3456")
    a(f"v_mad_u32_u24 v{V_DP}, v{T}, s{S_T0}, v{T+3}")
    a(f"v_lshlrev_b32 v{T}, 4, v1")
    a(f"v_add_u32 v{T}, s{S_MW}, v{T}")
    a(f"s_movk_i32 s{S_T0}, 205")
    a(f"s_movk_i32 s{S_T1}, {3840 - 320}")
    for i in range(5):
        a(f"v_add_u32 v{T+1}, {i*4096}, v{T}")
        a(f"v_lshrrev_b32 v{T+2}, 6, v{T+1}")
        a(f"v_mul_u32_u24 v{T+2}, s{S_T0}, v{T+2}")
        a(f"v_lshrrev_b32 v{T+2}, 10, v{T+2}")
        a(f"v_mad_u32_u24 v{V_DB+i}, v{T+2}, s{S_T1}, v{T+1}")
    a(f"v_and_b32 v{T}, 31, v1")
    a(f"v_lshrrev_b32 v{T+1}, 5, v1")
    a(f"v_bfe_u32 v{T+2}, v1, 1, 3")
    a(f"s_lshl_b32 s{S_T0}, s{S_WAVE}, 12")
    a(f"v_lshlrev_b32 v{T+3}, 7, v{T}")
    a(f"v_add_u32 v{T+3}, s{S_T0}, v{T+3}")
    for ks in range(4):
        a(f"v_add_u32 v{T+4}, {2*ks}, v{T+1}")
        a(f"v_xor_b32 v{T+4}, v{T+4}, v{T+2}")
        a(f"v_lshlrev_b32 v{T+4}, 4, v{T+4}")
        a(f"v_add_u32 v{V_AA+ks}, v{T+3}, v{T+4}")
    a(f"s_mov_b32 s{S_T0}, {STG}")
    a(f"s_mov_b32 s{S_T1}, {2*STG}")
    for ks in range(4):
        a(f"v_add_u32 v{V_AA+4+ks}, s{S_T0}, v{V_AA+ks}")
        a(f"v_add_u32 v{V_AA+8+ks}, s{S_T1}, v{V_AA+ks}")
    a(f"v_bfe_u32 v{T}, v1, 2, 2")
    a(f"v_and_b32 v{T+2}, 3, v1")
    a(f"v_bfe_u32 v{T+3}, v1, 4, 1")
    a(f"v_lshl_add_u32 v{T+4}, v{T+1}, 3, v{T}")
    a(f"v_lshlrev_b32 v{T+5}, 3, v{T+2}")
    a(f"v_lshl_add_u32 v{T+5}, v{T+3}, 5, v{T+5}")
    a(f"v_mul_u32_u24 v{T+6}, 320, v{T+4}")
    a(f"v_add_u32 v{T+6}, v{T+6}, v{T+5}")
    a(f"v_add_u32 v{V_BQ}, {QOFF}, v{T+6}")
    a(f"v_add_u32 v{V_BQ+1}, s{S_T0}, v{V_BQ}")
    a(f"v_add_u32 v{V_BQ+2}, s{S_T1}, v{V_BQ}")
    a(f"v_lshl_add_u32 v{T+6}, v{T+4}, 7, v{T+5}")
    a(f"v_lshrrev_b32 v{T+7}, 1, v{T}")
    for j in range(2):
        a(f"v_xor_b32 v{T+8}, {j}, v{T+7}")
        a(f"v_lshl_add_u32 v{V_BP+j}, v{T+8}, 6, v{T+6}")
        a(f"v_add_u32 v{V_BP+2+j}, s{S_T0}, v{V_BP+j}")
        a(f"v_add_u32 v{V_BP+4+j}, s{S_T1}, v{V_BP+j}")
    a("s_waitcnt lgkmcnt(0)")
    make_srd(a, S_SRDA, P_X, 0, 2048 * 1280)
    make_srd(a, S_SRDB, P_WQKV, 0, 640 * 3840)
    make_srd(a, S_SRDP, P_W1, 0, 640 * 3456)
    a(f"s_cmp_ge_u32 s{S_CT}, 12")
    a("s_cbranch_scc1 k1_h")
    a(f"s_cmp_ge_u32 s{S_CT}, 8")
    a("s_cbranch_scc1 k1_v")
    k1_main(a, kqk)
    EB = STG
    h_epilogue(a, kqk, EB + 40960)
    a(f"s_mov_b32 s{S_T0}, {f32bits(QSCALE)}")
    a(f"s_cmp_lt_u32 s{S_CT}, 4")
    a(f"s_cselect_b32 s{S_T4}, s{S_T0}, 1.0")
    a(f"s_mov_b32 s{S_T5}, s{S_T4}")
    a(f"s_movk_i32 s{S_T3}, 2560")
    a(f"s_cselect_b32 s{S_T3}, 1280, s{S_T3}")
    a(f"s_cselect_b32 s{S_T0}, {QF_OFF}, {KV_OFF}")
    a(f"s_mov_b32 s{S_T1}, {KV_SIZE}")
    a(f"s_cselect_b32 s{S_T1}, {QF_SIZE}, s{S_T1}")
    a(f"s_add_u32 s{S_SRDO}, s{P_WS}, s{S_T0}")
    a(f"s_addc_u32 s{S_SRDO+1}, s{P_WS+1}, 0")
    a(f"s_mov_b32 s{S_SRDO+2}, s{S_T1}")
    a(f"s_mov_b32 s{S_SRDO+3}, 0x00020000")
    a(f"s_mul_i32 s{S_T0}, s{S_WAVE}, 10240")
    a(f"s_add_u32 s{S_T0}, s{S_T0}, {EB}")
    a(f"v_and_b32 v{T}, 31, v1")
    a(f"v_lshrrev_b32 v{T+1}, 5, v1")
    a(f"v_lshlrev_b32 v{T+2}, 4, v{T}")
    a(f"v_add_u32 v{T+2}, s{S_T0}, v{T+2}")
    a(f"v_lshlrev_b32 v{T+3}, 3, v{T}")
    a(f"v_add_u32 v{T+3}, s{S_T0}, v{T+3}")
    a("v_cmp_gt_u32 vcc, 32, v1")

    def off(n):
        hd, d = n // 20, n % 20
        if d < 16:
            return hd * 1280 + (d >> 3) * 512 + ((d >> 2) & 1) * 8, False
        return hd * 1280 + 1024, True
    kk = 0
    for tn in range(5):
        for g in range(4):
            r = V_ACC + tn * 16 + 4 * g
            n0 = tn * 32 + 8 * g
            (c0, e0), (c1, e1) = off(n0), off(n0 + 4)
            ad = T + 4 + (kk % 2)
            dd = T + 6 + 2 * (kk % 2)
            kk += 1
            b0 = T + 3 if e0 else T + 2
            b1 = T + 3 if e1 else T + 2
            if e0 == e1:
                a(f"v_mad_u32_u24 v{ad}, v{T+1}, {c1 - c0}, v{b0}" if c1 - c0 <= 64 else f"v_mov_b32 v{ad}, {c1-c0}")
                if c1 - c0 > 64:
                    a(f"v_mad_u32_u24 v{ad}, v{T+1}, v{ad}, v{b0}")
            else:
                a(f"v_add_u32 v{ad}, {c1 - c0}, v{b1}")
                a(f"v_cndmask_b32 v{ad}, v{ad}, v{b0}, vcc")
            a(f"v_pk_mul_f32 v[{r}:{r+1}], v[{r}:{r+1}], s[{S_T4}:{S_T5}]")
            a(f"v_pk_mul_f32 v[{r+2}:{r+3}], v[{r+2}:{r+3}], s[{S_T4}:{S_T5}]")
            a(f"v_cvt_pk_bf16_f32 v{dd}, v{r}, v{r+1}")
            a(f"v_cvt_pk_bf16_f32 v{dd+1}, v{r+2}, v{r+3}")
            a(f"ds_write_b64 v{ad}, v[{dd}:{dd+1}] offset:{c0}")
    a(f"v_lshlrev_b32 v{T}, 4, v1")
    a(f"v_add_u32 v{T+1}, s{S_T0}, v{T}")
    a(f"v_lshrrev_b32 v{T+2}, 4, v1")
    a(f"s_and_b32 s{S_T0}, s{S_CT}, 3")
    a(f"s_lshl_b32 s{S_T0}, s{S_T0}, 9")
    a(f"s_lshl_b32 s{S_T1}, s{S_RT}, 2")
    a(f"s_add_u32 s{S_T0}, s{S_T0}, s{S_T1}")
    a(f"s_add_u32 s{S_T0}, s{S_T0}, s{S_WAVE}")
    a(f"s_mul_i32 s{S_T0}, s{S_T0}, s{S_T3}")
    a(f"s_lshl_b32 s{S_T1}, s{S_T3}, 6")
    a(f"s_sub_u32 s{S_T1}, s{S_T1}, 1280")
    a(f"s_movk_i32 s{S_T2}, 205")
    a("s_waitcnt lgkmcnt(0)")
    QD = V_FR + 16
    for i in range(10):
        a(f"ds_read_b128 {vr(QD + 4*i, 4)}, v{T+1} offset:{i*1024}")
    for i in range(10):
        ad = V_ACC + i
        a(f"v_add_u32 v{ad}, {4*i}, v{T+2}")
        a(f"v_mul_u32_u24 v{ad}, s{S_T2}, v{ad}")
        a(f"v_lshrrev_b32 v{ad}, 10, v{ad}")
        a(f"v_mul_lo_u32 v{ad}, v{ad}, s{S_T1}")
        a(f"v_add_u32 v{ad}, v{ad}, v{T}")
        if i:
            a(f"v_add_u32 v{ad}, {i*1024}, v{ad}")
    for i in range(10):
        a(f"s_waitcnt lgkmcnt({9-i})")
        a(f"buffer_store_dwordx4 {vr(QD + 4*i, 4)}, v{V_ACC+i}, s[{S_SRDO}:{S_SRDO+3}], s{S_T0} offen{SC1}")
    stamp_out(a, 6)
    tl_end(a, 0)
    a("s_endpgm")
    a.label("k1_v")
    k1_main(a, kv)
    h_epilogue(a, kv, EB)
    make_srd(a, S_SRDO, P_WS, KV_OFF, KV_SIZE)
    a(f"v_and_b32 v{T}, 31, v1")
    a(f"v_lshrrev_b32 v{T+1}, 5, v1")
    a(f"v_mul_u32_u24 v{T+1}, 320, v{T+1}")
    a(f"v_add_u32 v{T+1}, 1280, v{T+1}")
    a(f"s_sub_u32 s{S_T0}, s{S_CT}, 8")
    a(f"s_lshl_b32 s{S_T0}, s{S_T0}, 9")
    a(f"s_lshl_b32 s{S_T1}, s{S_RT}, 2")
    a(f"s_add_u32 s{S_T0}, s{S_T0}, s{S_T1}")
    a(f"s_add_u32 s{S_T0}, s{S_T0}, s{S_WAVE}")
    a(f"s_mul_i32 s{S_T0}, s{S_T0}, 2560")
    a(f"s_movk_i32 s{S_T3}, 3277")
    a(f"s_mov_b32 s{S_T2}, {64*2560}")
    VD = V_FR + 16
    for tn in range(5):
        a(f"v_add_u32 v{T+2}, {tn*32}, v{T}")
        a(f"v_mul_u32_u24 v{T+3}, s{S_T3}, v{T+2}")
        a(f"v_lshrrev_b32 v{T+3}, 16, v{T+3}")
        a(f"v_mul_u32_u24 v{T+4}, 20, v{T+3}")
        a(f"v_sub_u32 v{T+4}, v{T+2}, v{T+4}")
        a(f"v_mul_lo_u32 v{T+3}, v{T+3}, s{S_T2}")
        a(f"v_lshl_add_u32 v{T+5}, v{T+4}, 4, v{T+1}")
        a(f"v_add_u32 v{VD+40+tn}, v{T+5}, v{T+3}")
        for m in range(2):
            r = V_ACC + tn * 16 + 8 * m
            dd = VD + (tn * 2 + m) * 4
            for i in range(4):
                a(f"v_cvt_pk_bf16_f32 v{dd+i}, v{r+2*i}, v{r+2*i+1}")
            a(f"buffer_store_dwordx4 v[{dd}:{dd+3}], v{VD+40+tn}, s[{S_SRDO}:{S_SRDO+3}], s{S_T0} offen offset:{m*640}{SC1}")
    stamp_out(a, 6)
    tl_end(a, 0)
    a("s_endpgm")
    a.label("k1_h")
    k1_main(a, kh)
    h_epilogue(a, kh, EB)
    stamp_out(a, 6)
    tl_end(a, 0)
    a.label("k1_end")
    a("s_endpgm")
    return dict(name="k1_kernel", vgpr=V_ACC + 128, sgpr=96, grid=K1_WGS, block=256, lds=K1_S * STG)


def gen_gate(a, s_idx, wave8=True):
    make_srd(a, S_SRDA, P_X, 0, 2048 * 1280)
    make_srd(a, S_SRDB, P_GW, 0, 1280)
    make_srd(a, S_SRDO, P_WS, G_OFF, G_SIZE)
    a("v_and_b32 v2, 15, v1")
    a("v_lshrrev_b32 v3, 4, v1")
    a("v_lshlrev_b32 v4, 4, v2")
    for i in range(5):
        a(f"buffer_load_dwordx4 v[{24+4*i}:{27+4*i}], v4, s[{S_SRDB}:{S_SRDB+3}], 0 offen offset:{i*256}")
    a(f"s_lshl_b32 s{S_T0}, s{s_idx}, 8")
    a(f"s_lshl_b32 s{S_T1}, s{S_WAVE}, 5")
    a(f"s_add_u32 s{S_T0}, s{S_T0}, s{S_T1}")
    a(f"v_add_u32 v5, s{S_T0}, v3")
    a(f"v_mul_u32_u24 v6, 1280, v5")
    a(f"v_add_u32 v6, v6, v4")
    a(f"v_lshlrev_b32 v7, 2, v5")
    a("v_cmp_eq_u32 vcc, 0, v2")
    a(f"s_mov_b64 s[{S_EX0}:{S_EX0+1}], vcc")
    for p in range(8):
        for i in range(5):
            a(f"s_mov_b32 s{S_T0}, {p*4*1280}")
            a(f"buffer_load_dwordx4 v[{48+4*i}:{51+4*i}], v6, s[{S_SRDA}:{S_SRDA+3}], s{S_T0} offen offset:{i*256}")
        a("s_waitcnt vmcnt(0)")
        a("v_mov_b32 v8, 0")
        for i in range(20):
            a(f"v_dot2_f32_bf16 v8, v{24+i}, v{48+i}, v8")
        a("s_nop 3")
        for sh in (8, 4, 2, 1):
            a("s_nop 1")
            a(f"v_add_f32_dpp v8, v8, v8 row_ror:{sh} row_mask:0xf bank_mask:0xf")
        a("s_nop 1")
        a("v_cvt_pk_bf16_f32 v8, v8, v8")
        a("v_lshlrev_b32 v8, 16, v8")
        a(f"v_mul_f32 v8, {f32bits(-math.log2(math.e))}, v8")
        a("v_exp_f32 v8, v8")
        a("s_nop 0")
        a("v_add_f32 v8, 1.0, v8")
        a("v_rcp_f32 v8, v8")
        a("s_nop 0")
        a("v_cvt_pk_bf16_f32 v8, v8, v8")
        a("v_lshlrev_b32 v8, 16, v8")
        a(f"s_mov_b64 exec, s[{S_EX0}:{S_EX0+1}]")
        a(f"buffer_store_dword v8, v7, s[{S_SRDO}:{S_SRDO+3}], 0 offen offset:{p*16}")
        a("s_mov_b64 exec, -1")
        a("s_nop 1")
    a("s_endpgm")
```

```python
import math
from gen import *

K2_WGS = 256
CHUNK = 40960
WIN = 24

V_DMA = 2
V_KE = 3
V_VV = 4
V_KM = 5
V_D13 = 6
V_G = 7
V_TMP = 8
V_Q1 = 12
V_Q2 = 16
V_K = 20
V_V = 36
V_P = 52
V_S = 60
V_O = 92
V_ACC = 108
V_RA = 188
V_RB = 200
NA, NB = 3, 14
NSTEP = 27
S_HEAD = 37
S_QT = 38
S_RB = 45
S_CB = 46
S_VMASK = 62
S_SRDH = 64
S_SRDW = 68
S_FA = 72
S_FB = 73
S_KQ = 74
S_FB2 = 75
S_M5 = 47
S_ST = 76


def stamp(a, i):
    if 'fstamp' in DBG:
        a(f"{'s_memtime' if 'cyc' in DBG else 's_memrealtime'} s[{S_ST+2*i}:{S_ST+2*i+1}]")


def stamp_out(a, n, T):
    if 'fstamp' not in DBG: return
    a("s_waitcnt vmcnt(0)")
    stamp(a, n - 1)
    a("s_waitcnt lgkmcnt(0)")
    make_srd(a, S_SRDY, P_WS, 0x2000000, 0x100000)
    a(f"s_lshl_b32 s{S_T5}, s2, 3")
    a(f"s_add_u32 s{S_T5}, s{S_T5}, s{S_WAVE}")
    a(f"s_lshl_b32 s{S_T5}, s{S_T5}, 6")
    a(f"v_mov_b32 v{T+2}, s{S_T5}")
    a("s_mov_b64 exec, 1")
    for i in range(n):
        a(f"v_mov_b32 v{T+3}, s{S_ST+2*i}")
        a(f"buffer_store_dword v{T+3}, v{T+2}, s[{S_SRDY}:{S_SRDY+3}], 0 offen offset:{4*i}")
    a("s_mov_b64 exec, -1")


def role(a, tg):
    T = V_TMP
    vm = VM()
    vm.add('q'); vm.add('q')
    F = tg == 0
    nt = 3 if F else 2
    j0 = 3 * tg
    L = lambda x: f'{x}_{tg}'

    def att_dma1(c, i):
        a(f"s_add_u32 m0, s{S_MW}, {c*CHUNK + i*8192}")
        a(f"s_add_u32 s{S_T0}, s{S_AW}, {c*CHUNK + i*8192}")
        a(f"buffer_load_dwordx4 v{V_DMA}, s[{S_SRDA}:{S_SRDA+3}], s{S_T0} offen lds")
        vm.add(('c', c))

    def att_dma(c):
        for i in range(5): att_dma1(c, i)

    WL = [(sl, jj) for sl in range(10) for jj in range(nt)]
    NSTG = 13 if F else 0
    ring_free = []
    BQ = {}
    for i in range(NSTG): BQ[WL[i]] = 12 + 4 * i if i < 10 else 60 + 4 * (i - 10)
    AQ = [72 + 4 * i for i in range(9)] + [52]
    stg_off = lambda i: (i // 10) * CHUNK + (i % 10) * 1024

    def wo_stage(i):
        sl, jj = WL[i]
        a(f"s_add_u32 m0, s{S_M5}, {stg_off(i)}")
        a(f"s_add_u32 s{S_T0}, s{S_FB2}, {sl*20480 + jj*1024}")
        a(f"buffer_load_dwordx4 v{V_DMA}, s[{S_SRDW}:{S_SRDW+3}], s{S_T0} offen lds")
        vm.add(('ws', i))

    def wo_reg(reg):
        i = NSTG + len(ring_free)
        ring_free.append(reg)
        sl, jj = WL[i]
        BQ[WL[i]] = reg
        a(f"s_add_u32 s{S_T0}, s{S_FB2}, {sl*20480 + jj*1024}")
        a(f"buffer_load_dwordx4 {vr(reg, 4)}, v{V_DMA}, s[{S_SRDW}:{S_SRDW+3}], s{S_T0} offen")
        vm.add(('wr', i))

    def read_k(t):
        if 'xlds' in DBG and t > 2: return
        kb = t % 2
        if t and t % WIN == 0:
            a(f"v_add_u32 v{V_KM}, {WIN*2560}, v{V_KM}")
            a(f"v_add_u32 v{V_KE}, {WIN*2560}, v{V_KE}")
        off = (t % WIN) * 2560
        a(f"ds_read_b128 {vr(V_K + 8*kb, 4)}, v{V_KM} offset:{off}")
        a(f"ds_read_b32 v{V_K + 8*kb + 4}, v{V_KE} offset:{off}")

    def read_v(t):
        if 'xlds' in DBG and t > 2: return
        vb = t % 2
        if t and t % WIN == 0:
            a(f"v_add_u32 v{V_VV}, {WIN*2560}, v{V_VV}")
        off = (t % WIN) * 2560
        a(f"s_mov_b64 exec, s[{S_VMASK}:{S_VMASK+1}]")
        for m in range(2):
            a(f"ds_read_b128 {vr(V_V + 8*vb + 4*m, 4)}, v{V_VV} offset:{off + m*640}")
        a("s_mov_b64 exec, -1")

    def qk(t, which):
        if 'xqk2' in DBG and which == 1: return
        kb = t % 2
        S = vr(V_S + 16 * (t % 2), 16)
        if which == 0:
            a(f"v_mfma_f32_32x32x16_bf16 {S}, {vr(V_K + 8*kb, 4)}, {vr(V_Q1, 4)}, 0")
        elif 'q16' not in DBG:
            a(f"v_mfma_f32_32x32x8_bf16 {S}, {vr(V_K + 8*kb + 4, 2)}, {vr(V_Q2, 2)}, {S}")
        else:
            a(f"v_mfma_f32_32x32x16_bf16 {S}, {vr(V_K + 8*kb + 4, 4)}, {vr(V_Q2, 4)}, {S}")

    def pv(t, m):
        if 'xpv' in DBG and t > 0: return
        vb = t % 2
        O = vr(V_O, 16)
        cin = "0" if (t == 0 and m == 0) else O
        a(f"v_mfma_f32_32x32x16_bf16 {O}, {vr(V_V + 8*vb + 4*m, 4)}, {vr(V_P + 4*m, 4)}, {cin}")

    def ld_a(i):
        if i >= NSTEP: return wo_reg(V_RA + 4*(i % NA))
        if 'nofl' in DBG: return
        vo = V_DMA
        a(f"s_add_u32 s{S_T0}, s{S_FA}, {i*4*1024}")
        a(f"buffer_load_dwordx4 {vr(V_RA + 4*(i % NA), 4)}, v{vo}, s[{S_SRDH}:{S_SRDH+3}], s{S_T0} offen")
        vm.add(('a', i))

    def ld_b(m):
        if m >= NSTEP * 5: return wo_reg(V_RB + 4*(m % NB))
        if 'nofl' in DBG: return
        i, j = divmod(m, 5)
        vo = V_DMA
        a(f"s_add_u32 s{S_T0}, s{S_FB}, {i*4*20480 + j*1024}")
        a(f"buffer_load_dwordx4 {vr(V_RB + 4*(m % NB), 4)}, v{vo}, s[{S_SRDW}:{S_SRDW+3}], s{S_T0} offen")
        vm.add(('b', m))

    def ffn(m):
        i, j = divmod(m, 5)
        acc = vr(V_ACC + 16 * j, 16)
        if 'nofl' not in DBG and 'nofw' not in DBG:
            a(f"s_waitcnt vmcnt({vm.need(('a', i), ('b', m))})")
        if 'nofm' not in DBG: a(f"v_mfma_f32_32x32x16_bf16 {acc}, {vr(V_RB + 4*(m % NB), 4)}, {vr(V_RA + 4*(i % NA), 4)}, {'0' if i == 0 else acc}")
        ld_b(m + NB)
        if j == 4:
            ld_a(i + NA)

    att_dma(0)
    make_srd(a, S_SRDH, P_WS, H_OFF, H_SIZE)
    make_srd(a, S_SRDW, P_WS, WF_OFF, WF_SIZE)
    make_srd(a, S_SRDO, P_WS, O_OFF, O_SIZE)
    a(f"s_and_b32 s{S_KQ}, s{S_WAVE}, 3")
    a(f"s_mul_i32 s{S_FB2}, s{S_KQ}, 200")
    a(f"s_mul_i32 s{S_T0}, s{S_CB}, 5")
    a(f"s_add_u32 s{S_FB2}, s{S_FB2}, s{S_T0}")
    a(f"s_lshr_b32 s{S_T0}, s{S_WAVE}, 2")
    a(f"s_mul_i32 s{S_T0}, s{S_T0}, 3")
    a(f"s_add_u32 s{S_FB2}, s{S_FB2}, s{S_T0}")
    a(f"s_add_u32 s{S_FB2}, s{S_FB2}, {108*20}")
    a(f"s_lshl_b32 s{S_FB2}, s{S_FB2}, 10")
    a(f"s_mul_i32 s{S_M5}, s{S_WAVE}, 10240")
    if F:
        ld_a(0)
        for m in range(5): ld_b(m)
    att_dma(1)
    make_srd(a, S_SRDY, P_WS, G_OFF, G_SIZE)
    a(f"v_lshlrev_b32 v{T+2}, 2, v{T}")
    a(f"s_lshl_b32 s{S_T0}, s{S_RB}, 7")
    a(f"buffer_load_dword v{V_G}, v{T+2}, s[{S_SRDY}:{S_SRDY+3}], s{S_T0} offen")
    vm.add('g')
    dq = []
    if F:
        dq = [lambda: ld_a(1)] + [(lambda m: lambda: ld_b(m))(m) for m in range(5, 10)] + [lambda: ld_a(2)] + [(lambda m: lambda: ld_b(m))(m) for m in range(10, NB)]
    dq += [(lambda c, i: lambda: att_dma1(c, i))(c, i) for c in (2, 3) for i in range(5)]
    for r in (V_Q2 + 1, V_Q2 + 2, V_Q2 + 3, V_K + 6, V_K + 7, V_K + 14, V_K + 15):
        a(f"v_mov_b32 v{r}, 0")
    a("v_cmp_gt_u32 vcc, 32, v1")
    a(f"v_mov_b32 v{T+2}, 0x3f80")
    a("s_nop 1")
    a(f"v_cndmask_b32 v{V_K+5}, 0, v{T+2}, vcc")
    a(f"v_cndmask_b32 v{V_K+13}, 0, v{T+2}, vcc")
    a(f"v_cmp_eq_u32 vcc, 20, v{T}")
    a(f"v_cmp_eq_u32 s[{S_EX0}:{S_EX0+1}], 24, v{T}")
    a(f"s_or_b64 vcc, vcc, s[{S_EX0}:{S_EX0+1}]")
    a(f"v_mov_b32 v{T+2}, 0x3f803f80")
    a("s_nop 1")
    a(f"v_cndmask_b32 v{T+2}, 0, v{T+2}, vcc")
    for r in range(16):
        a(f"v_mov_b32 v{V_V + r}, v{T+2}")
    a(f"s_mov_b32 s{S_VMASK}, 0x000fffff")
    a(f"s_mov_b32 s{S_VMASK+1}, 0x000fffff")
    a(f"s_waitcnt vmcnt({vm.need('q', ('c', 0))})")
    a("s_barrier")
    stamp(a, 1)
    read_k(0)
    read_k(1)
    read_v(0)
    a("s_waitcnt lgkmcnt(4)")
    qk(0, 0)
    qk(0, 1)
    a("s_nop 15")
    a("s_nop 3")
    S0 = V_S
    a(f"v_max3_f32 v{T}, v{S0}, v{S0+1}, v{S0+2}")
    for i in range(3, 15, 2):
        a(f"v_max3_f32 v{T}, v{T}, v{S0+i}, v{S0+i+1}")
    a(f"v_max_f32 v{T}, v{T}, v{S0+15}")
    a(f"v_mov_b32 v{T+1}, v{T}")
    a("s_nop 1")
    a(f"v_permlane32_swap_b32 v{T}, v{T+1}")
    a("s_nop 1")
    a(f"v_max_f32 v{T}, v{T}, v{T+1}")
    a(f"v_sub_f32 v{T}, 0, v{T}")
    a(f"v_cvt_pk_bf16_f32 v{V_Q2+1}, v{T}, 0")
    a("s_nop 1")
    qk(0, 0)
    qk(0, 1)
    a("s_nop 7")
    NT = 64
    NM = NSTEP * 5 if F else 0
    T0, T1 = 2, 63
    cnt = lambda t: min(NM, max(0, ((t - T0) * NM + (T1 - T0) - 1) // (T1 - T0)))
    for t in range(NT):
        S = V_S + 16 * (t % 2)
        e = lambda i: a(f"v_exp_f32 v{S+i}, v{S+i}")
        cv = lambda i: a(f"v_cvt_pk_bf16_f32 v{V_P+i}, v{S+2*i}, v{S+2*i+1}")
        fl = list(range(cnt(t), cnt(t + 1)))
        assert len(fl) <= 3
        if t + 1 < NT:
            a("s_waitcnt lgkmcnt(2)")
            qk(t + 1, 0)
        for i in range(4):
            e(i)
        if t > 0:
            pv(t - 1, 1)
        nout = 0
        if t in (14, 30, 46):
            a(f"s_waitcnt vmcnt({vm.need(('c', (t + 2) // 16))})")
            a("s_barrier")
            if t >= 30 and F:
                dq += [(lambda i: lambda: wo_stage(i))(i) for i in (range(10) if t == 30 else range(10, 13))]
            if t == 30 and not F:
                dq += [(lambda i: lambda: wo_reg(176 + 4 * i))(i) for i in range(20)]
        if t + 2 < NT:
            read_k(t + 2)
            nout += 2
        if t + 1 < NT:
            read_v(t + 1)
            nout += 2
        e(4)
        e(5)
        if len(fl) == 3: ffn(fl.pop(0))
        e(6)
        e(7)
        if t + 1 < NT:
            qk(t + 1, 1)
        for i in range(4):
            cv(i)
        for _ in range(3 if t < 8 else 1):
            if dq: dq.pop(0)()
        e(8)
        e(9)
        a(f"s_waitcnt lgkmcnt({nout})")
        pv(t, 0)
        for i in range(10, 14):
            e(i)
        if fl: ffn(fl.pop(0))
        e(14)
        e(15)
        for i in range(4, 8):
            cv(i)
        if fl: ffn(fl.pop(0))
    assert not dq and len(ring_free) == (17 if F else 20), len(ring_free)
    a("s_nop 1")
    pv(NT - 1, 1)
    a("s_nop 15")
    a("s_nop 3")
    stamp(a, 2)
    a("v_cmp_gt_u32 vcc, 32, v1")
    a(f"s_mov_b32 s{S_T0}, 0x5f800000")
    a(f"s_movk_i32 s{S_T1}, 0x207")
    a(f"v_cndmask_b32 v{T}, v{V_O+8}, v{V_O+12}, vcc")
    a(f"v_cmp_nlt_f32 vcc, v{T}, s{S_T0}")
    a(f"s_mov_b32 s{S_T0}, 0x1f800000")
    a(f"v_cmp_ngt_f32 s[{S_EX0}:{S_EX0+1}], v{T}, s{S_T0}")
    a(f"s_or_b64 vcc, vcc, s[{S_EX0}:{S_EX0+1}]")
    for r in range(16):
        a(f"v_cmp_class_f32 s[{S_EX0}:{S_EX0+1}], v{V_O+r}, s{S_T1}")
        a(f"s_or_b64 vcc, vcc, s[{S_EX0}:{S_EX0+1}]")
    if 'forcefb' not in DBG:
        a("s_cbranch_vccz " + L("k2_norm"))
    M = T + 2
    a(f"v_mov_b32 v{M}, 0xff800000")
    a(f"v_mov_b32 v{V_Q2+1}, 0")
    a(f"v_subrev_u32 v{V_KE}, {2*WIN*2560}, v{V_KE}")
    a(f"v_subrev_u32 v{V_VV}, {2*WIN*2560}, v{V_VV}")
    for r in range(16):
        a(f"v_mov_b32 v{V_O+r}, 0")
    a(f"s_mul_i32 s{S_T0}, s{S_HEAD}, {64*2560}")
    a(f"s_mov_b32 s{S_T1}, 64")
    a.label(L("k2_slow"))
    a(f"buffer_load_dwordx4 {vr(V_K,4)}, v{V_DMA}, s[{S_SRDA}:{S_SRDA+3}], s{S_T0} offen")
    a(f"buffer_load_dword v{V_K+4}, v{V_KE}, s[{S_SRDA}:{S_SRDA+3}], s{S_T0} offen")
    a(f"s_mov_b64 exec, s[{S_VMASK}:{S_VMASK+1}]")
    a(f"buffer_load_dwordx4 {vr(V_V,4)}, v{V_VV}, s[{S_SRDA}:{S_SRDA+3}], s{S_T0} offen")
    a(f"buffer_load_dwordx4 {vr(V_V+4,4)}, v{V_VV}, s[{S_SRDA}:{S_SRDA+3}], s{S_T0} offen offset:640")
    a("s_mov_b64 exec, -1")
    a("s_waitcnt vmcnt(0)")
    a(f"v_mfma_f32_32x32x16_bf16 {vr(V_S,16)}, {vr(V_K,4)}, {vr(V_Q1,4)}, 0")
    a(f"v_mfma_f32_32x32x16_bf16 {vr(V_S,16)}, {vr(V_K+4,4)}, {vr(V_Q2,4)}, {vr(V_S,16)}")
    a("s_nop 15")
    a("s_nop 3")
    a(f"v_max3_f32 v{T}, v{S0}, v{S0+1}, v{S0+2}")
    for i in range(3, 15, 2):
        a(f"v_max3_f32 v{T}, v{T}, v{S0+i}, v{S0+i+1}")
    a(f"v_max_f32 v{T}, v{T}, v{S0+15}")
    a(f"v_mov_b32 v{T+1}, v{T}")
    a("s_nop 1")
    a(f"v_permlane32_swap_b32 v{T}, v{T+1}")
    a("s_nop 1")
    a(f"v_max3_f32 v{T}, v{T}, v{T+1}, v{M}")
    a(f"v_sub_f32 v{T+1}, v{M}, v{T}")
    a(f"v_exp_f32 v{T+1}, v{T+1}")
    a(f"v_mov_b32 v{M}, v{T}")
    for r in range(16):
        a(f"v_sub_f32 v{S0+r}, v{S0+r}, v{T}")
        a(f"v_exp_f32 v{S0+r}, v{S0+r}")
    for r in range(16):
        a(f"v_mul_f32 v{V_O+r}, v{V_O+r}, v{T+1}")
    for i in range(8):
        a(f"v_cvt_pk_bf16_f32 v{V_P+i}, v{S0+2*i}, v{S0+2*i+1}")
    a("s_nop 3")
    a(f"v_mfma_f32_32x32x16_bf16 {vr(V_O,16)}, {vr(V_V,4)}, {vr(V_P,4)}, {vr(V_O,16)}")
    a(f"v_mfma_f32_32x32x16_bf16 {vr(V_O,16)}, {vr(V_V+4,4)}, {vr(V_P+4,4)}, {vr(V_O,16)}")
    a("s_nop 15")
    a("s_nop 3")
    a(f"s_add_u32 s{S_T0}, s{S_T0}, 2560")
    a(f"s_sub_u32 s{S_T1}, s{S_T1}, 1")
    a(f"s_cmp_lg_u32 s{S_T1}, 0")
    a("s_cbranch_scc1 " + L("k2_slow"))
    a.label(L("k2_norm"))
    stamp(a, 3)
    a("v_cmp_gt_u32 vcc, 32, v1")
    a("s_nop 1")
    a(f"v_cndmask_b32 v{T}, v{V_O+8}, v{V_O+12}, vcc")
    a(f"v_rcp_f32 v{T+1}, v{T}")
    a(f"v_lshrrev_b32 v{T+2}, 5, v1")
    a(f"s_mul_i32 s{S_T1}, s{S_HEAD}, 5")
    a(f"v_add_u32 v{T+2}, s{S_T1}, v{T+2}")
    a(f"v_and_b32 v{T+3}, 31, v1")
    a(f"v_lshlrev_b32 v{T+3}, 4, v{T+3}")
    for r in range(12):
        a(f"v_mul_f32 v{V_O+r}, v{V_O+r}, v{T+1}")
    for r in range(6):
        a(f"v_cvt_pk_bf16_f32 v{V_P+r}, v{V_O+2*r}, v{V_O+2*r+1}")
    for r in range(6):
        a(f"v_min_u32 v{V_P+r}, -2, v{V_P+r}")
    AD = V_S
    for p in range(3):
        k4, x = AD + 4 * p, AD + 4 * p + 1
        a(f"v_add_u32 v{k4}, {2*p}, v{T+2}")
        a(f"v_lshrrev_b32 v{x}, 2, v{k4}")
        a(f"v_lshl_add_u32 v{x}, v{x}, 10, v{T+3}")
        a(f"v_and_b32 v{x+1}, 1, v{k4}")
        a(f"v_lshl_add_u32 v{x}, v{x+1}, 9, v{x}")
        a(f"v_bfe_u32 v{x+1}, v{k4}, 1, 1")
        a(f"v_lshl_add_u32 v{x}, v{x+1}, 3, v{x}")
    a(f"s_mul_i32 s{S_T0}, s{S_QT}, 40960")
    a(f"buffer_store_dwordx2 v[{V_P}:{V_P+1}], v{AD+1}, s[{S_SRDO}:{S_SRDO+3}], s{S_T0} offen sc1")
    a(f"buffer_store_dwordx2 v[{V_P+2}:{V_P+3}], v{AD+5}, s[{S_SRDO}:{S_SRDO+3}], s{S_T0} offen sc1")
    a("s_mov_b64 exec, vcc")
    a(f"buffer_store_dwordx2 v[{V_P+4}:{V_P+5}], v{AD+9}, s[{S_SRDO}:{S_SRDO+3}], s{S_T0} offen sc1")
    a("s_mov_b64 exec, -1")
    stamp(a, 4)
    a(f"v_add_u32 v{V_KE}, s{S_M5}, v{V_DMA}")
    a(f"s_mul_i32 s{S_T0}, s{S_WAVE}, 20480")
    a(f"v_add_u32 v{V_KM}, s{S_T0}, v{V_DMA}")
    make_srd(a, S_SRDB, P_OUT, 0, O_SIZE)
    a(f"s_mul_i32 s{S_FA}, s{S_RB}, 40")
    a(f"s_mul_i32 s{S_T0}, s{S_KQ}, 10")
    a(f"s_add_u32 s{S_FA}, s{S_FA}, s{S_T0}")
    a(f"s_lshl_b32 s{S_FA}, s{S_FA}, 10")
    if F:
        a(f"s_waitcnt vmcnt({vm.need(('ws', NSTG - 1)) + 3})")
        for i in range(NSTG):
            a(f"ds_read_b128 {vr(BQ[WL[i]], 4)}, v{V_KE} offset:{stg_off(i)}")

    def a_loads():
        for sl in range(10):
            if sl % 4 == 0:
                a(f"s_add_u32 s{S_T0}, s{S_FA}, {sl*1024}")
            a(f"buffer_load_dwordx4 {vr(AQ[sl], 4)}, v{V_DMA}, s[{S_SRDO}:{S_SRDO+3}], s{S_T0} offen offset:{(sl%4)*1024} sc1")
    a("s_waitcnt lgkmcnt(0)")
    a("s_barrier")
    stamp(a, 5)
    V_BF = 156
    V_AC = 108

    if True:
        for j in range(5 if F else 0):
            for q in range(4):
                a(f"ds_write_b128 v{V_KM}, {vr(V_ACC + 16*j + 4*q, 4)} offset:{(j*4+q)*1024}")
        a(f"s_lshl_b32 s{S_T0}, s{S_KQ}, 10")
        a(f"s_add_u32 s{S_T0}, s{S_T0}, {j0*4096}")
        a(f"v_add_u32 v{T}, s{S_T0}, v{V_DMA}")
        a(f"v_add_u32 v{T+1}, {3*20480}, v{T}")
        a("s_waitcnt lgkmcnt(0)")
        a("s_barrier")
        stamp(a, 6)
        for jj in range(nt):
            for w in range(4):
                a(f"ds_read_b128 {vr(V_AC + 16*jj + 4*w, 4)}, v{T + w//3} offset:{(w%3)*20480 + jj*4096}")
        for jj in range(nt):
            tb = V_AC + 16 * jj
            a(f"s_waitcnt lgkmcnt({4*(nt-1-jj)})")
            for i in range(4):
                a(f"v_add_f32 v{tb+i}, v{tb+i}, v{tb+4+i}")
                a(f"v_add_f32 v{tb+8+i}, v{tb+8+i}, v{tb+12+i}")
            for i in range(4):
                a(f"v_add_f32 v{tb+i}, v{tb+i}, v{tb+8+i}")
            a(f"v_cvt_pk_bf16_f32 v{V_BF+2*jj}, v{tb}, v{tb+1}")
            a(f"v_cvt_pk_bf16_f32 v{V_BF+2*jj+1}, v{tb+2}, v{tb+3}")
        a("s_barrier")
        stamp(a, 7)
        a_loads()
        a(f"s_mul_i32 s{S_T0}, s{S_WAVE}, 12288")
        a(f"v_add_u32 v{T}, s{S_T0}, v{V_DMA}")
        a(f"s_lshl_b32 s{S_T0}, s{S_KQ}, 10")
        a(f"s_add_u32 s{S_T0}, s{S_T0}, {tg*49152}")
        a(f"v_add_u32 v{T+1}, s{S_T0}, v{V_DMA}")
        a(f"v_and_b32 v{T+2}, 31, v1")
        a(f"v_mul_u32_u24 v{T+2}, 1280, v{T+2}")
        a(f"v_lshrrev_b32 v{T+3}, 5, v1")
        a(f"v_lshl_add_u32 v{T+2}, v{T+3}, 3, v{T+2}")
        a(f"s_mul_i32 s{S_T1}, s{S_RB}, 40960")
        a(f"s_mul_i32 s{S_T0}, s{S_CB}, 320")
        a(f"s_add_u32 s{S_T1}, s{S_T1}, s{S_T0}")
        a(f"s_lshl_b32 s{S_T0}, s{S_KQ}, 4")
        a(f"s_add_u32 s{S_T1}, s{S_T1}, s{S_T0}")
        a(f"v_sub_f32 v{T+3}, 1.0, v{V_G}")
        a(f"v_cvt_pk_bf16_f32 v{T+3}, v{T+3}, v{T+3}")
        a(f"v_lshlrev_b32 v{T+3}, 16, v{T+3}")
        a(f"s_mov_b32 s{S_T2}, 0xffff0000")
        X = V_BF + 6
        for r in range(2 * nt):
            a(f"v_lshlrev_b32 v{X}, 16, v{V_BF+r}")
            a(f"v_and_b32 v{X+1}, s{S_T2}, v{V_BF+r}")
            a(f"v_mul_f32 v{X}, v{X}, v{T+3}")
            a(f"v_mul_f32 v{X+1}, v{X+1}, v{T+3}")
            a(f"v_cvt_pk_bf16_f32 v{V_BF+r}, v{X}, v{X+1}")
        a.label(f"k2_poll{tg}")
        a("s_waitcnt vmcnt(0)")
        regs = [AQ[sl] + i for sl in range(10) for i in range(4)]
        a(f"v_max3_u32 v{X}, v{regs[0]}, v{regs[1]}, v{regs[2]}")
        a(f"v_max3_u32 v{X+1}, v{regs[3]}, v{regs[4]}, v{regs[5]}")
        for i in range(6, 40, 4) if False else []:
            pass
        rest = regs[6:]
        k = 0
        while rest:
            a(f"v_max3_u32 v{X+k}, v{X+k}, v{rest[0]}, v{rest[1]}")
            rest = rest[2:]
            k ^= 1
        a(f"v_max_u32 v{X}, v{X}, v{X+1}")
        a(f"v_cmp_eq_u32 vcc, -1, v{X}")
        a(f"s_cbranch_vccz k2_pdone{tg}")
        a("s_sleep 2")
        a_loads()
        a(f"s_branch k2_poll{tg}")
        a.label(f"k2_pdone{tg}")
        stamp(a, 8)
        for sl in range(10):
            for jj in range(nt):
                acc = vr(V_AC + 16 * jj, 16)
                a(f"v_mfma_f32_32x32x16_bf16 {acc}, {vr(BQ[(sl, jj)], 4)}, {vr(AQ[sl], 4)}, {'0' if sl == 0 else acc}")
        a("s_nop 15")
        a("s_nop 3")
        for jj in range(nt):
            for q in range(4):
                a(f"ds_write_b128 v{T}, {vr(V_AC + 16*jj + 4*q, 4)} offset:{(jj*4+q)*1024}")
        a("s_waitcnt lgkmcnt(0)")
        a("s_barrier")
        stamp(a, 9)
        RD = 12
        for jj in range(nt):
            for k in range(4):
                a(f"ds_read_b128 {vr(RD + 16*jj + 4*k, 4)}, v{T+1} offset:{k*12288 + jj*4096}")
        for jj in range(nt):
            r = RD + 16 * jj
            a(f"s_waitcnt lgkmcnt({4*(nt-1-jj)})")
            for i in range(4):
                a(f"v_add_f32 v{r+i}, v{r+i}, v{r+4+i}")
                a(f"v_add_f32 v{r+8+i}, v{r+8+i}, v{r+12+i}")
            for i in range(4):
                a(f"v_add_f32 v{r+i}, v{r+i}, v{r+8+i}")
            for p in range(2):
                x0, x1 = r + 2 * p, r + 2 * p + 1
                bb = V_BF + 2 * jj + p
                y = r + 4
                a(f"v_cvt_pk_bf16_f32 v{y}, v{x0}, v{x1}")
                a(f"v_lshlrev_b32 v{x0}, 16, v{y}")
                a(f"v_and_b32 v{x1}, s{S_T2}, v{y}")
                a(f"v_mul_f32 v{x0}, v{x0}, v{V_G}")
                a(f"v_mul_f32 v{x1}, v{x1}, v{V_G}")
                a(f"v_cvt_pk_bf16_f32 v{y}, v{x0}, v{x1}")
                a(f"v_lshlrev_b32 v{x0}, 16, v{y}")
                a(f"v_and_b32 v{x1}, s{S_T2}, v{y}")
                a(f"v_lshlrev_b32 v{y}, 16, v{bb}")
                a(f"v_and_b32 v{y+1}, s{S_T2}, v{bb}")
                a(f"v_add_f32 v{x0}, v{x0}, v{y}")
                a(f"v_add_f32 v{x1}, v{x1}, v{y+1}")
                a(f"v_cvt_pk_bf16_f32 v{r+8+p}, v{x0}, v{x1}")
            a(f"buffer_store_dwordx2 v[{r+8}:{r+9}], v{T+2}, s[{S_SRDB}:{S_SRDB+3}], s{S_T1} offen offset:{(j0+jj)*64}")
        stamp_out(a, 11, T)
        tl_end(a, 1)
        a("s_endpgm")


def gen_k2(a):
    T = V_TMP
    a.label("k2_kernel")
    tl_start(a)
    stamp(a, 0)
    a(f"s_cmp_ge_u32 s2, {K2_WGS}")
    a("s_cbranch_scc1 k2_end")
    load_ptrs(a)
    a("v_lshrrev_b32 v1, 6, v0")
    a("s_nop 0")
    a(f"v_readfirstlane_b32 s{S_WAVE}, v1")
    a(f"s_and_b32 s{S_T0}, s2, 7")
    a(f"s_lshl_b32 s{S_T0}, s{S_T0}, 2")
    a(f"s_lshr_b32 s{S_T1}, s2, 3")
    a(f"s_and_b32 s{S_T1}, s{S_T1}, 3")
    a(f"s_add_u32 s{S_HEAD}, s{S_T0}, s{S_T1}")
    a(f"s_lshr_b32 s{S_T0}, s2, 5")
    a(f"s_lshl_b32 s{S_T0}, s{S_T0}, 3")
    a(f"s_add_u32 s{S_QT}, s{S_T0}, s{S_WAVE}")
    a(f"s_and_b32 s{S_T0}, s2, 7")
    a(f"s_lshl_b32 s{S_T0}, s{S_T0}, 3")
    a(f"s_bfe_u32 s{S_T1}, s2, 0x30003")
    a(f"s_add_u32 s{S_RB}, s{S_T0}, s{S_T1}")
    a(f"s_lshr_b32 s{S_CB}, s2, 6")
    a(f"s_mul_i32 s{S_FA}, s{S_RB}, 108")
    a(f"s_add_u32 s{S_FA}, s{S_FA}, s{S_WAVE}")
    a(f"s_lshl_b32 s{S_FA}, s{S_FA}, 10")
    a(f"s_mul_i32 s{S_FB}, s{S_WAVE}, 20")
    a(f"s_mul_i32 s{S_T0}, s{S_CB}, 5")
    a(f"s_add_u32 s{S_FB}, s{S_FB}, s{S_T0}")
    a(f"s_lshl_b32 s{S_FB}, s{S_FB}, 10")
    a("v_and_b32 v1, 63, v0")
    a(f"v_lshlrev_b32 v{V_DMA}, 4, v1")
    a(f"v_mov_b32 v{V_KM}, v{V_DMA}")
    a(f"v_and_b32 v{T}, 31, v1")
    a(f"v_lshrrev_b32 v{T+1}, 5, v1")
    a(f"v_lshlrev_b32 v{V_KE}, 3, v{T}")
    a(f"v_lshl_add_u32 v{V_KE}, v{T+1}, 2, v{V_KE}")
    a(f"v_add_u32 v{V_KE}, 0x400, v{V_KE}")
    a(f"v_mul_u32_u24 v{V_VV}, 320, v{T+1}")
    a(f"v_lshl_add_u32 v{V_VV}, v{T}, 4, v{V_VV}")
    a(f"v_add_u32 v{V_VV}, 1280, v{V_VV}")
    a("s_waitcnt lgkmcnt(0)")
    make_srd(a, S_SRDA, P_WS, KV_OFF, KV_SIZE)
    make_srd(a, S_SRDB, P_WS, QF_OFF, QF_SIZE)
    a(f"s_lshl_b32 s{S_T0}, s{S_HEAD}, 6")
    a(f"s_add_u32 s{S_T0}, s{S_T0}, s{S_QT}")
    a(f"s_mul_i32 s{S_T0}, s{S_T0}, 1280")
    a(f"buffer_load_dwordx4 {vr(V_Q1,4)}, v{V_DMA}, s[{S_SRDB}:{S_SRDB+3}], s{S_T0} offen")
    a(f"buffer_load_dword v{V_Q2}, v{V_KE}, s[{S_SRDB}:{S_SRDB+3}], s{S_T0} offen")
    a(f"s_lshl_b32 s{S_MW}, s{S_WAVE}, 10")
    a(f"s_mul_i32 s{S_AW}, s{S_HEAD}, {64*2560}")
    a(f"s_add_u32 s{S_AW}, s{S_AW}, s{S_MW}")
    a(f"s_cmp_ge_u32 s{S_WAVE}, 4")
    a("s_cbranch_scc1 k2_role1")
    role(a, 0)
    a.label("k2_role1")
    role(a, 1)
    a.label("k2_end")
    a("s_endpgm")
    return dict(name="k2_kernel", vgpr=256, sgpr=100, grid=K2_WGS, block=512, lds=163840)


KERNELS = [gen_k2]
```

```python
import sys, math, struct

S_TOK = 2048
D = 640
DFF = 1728
NH = 32
DH = 20

QF_OFF = 0x0
KV_OFF = 0x280000
H_OFF = 0x780000
O_OFF = 0xE40000
B_OFF = 0x10C0000
G_OFF = 0x1340000
FL_OFF = 0x1350000
FL_SIZE = 4096
WF_OFF = 0x1400000
WF_SIZE = 148 * 20 * 1024
QF_SIZE = 32 * 64 * 1280
KV_SIZE = 32 * 64 * 2560
H_SIZE = 2048 * 3456
O_SIZE = 2048 * 1280
G_SIZE = 8192

QSCALE = math.log2(math.e) / math.sqrt(20.0)


def f32bits(x):
    return struct.unpack("<I", struct.pack("<f", x))[0]


import os
DBG = set(os.environ.get('GDBG','').split(','))

class Asm:
    def __init__(self):
        self.lines = []

    def __call__(self, s):
        self.lines.append("    " + s)

    def label(self, l):
        self.lines.append(l + ":")

    def raw(self, s):
        self.lines.append(s)

    def text(self):
        return "\n".join(self.lines) + "\n"


class VM:
    def __init__(self):
        self.l = []

    def add(self, tag):
        self.l.append(tag)

    def need(self, *tags):
        last = max(max(i for i, x in enumerate(self.l) if x == t) for t in tags)
        n = len(self.l) - 1 - last
        return min(n, 60)


def vr(base, n):
    return f"v[{base}:{base + n - 1}]" if n > 1 else f"v{base}"


def sr(base, n):
    return f"s[{base}:{base + n - 1}]" if n > 1 else f"s{base}"


S_SRDA = 4
S_SRDB = 8
S_SRDO = 12
S_PTR = 16
P_X, P_WQKV, P_WO, P_BX, P_W1, P_W2, P_GW, P_OUT, P_DBG, P_WS = [16 + 2 * i for i in range(10)]
S_WAVE = 36
S_WM = 37
S_WN = 38
S_AW = 39
S_BW = 40
S_MW = 41
S_T0 = 42
S_T1 = 43
S_T2 = 44
S_RT = 45
S_CT = 46
S_T3 = 47
S_SRDX = 48
S_SRDY = 52
S_T4 = 56
S_T5 = 57
S_EX0 = 58
S_EX1 = 60


def tl_start(a):
    if 'tl' in DBG:
        a("s_memrealtime s[96:97]")


def tl_end(a, k):
    if 'tl' not in DBG: return
    a("s_waitcnt vmcnt(0) lgkmcnt(0)")
    a("s_memrealtime s[98:99]")
    a(f"s_add_u32 s88, s{P_WS}, {0x3000000 + k * 0x10000}")
    a(f"s_addc_u32 s89, s{P_WS+1}, 0")
    a("s_mov_b32 s90, 0x10000")
    a("s_mov_b32 s91, 0x00020000")
    a("s_lshl_b32 s92, s2, 3")
    a(f"s_add_u32 s92, s92, s{S_WAVE}")
    a("s_lshl_b32 s92, s92, 3")
    a("s_waitcnt lgkmcnt(0)")
    a("v_mov_b32 v2, s92")
    a("v_mov_b32 v4, s96")
    a("v_mov_b32 v5, s98")
    a("s_mov_b64 exec, 1")
    a("buffer_store_dwordx2 v[4:5], v2, s[88:91], 0 offen")


def load_ptrs(a):
    a(f"s_load_dwordx16 s[16:31], s[0:1], 0")
    a(f"s_load_dwordx4 s[32:35], s[0:1], 64")


def make_srd(a, dst, ptr, off, size):
    if off:
        a(f"s_add_u32 s{dst}, s{ptr}, {off}")
        a(f"s_addc_u32 s{dst + 1}, s{ptr + 1}, 0")
    else:
        a(f"s_mov_b32 s{dst}, s{ptr}")
        a(f"s_mov_b32 s{dst + 1}, s{ptr + 1}")
    a(f"s_mov_b32 s{dst + 2}, {size}")
    a(f"s_mov_b32 s{dst + 3}, 0x00020000")


class GemmCfg:
    def __init__(self, WM, WN, TM, TN, S, KSTEPS, lda, ldb):
        self.WM, self.WN, self.TM, self.TN, self.S, self.KSTEPS = WM, WN, TM, TN, S, KSTEPS
        self.lda, self.ldb = lda, ldb
        self.NW = WM * WN
        self.BM = WM * TM * 32
        self.BN = WN * TN * 32
        self.ASZ = self.BM * 128
        self.BSZ = self.BN * 128
        self.STG = self.ASZ + self.BSZ
        self.nA = self.BM // 8 // self.NW
        self.nB = self.BN // 8 // self.NW
        assert self.nA * 8 * self.NW == self.BM and self.nB * 8 * self.NW == self.BN
        self.RB = 512 // self.BN
        self.V_DA = 2
        self.V_DB = 3
        self.V_AA = 4
        self.V_BA = 8
        self.V_T = 12
        self.V_FR = 24
        self.FRSZ = (TM + TN) * 4
        self.V_ACC = self.V_FR + 2 * self.FRSZ
        self.V_END = self.V_ACC + TM * TN * 16

    def acc(self, tm, tn):
        return self.V_ACC + (tm * self.TN + tn) * 16


def gemm_setup_lane(a, c):
    T = c.V_T
    a("v_and_b32 v1, 63, v0")
    a(f"v_lshrrev_b32 v{T}, 3, v1")
    a(f"v_lshrrev_b32 v{T+1}, 4, v1")
    a(f"s_and_b32 s{S_T0}, s{S_WAVE}, 1")
    a(f"s_lshl_b32 s{S_T0}, s{S_T0}, 2")
    a(f"v_add_u32 v{T+1}, s{S_T0}, v{T+1}")
    a(f"v_and_b32 v{T+2}, 7, v1")
    a(f"v_xor_b32 v{T+2}, v{T+2}, v{T+1}")
    a(f"v_lshlrev_b32 v{T+2}, 4, v{T+2}")
    a(f"s_mov_b32 s{S_T0}, {c.lda}")
    a(f"v_mad_u32_u24 v{c.V_DA}, v{T}, s{S_T0}, v{T+2}")
    if c.BN == 64:
        a(f"v_lshrrev_b32 v{T}, 3, v1")
        a(f"v_and_b32 v{T+2}, 7, v1")
        a(f"v_lshrrev_b32 v{T+1}, 4, v1")
        a(f"v_and_b32 v{T+1}, 1, v{T+1}")
        a(f"v_lshlrev_b32 v{T+1}, 2, v{T+1}")
    elif c.BN == 128:
        a(f"v_lshrrev_b32 v{T}, 4, v1")
        a(f"v_and_b32 v{T+2}, 15, v1")
        a(f"v_lshlrev_b32 v{T+1}, 2, v{T}")
    else:
        raise NotImplementedError
    a(f"v_xor_b32 v{T+2}, v{T+2}, v{T+1}")
    a(f"v_lshlrev_b32 v{T+2}, 4, v{T+2}")
    a(f"s_mov_b32 s{S_T0}, {c.ldb}")
    a(f"v_mad_u32_u24 v{c.V_DB}, v{T}, s{S_T0}, v{T+2}")
    a(f"v_and_b32 v{T}, 31, v1")
    a(f"v_lshrrev_b32 v{T+1}, 5, v1")
    a(f"v_bfe_u32 v{T+2}, v1, 1, 3")
    a(f"s_mul_i32 s{S_T0}, s{S_WM}, {c.TM * 32 * 128}")
    a(f"v_lshlrev_b32 v{T+3}, 7, v{T}")
    a(f"v_add_u32 v{T+3}, s{S_T0}, v{T+3}")
    for ks in range(4):
        a(f"v_add_u32 v{T+4}, {2*ks}, v{T+1}")
        a(f"v_xor_b32 v{T+4}, v{T+4}, v{T+2}")
        a(f"v_lshlrev_b32 v{T+4}, 4, v{T+4}")
        a(f"v_add_u32 v{c.V_AA+ks}, v{T+3}, v{T+4}")
    rowb = c.BN * 2
    a(f"v_bfe_u32 v{T}, v1, 2, 2")
    a(f"v_and_b32 v{T+2}, 3, v1")
    a(f"v_bfe_u32 v{T+3}, v1, 4, 1")
    a(f"v_lshl_add_u32 v{T+4}, v{T+1}, 3, v{T}")
    a(f"v_mul_u32_u24 v{T+4}, {rowb}, v{T+4}")
    a(f"v_lshrrev_b32 v{T+5}, 1, v{T+2}")
    a(f"v_lshl_add_u32 v{T+5}, v{T+3}, 1, v{T+5}")
    a(f"v_lshlrev_b32 v{T+5}, 4, v{T+5}")
    a(f"v_and_b32 v{T+6}, 1, v{T+2}")
    a(f"v_lshl_add_u32 v{T+5}, v{T+6}, 3, v{T+5}")
    a(f"v_add_u32 v{T+4}, v{T+4}, v{T+5}")
    a(f"v_add_u32 v{T+4}, {c.ASZ}, v{T+4}")
    if c.BN == 64:
        a(f"v_lshrrev_b32 v{T+5}, 1, v{T}")
    else:
        a(f"v_mov_b32 v{T+5}, v{T}")
    for tn in range(c.TN):
        a(f"s_mul_i32 s{S_T0}, s{S_WN}, {c.TN}")
        a(f"s_add_u32 s{S_T0}, s{S_T0}, {tn}")
        a(f"v_xor_b32 v{T+6}, s{S_T0}, v{T+5}")
        a(f"v_lshlrev_b32 v{T+6}, 6, v{T+6}")
        a(f"v_add_u32 v{c.V_BA+tn}, v{T+4}, v{T+6}")
    a(f"s_lshl_b32 s{S_MW}, s{S_WAVE}, 10")


def gemm_dma(a, c, t):
    st = t % c.S
    if 'nodma' in DBG: return
    for i in range(c.nA):
        a(f"s_add_u32 m0, s{S_MW}, {st * c.STG + i * c.NW * 1024}")
        a(f"s_add_u32 s{S_T0}, s{S_AW}, {i * c.NW * 8 * c.lda + t * 128}")
        a(f"buffer_load_dwordx4 v{c.V_DA}, s[{S_SRDA}:{S_SRDA+3}], s{S_T0} offen lds")
    for i in range(c.nB):
        a(f"s_add_u32 m0, s{S_MW}, {st * c.STG + c.ASZ + i * c.NW * 1024}")
        a(f"s_add_u32 s{S_T0}, s{S_BW}, {(t * 64 + i * c.NW * c.RB) * c.ldb}")
        a(f"buffer_load_dwordx4 v{c.V_DB}, s[{S_SRDB}:{S_SRDB+3}], s{S_T0} offen lds")


def gemm_reads(a, c, t, ks, fset):
    st = t % c.S
    if 'noreads' in DBG: return
    fb = c.V_FR + fset * c.FRSZ
    rowb = c.BN * 2
    for tm in range(c.TM):
        a(f"ds_read_b128 {vr(fb + tm*4, 4)}, v{c.V_AA+ks} offset:{st*c.STG + tm*4096}")
    for tn in range(c.TN):
        for w in range(2):
            a(f"ds_read_b64_tr_b16 {vr(fb + c.TM*4 + tn*4 + w*2, 2)}, v{c.V_BA+tn} offset:{st*c.STG + (ks*16 + 4*w)*rowb}")


def gemm_mfmas(a, c, fset, swap, first):
    fb = c.V_FR + fset * c.FRSZ
    if 'nomfma' in DBG and not first: return
    for tm in range(c.TM):
        for tn in range(c.TN):
            A = vr(fb + tm * 4, 4)
            B = vr(fb + c.TM * 4 + tn * 4, 4)
            acc = vr(c.acc(tm, tn), 16)
            cin = "0" if first else acc
            if swap:
                a(f"v_mfma_f32_32x32x16_bf16 {acc}, {A}, {B}, {cin}")
            else:
                a(f"v_mfma_f32_32x32x16_bf16 {acc}, {B}, {A}, {cin}")


def gemm_main(a, c, swap, pre=True):
    per = c.nA + c.nB
    nr = c.TM + 2 * c.TN
    if pre:
        for t in range(min(c.S - 1, c.KSTEPS)):
            gemm_dma(a, c, t)
    for t in range(c.KSTEPS):
        inflight_after = min(c.S - 2, c.KSTEPS - 1 - t)
        a(f"s_waitcnt vmcnt({inflight_after * per}) lgkmcnt(0)")
        a("s_barrier")
        if 'fstamp' in DBG and c.KSTEPS == 10 and c.NW == 8 and t in (0, 1, 2, 5):
            i = {0: 4, 1: 5, 2: 6, 5: 7}[t]
            a(f"s_memrealtime s[{64+2*i}:{64+2*i+1}]")
        gemm_reads(a, c, t, 0, 0)
        if t + c.S - 1 < c.KSTEPS:
            gemm_dma(a, c, t + c.S - 1)
        if t > 0:
            gemm_mfmas(a, c, 1, swap, False)
        gemm_reads(a, c, t, 1, 1)
        a(f"s_waitcnt lgkmcnt({nr})")
        gemm_mfmas(a, c, 0, swap, t == 0)
        gemm_reads(a, c, t, 2, 0)
        a(f"s_waitcnt lgkmcnt({nr})")
        gemm_mfmas(a, c, 1, swap, False)
        gemm_reads(a, c, t, 3, 1)
        a(f"s_waitcnt lgkmcnt({nr})")
        gemm_mfmas(a, c, 0, swap, False)
    a(f"s_waitcnt lgkmcnt(0)")
    gemm_mfmas(a, c, 1, swap, False)
    a("s_nop 15")
    a("s_nop 3")
    if 'noepi' in DBG: a("s_endpgm")


def gemm_dma_list(c, t):
    st = t % c.S
    out = []
    if 'nodma' in DBG: return out
    for i in range(c.nA):
        out.append([f"s_add_u32 m0, s{S_MW}, {st * c.STG + i * c.NW * 1024}",
                    f"s_add_u32 s{S_T0}, s{S_AW}, {i * c.NW * 8 * c.lda + t * 128}",
                    f"buffer_load_dwordx4 v{c.V_DA}, s[{S_SRDA}:{S_SRDA+3}], s{S_T0} offen lds"])
    for i in range(c.nB):
        out.append([f"s_add_u32 m0, s{S_MW}, {st * c.STG + c.ASZ + i * c.NW * 1024}",
                    f"s_add_u32 s{S_T0}, s{S_BW}, {(t * 64 + i * c.NW * c.RB) * c.ldb}",
                    f"buffer_load_dwordx4 v{c.V_DB}, s[{S_SRDB}:{S_SRDB+3}], s{S_T0} offen lds"])
    return out


def gemm_rd(c, t, ks, kind, idx):
    st = t % c.S
    fb = c.V_FR + (ks % 2) * c.FRSZ
    rowb = c.BN * 2
    if kind == 'A':
        return [f"ds_read_b128 {vr(fb + idx*4, 4)}, v{c.V_AA+ks} offset:{st*c.STG + idx*4096}"]
    return [f"ds_read_b64_tr_b16 {vr(fb + c.TM*4 + idx*4 + w*2, 2)}, v{c.V_BA+idx} offset:{st*c.STG + (ks*16 + 4*w)*rowb}" for w in range(2)]


def gemm_main2(a, c, swap, mid_hook=None, post_hook=None):
    nr = c.TM + 2 * c.TN
    K = c.KSTEPS
    issued = []

    def emit(g, t):
        for l in g: a(l)
        issued.append(t)

    def need(t):
        if 'nodma' in DBG: return 0
        last = max(i for i, x in enumerate(issued) if x == t)
        return len(issued) - 1 - last
    if mid_hook:
        for t in range(c.S):
            for g in gemm_dma_list(c, t)[c.nA:]: emit(g, t)
        mid_hook()
        for t in range(c.S):
            for g in gemm_dma_list(c, t)[:c.nA]: emit(g, t)
    else:
        for t in range(c.S):
            for g in gemm_dma_list(c, t): emit(g, t)
    if post_hook:
        post_hook(len(issued))
    a(f"s_waitcnt vmcnt({need(0)})")
    a("s_barrier")
    for ks in range(2):
        for i in range(c.TM):
            for l in gemm_rd(c, 0, ks, 'A', i): a(l)
        for i in range(c.TN):
            for l in gemm_rd(c, 0, ks, 'B', i): a(l)
    nm = c.TM * c.TN
    for t in range(K):
        dma = gemm_dma_list(c, t + c.S) if t + c.S < K else []
        slots = 2 * nm - (1 if nm > 1 else 0)
        perslot = (len(dma) + slots - 1) // slots if dma else 0
        for ks in range(4):
            nt, nks = (t, ks + 2) if ks < 2 else (t + 1, ks - 2)
            has = nt < K
            last = (t == K - 1 and ks == 3)
            a(f"s_waitcnt lgkmcnt({0 if last else nr})")
            pend = []
            fb = c.V_FR + (ks % 2) * c.FRSZ
            j = 0
            for tm in range(c.TM):
                for tn in range(c.TN):
                    A = vr(fb + tm * 4, 4)
                    B = vr(fb + c.TM * 4 + tn * 4, 4)
                    acc = vr(c.acc(tm, tn), 16)
                    cin = "0" if (t == 0 and ks == 0) else acc
                    a(f"v_mfma_f32_32x32x16_bf16 {acc}, {A}, {B}, {cin}" if swap else f"v_mfma_f32_32x32x16_bf16 {acc}, {B}, {A}, {cin}")
                    if has:
                        if tm == c.TM - 1:
                            pend += gemm_rd(c, nt, nks, 'B', tn)
                        if tn == c.TN - 1:
                            pend += gemm_rd(c, nt, nks, 'A', tm)
                    bar_at = 1 if nm > 1 else 0
                    if ks == 2 and has and j < bar_at:
                        j += 1
                        continue
                    if ks == 2 and has and j == bar_at:
                        a(f"s_waitcnt vmcnt({need(t + 1)}) lgkmcnt(0)")
                        a("s_barrier")
                    for l in pend: a(l)
                    pend = []
                    if ks >= 2:
                        for _ in range(perslot):
                            if dma:
                                emit(dma.pop(0), t + c.S)
                    j += 1
        assert not dma, (t, len(dma))
    a("s_nop 15")
    a("s_nop 3")
    if 'noepi' in DBG: a("s_endpgm")


def wave_ids(a, c):
    a("v_lshrrev_b32 v1, 6, v0")
    a("s_nop 0")
    a(f"v_readfirstlane_b32 s{S_WAVE}, v1")
    a("s_nop 3")
    lg = int(math.log2(c.WN))
    a(f"s_lshr_b32 s{S_WM}, s{S_WAVE}, {lg}")
    a(f"s_and_b32 s{S_WN}, s{S_WAVE}, {c.WN - 1}")


HEADER = """; generated by dev/gen.py
{launch}
.amdgcn_target "amdgcn-amd-amdhsa--gfx950"
.text
"""


def kd(k):
    v = (k["vgpr"] + 3) // 4 * 4
    return f""".p2align 6
.amdhsa_kernel {k['name']}
  .amdhsa_next_free_vgpr {v}
  .amdhsa_next_free_sgpr {100 if 'tl' in DBG else k['sgpr']}
  .amdhsa_accum_offset {v}
  .amdhsa_group_segment_fixed_size 0
  .amdhsa_kernarg_size 80
  .amdhsa_user_sgpr_count 2
  .amdhsa_user_sgpr_kernarg_segment_ptr 1
  .amdhsa_system_sgpr_workgroup_id_x 1
.end_amdhsa_kernel
"""


def main(out):
    import gen_k2 as gen_attn, gen_k1
    kernels = []
    body = ""
    for fn in [gen_k1.gen_k1] + gen_attn.KERNELS:
        a = Asm()
        k = fn(a)
        kernels.append(k)
        body += f".globl {k['name']}\n.p2align 8\n.type {k['name']},@function\n" + a.text()
    launch = "\n".join(f"; @launch kernel={k['name']} grid=({k['grid']},1,1) block=({k['block']},1,1) lds={k['lds']}" for k in kernels)
    src = HEADER.format(launch=launch) + body + '.section .rodata,"a"\n' + "".join(kd(k) for k in kernels)
    open(out, "w").write(src)


if __name__ == "__main__":
    sys.path.insert(0, "dev")
    main(sys.argv[1] if len(sys.argv) > 1 else "gated_mix__mha_block__dense_activation_relu__prompt.s")
```

```python
import math
from gen import *

K1_WGS = 256
K1_S = 3
K1_P = 3 if 'p3' in DBG else 2
ASZ = 128 * 128
STG = 49152
QOFF = ASZ
V_DA = 2
V_DB = 3
V_DP = 8
V_AA = 9
V_BQ = 21
V_BP = 24
V_T = 30
V_FR = 44
V_ACC = 116
KST = 10
S_PW = 62
S_SRDP = 64
S_ST = 68


def stamp(a, i):
    if 'kstamp' in DBG:
        a(f"{'s_memtime' if 'cyc' in DBG else 's_memrealtime'} s[{S_ST+2*i}:{S_ST+2*i+1}]")


def sentinel(a):
    T = V_T
    make_srd(a, S_SRDX, P_WS, O_OFF, O_SIZE)
    a(f"s_mul_i32 s{S_T0}, s2, 10240")
    a(f"s_add_u32 s{S_T0}, s{S_T0}, s{S_MW}")
    a(f"v_lshlrev_b32 v{T+4}, 4, v1")
    a(f"v_add_u32 v{T+4}, s{S_T0}, v{T+4}")
    for i in range(4):
        a(f"v_mov_b32 v{T+6+i}, -1")
    for i in range(3):
        a(f"s_movk_i32 s{S_T0}, {i*4096}")
        a(f"buffer_store_dwordx4 v[{T+6}:{T+9}], v{T+4}, s[{S_SRDX}:{S_SRDX+3}], s{S_T0} offen")


def stamp_out(a, n):
    sentinel(a)
    if 'kstamp' not in DBG: return
    T = V_T
    a("s_waitcnt vmcnt(0) lgkmcnt(0)")
    stamp(a, n - 1)
    a("s_waitcnt lgkmcnt(0)")
    make_srd(a, S_SRDY, P_WS, 0x2000000, 0x100000)
    a(f"s_lshl_b32 s{S_T5}, s2, 2")
    a(f"s_add_u32 s{S_T5}, s{S_T5}, s{S_WAVE}")
    a(f"s_lshl_b32 s{S_T5}, s{S_T5}, 6")
    a(f"v_mov_b32 v{T+2}, s{S_T5}")
    a("s_mov_b64 exec, 1")
    for i in range(n):
        a(f"v_mov_b32 v{T+3}, s{S_ST+2*i}")
        a(f"buffer_store_dword v{T+3}, v{T+2}, s[{S_SRDY}:{S_SRDY+3}], 0 offen offset:{4*i}")
    a("s_mov_b64 exec, -1")


class Kind:
    def __init__(self, hasq, npan, swapq):
        self.hasq, self.npan, self.swapq = hasq, npan, swapq
        self.poff = ASZ + (20480 if hasq else 0)
        self.units = [('q', tn) for tn in range(5)] if hasq else []
        self.units += [('p', p, j) for p in range(npan) for j in range(2)]
        self.nu = len(self.units)
        self.per = 4 + (5 if hasq else 0) + 2 * npan
        self.nr = 1 + 2 * self.nu


def dma_list(k, t):
    st = t % K1_S
    out = []
    if 'nodma' in DBG: return out
    for i in range(4):
        out.append([f"s_add_u32 m0, s{S_MW}, {st * STG + i * 4096}",
                    f"s_add_u32 s{S_T0}, s{S_AW}, {i * 32 * 1280 + t * 128}",
                    f"buffer_load_dwordx4 v{V_DA}, s[{S_SRDA}:{S_SRDA+3}], s{S_T0} offen lds"])
    if k.hasq:
        for i in range(5):
            out.append([f"s_add_u32 m0, s{S_MW}, {st * STG + QOFF + i * 4096}",
                        f"s_add_u32 s{S_T0}, s{S_BW}, {t * 64 * 3840}",
                        f"buffer_load_dwordx4 v{V_DB+i}, s[{S_SRDB}:{S_SRDB+3}], s{S_T0} offen lds"])
    for p in range(k.npan):
        for i in range(2):
            out.append([f"s_add_u32 m0, s{S_MW}, {st * STG + k.poff + p * 8192 + i * 4096}",
                        f"s_add_u32 s{S_T0}, s{S_PW}, {(t * 64 + i * 32) * 3456 + p * 128}",
                        f"buffer_load_dwordx4 v{V_DP}, s[{S_SRDP}:{S_SRDP+3}], s{S_T0} offen lds"])
    return out


def rd(k, t, ks, u):
    st = t % K1_S
    if 'noreads' in DBG: return []
    fb = V_FR + (ks % 2) * 36
    if u == 'A':
        return [f"ds_read_b128 {vr(fb, 4)}, v{V_AA + st*4 + ks}"]
    un = k.units[u]
    if un[0] == 'q':
        return [f"ds_read_b64_tr_b16 {vr(fb + 4 + u*4 + w*2, 2)}, v{V_BQ+st} offset:{(ks*16 + 4*w)*320 + un[1]*64}" for w in range(2)]
    return [f"ds_read_b64_tr_b16 {vr(fb + 4 + u*4 + w*2, 2)}, v{V_BP+st*2+un[2]} offset:{k.poff + un[1]*8192 + (ks*16 + 4*w)*128}" for w in range(2)]


def mfma(k, ks, u, first):
    fb = V_FR + (ks % 2) * 36
    A = vr(fb, 4)
    B = vr(fb + 4 + u * 4, 4)
    acc = vr(V_ACC + u * 16, 16)
    cin = "0" if first else acc
    if k.swapq and k.units[u][0] == 'q':
        return f"v_mfma_f32_32x32x16_bf16 {acc}, {A}, {B}, {cin}"
    return f"v_mfma_f32_32x32x16_bf16 {acc}, {B}, {A}, {cin}"


S_PF = 91
PF0 = 4


def prefetch(a, k):
    if 'nopf' in DBG: return []
    T = V_T
    P = T + 11
    out = []
    a(f"v_mov_b32 v{T+5}, 0x7f000000")
    a(f"v_lshrrev_b32 v{T+2}, 3, v1")
    a(f"v_mul_u32_u24 v{T+2}, 1280, v{T+2}")
    a(f"v_and_b32 v{T+3}, 7, v1")
    a(f"v_lshl_add_u32 v{T+2}, v{T+3}, 7, v{T+2}")
    a(f"v_cmp_lt_u32 vcc, {PF0 - 3}, v{T+3}")
    a(f"s_and_b32 s{S_T1}, s{S_CT}, 3")
    a(f"s_mul_i32 s{S_T0}, s{S_T1}, {32*1280}")
    a(f"v_cndmask_b32 v{T+2}, v{T+5}, v{T+2}, vcc")
    a(f"s_add_u32 s{S_PF}, s{S_T0}, s{S_AW}")
    out.append([f"buffer_load_dword v{P}, v{T+2}, s[{S_SRDA}:{S_SRDA+3}], s{S_PF} offen offset:256"])
    nr = (640 - PF0 * 64 + 127) // 128
    a(f"s_and_b32 s{S_T0}, s{S_RT}, 7")
    a(f"s_lshl_b32 s{S_T0}, s{S_T0}, 4")
    a(f"s_lshl_b32 s{S_T1}, s{S_T1}, 2")
    a(f"s_add_u32 s{S_T0}, s{S_T0}, s{S_T1}")
    a(f"s_add_u32 s{S_T0}, s{S_T0}, s{S_WAVE}")
    a(f"s_mul_i32 s{S_T0}, s{S_T0}, {nr}")
    a(f"s_add_u32 s{S_T0}, s{S_T0}, {640 - 128*nr}")
    a(f"s_lshr_b32 s{S_T1}, s{S_CT}, 2")
    a(f"v_lshrrev_b32 v{T+7}, 4, v1")
    a(f"v_and_b32 v{T+3}, 15, v1")
    a(f"v_cmp_gt_u32 s[{S_EX0}:{S_EX0+1}], {nr}, v{T+7}")
    if k.hasq:
        a(f"v_mul_u32_u24 v{T+4}, 3840, v{T+7}")
        a(f"v_lshl_add_u32 v{T+4}, v{T+3}, 7, v{T+4}")
        a(f"v_cmp_gt_u32 vcc, 10, v{T+3}")
        a(f"s_mul_i32 s{S_T2}, s{S_T0}, 3840")
        a(f"s_and_b64 vcc, vcc, s[{S_EX0}:{S_EX0+1}]")
        a(f"s_mul_i32 s{S_T3}, s{S_T1}, 1280")
        a(f"v_cndmask_b32 v{T+4}, v{T+5}, v{T+4}, vcc")
        a(f"s_add_u32 s{S_PF+1}, s{S_T2}, s{S_T3}")
        out.append([f"buffer_load_dword v{P+1}, v{T+4}, s[{S_SRDB}:{S_SRDB+3}], s{S_PF+1} offen"])
        a(f"v_subrev_u32 v{T+3}, 10, v{T+3}")
        a(f"v_cmp_gt_u32 vcc, 4, v{T+3}")
        a(f"s_lshl_b32 s{S_T3}, s{S_T1}, 9")
    else:
        a(f"v_cmp_gt_u32 vcc, 15, v{T+3}")
        a(f"s_movk_i32 s{S_T3}, 1536")
    a(f"v_mul_u32_u24 v{T+6}, 3456, v{T+7}")
    a(f"v_lshl_add_u32 v{T+6}, v{T+3}, 7, v{T+6}")
    a(f"s_and_b64 vcc, vcc, s[{S_EX0}:{S_EX0+1}]")
    a(f"s_mul_i32 s{S_T2}, s{S_T0}, 3456")
    a(f"v_cndmask_b32 v{T+6}, v{T+5}, v{T+6}, vcc")
    a(f"s_add_u32 s{S_PF+2}, s{S_T2}, s{S_T3}")
    out.append([f"buffer_load_dword v{P+2}, v{T+6}, s[{S_SRDP}:{S_SRDP+3}], s{S_PF+2} offen"])
    return out


def k1_main(a, k):
    per = 0 if 'nodma' in DBG else k.per
    T = V_T
    tag = f"{int(k.hasq)}{int(k.swapq)}"
    GW = V_FR
    GX = V_FR + 20
    vm = VM()

    def emit(g, t):
        for l in g: a(l)
        vm.add(t)
    for g in dma_list(k, 0): emit(g, 0)
    a(f"s_mov_b32 s{S_GR}, 0x100000")
    a(f"s_cmp_ge_u32 s{S_WAVE}, 2")
    a(f"s_cbranch_scc1 k1_ng1{tag}")
    make_srd(a, S_SRDY, P_GW, 0, 1280)
    a(f"v_and_b32 v{T}, 15, v1")
    a(f"v_lshrrev_b32 v{T+1}, 4, v1")
    a(f"v_lshlrev_b32 v{T}, 4, v{T}")
    for i in range(5):
        a(f"buffer_load_dwordx4 v[{GW+4*i}:{GW+4*i+3}], v{T}, s[{S_SRDY}:{S_SRDY+3}], 0 offen offset:{i*256}")
    a(f"v_mul_u32_u24 v{T+1}, 1280, v{T+1}")
    a(f"v_add_u32 v{T}, v{T}, v{T+1}")
    a(f"s_lshl_b32 s{S_T0}, s{S_RT}, 7")
    a(f"s_lshl_b32 s{S_T1}, s{S_CT}, 3")
    a(f"s_add_u32 s{S_T0}, s{S_T0}, s{S_T1}")
    a(f"s_lshl_b32 s{S_T1}, s{S_WAVE}, 2")
    a(f"s_add_u32 s{S_GR}, s{S_T0}, s{S_T1}")
    a(f"s_mul_i32 s{S_T0}, s{S_GR}, 1280")
    for i in range(5):
        a(f"buffer_load_dwordx4 v[{GX+4*i}:{GX+4*i+3}], v{T}, s[{S_SRDA}:{S_SRDA+3}], s{S_T0} offen offset:{i*256}")
    a.label(f"k1_ng1{tag}")
    tr_loads(a, tag)
    for t in range(1, K1_P):
        for g in dma_list(k, t): emit(g, t)
    pfl = prefetch(a, k)
    tr_stores(a, tag, (K1_P - 1) * per)
    for _ in range(4): vm.add('st')
    a(f"s_cmp_ge_u32 s{S_WAVE}, 2")
    a(f"s_cbranch_scc1 k1_ng2{tag}")
    a(f"v_mov_b32 v{T}, 0")
    a(f"v_mov_b32 v{T+1}, 0")
    for i in range(20):
        a(f"v_dot2_f32_bf16 v{T+i%2}, v{GW+i}, v{GX+i}, v{T+i%2}")
    a("s_nop 3")
    a(f"v_add_f32 v{T}, v{T}, v{T+1}")
    for sh in (8, 4, 2, 1):
        a("s_nop 1")
        a(f"v_add_f32_dpp v{T}, v{T}, v{T} row_ror:{sh} row_mask:0xf bank_mask:0xf")
    a("s_nop 1")
    a(f"v_cvt_pk_bf16_f32 v{T}, v{T}, v{T}")
    a(f"v_lshlrev_b32 v{T}, 16, v{T}")
    a(f"v_mul_f32 v{T}, {f32bits(-math.log2(math.e))}, v{T}")
    a(f"v_exp_f32 v{T}, v{T}")
    a("s_nop 0")
    a(f"v_add_f32 v{T}, 1.0, v{T}")
    a(f"v_rcp_f32 v{T}, v{T}")
    a("s_nop 0")
    a(f"v_cvt_pk_bf16_f32 v{T}, v{T}, v{T}")
    a(f"v_lshlrev_b32 v{T}, 16, v{T}")
    a.label(f"k1_ng2{tag}")
    make_srd(a, S_SRDY, P_WS, G_OFF, G_SIZE)
    a(f"v_lshrrev_b32 v{T+8}, 4, v1")
    a(f"v_lshlrev_b32 v{T+8}, 2, v{T+8}")
    a(f"s_lshl_b32 s{S_T0}, s{S_GR}, 2")
    a(f"v_and_b32 v{T+9}, 15, v1")
    a(f"v_cmp_eq_u32 vcc, 0, v{T+9}")
    a("s_mov_b64 exec, vcc")
    a(f"buffer_store_dword v{T}, v{T+8}, s[{S_SRDY}:{S_SRDY+3}], s{S_T0} offen{SC1}")
    a("s_mov_b64 exec, -1")
    vm.add('st')
    a("s_barrier")
    stamp(a, 1)
    for ks in range(2):
        for w in ['A'] + list(range(k.nu)):
            for l in rd(k, 0, ks, w): a(l)
    for t in range(KST):
        dma = dma_list(k, t + K1_S) if t + K1_S < KST else []
        early = [(g, tt) for tt in range(K1_P, K1_S) for g in dma_list(k, tt)] if t == 0 else []
        if t == 0:
            if 'pffirst' in DBG: early = [(g, 'pf') for g in pfl] + early
            else: early += [(g, 'pf') for g in pfl]
        for ks in range(4):
            nt, nks = (t, ks + 2) if ks < 2 else (t + 1, ks - 2)
            has = nt < KST
            last = (t == KST - 1 and ks == 3)
            a(f"s_waitcnt lgkmcnt({0 if last else min(k.nr, 15)})")
            pend = []
            for u in range(k.nu):
                if 'nomfma' not in DBG or t == 0: a(mfma(k, ks, u, t == 0 and ks == 0))
                if has:
                    pend += rd(k, nt, nks, u)
                if ks == 2 and has and u == 0:
                    continue
                if ks == 2 and has and u == 1:
                    assert not early
                    a(f"s_waitcnt vmcnt({0 if 'nodma' in DBG else vm.need(t + 1)}) lgkmcnt(0)")
                    a("s_barrier")
                    if t in (0, 4): stamp(a, {0: 2, 4: 3}[t])
                for l in pend: a(l)
                pend = []
                if ks < 2 and early:
                    emit(*early.pop(0))
                if ks >= 2 and dma and not (ks == 2 and u < 1):
                    emit(dma.pop(0), t + K1_S)
            if has:
                for l in rd(k, nt, nks, 'A'): a(l)
        assert not dma
    a("s_nop 15")
    a("s_nop 3")
    stamp(a, 4)
    if 'noepi' in DBG: a("s_endpgm")


def h_epilogue(a, k, lds_base):
    T = V_T
    u0 = 5 if k.hasq else 0
    make_srd(a, S_SRDX, P_WS, H_OFF, H_SIZE)
    a(f"v_lshlrev_b32 v{T}, 4, v1")
    a(f"s_lshl_b32 s{S_T0}, s{S_RT}, 2")
    a(f"s_add_u32 s{S_T0}, s{S_T0}, s{S_WAVE}")
    a(f"s_mul_i32 s{S_T0}, s{S_T0}, {108*1024}")
    a(f"s_lshl_b32 s{S_T1}, s{S_T4}, 6")
    a(f"s_add_u32 s{S_T0}, s{S_T0}, s{S_T1}")
    kk = 0
    for p in range(k.npan):
        if p == 3:
            a(f"s_cmp_ge_u32 s{S_T4}, {DFF - 192}")
            a("s_cbranch_scc1 k1_hdone")
        if p:
            a(f"s_add_u32 s{S_T0}, s{S_T0}, 4096")
        for j in range(2):
            for sg in range(2):
                r = V_ACC + (u0 + p * 2 + j) * 16 + 8 * sg
                dd = V_FR + 4 * (kk % 8)
                kk += 1
                for i in range(4):
                    a(f"v_cvt_pk_bf16_f32 v{dd+i}, v{r+2*i}, v{r+2*i+1}")
                for i in range(4):
                    a(f"v_pk_max_i16 v{dd+i}, v{dd+i}, 0")
                a(f"buffer_store_dwordx4 {vr(dd, 4)}, v{T}, s[{S_SRDX}:{S_SRDX+3}], s{S_T0} offen offset:{(j*2+sg)*1024}{SC1}")
    if k.npan == 4:
        a.label("k1_hdone")


S_TSRD = 84
S_TP = 88
S_TF = 89
S_GR = 90
SC1 = ' sc1' if 'sc1' in DBG else ''
V_TL = V_ACC
V_TR = V_ACC + 16


def tr_loads(a, tag):
    T = V_T
    a(f"s_mov_b32 s{S_TP}, 0x40000000")
    a(f"s_lshl_b32 s{S_T0}, s{S_CT}, 4")
    a(f"s_add_u32 s{S_T0}, s{S_T0}, s{S_RT}")
    a(f"s_lshl_b32 s{S_T0}, s{S_T0}, 2")
    a(f"s_add_u32 s{S_T0}, s{S_T0}, s{S_WAVE}")
    a(f"s_cmp_lt_u32 s{S_T0}, 740")
    a(f"s_cselect_b32 s{S_TF}, 1, 0")
    a(f"s_cbranch_scc0 k1_ntl{tag}")
    a(f"s_mul_i32 s{S_T1}, s{S_T0}, 205")
    a(f"s_lshr_b32 s{S_T1}, s{S_T1}, 10")
    a(f"s_mul_i32 s{S_T2}, s{S_T1}, 5")
    a(f"s_sub_u32 s{S_T2}, s{S_T0}, s{S_T2}")
    a(f"s_mul_i32 s{S_TP}, s{S_T1}, 20")
    a(f"s_lshl_b32 s{S_T0}, s{S_T2}, 2")
    a(f"s_add_u32 s{S_TP}, s{S_TP}, s{S_T0}")
    a(f"s_lshl_b32 s{S_TP}, s{S_TP}, 10")
    a(f"s_sub_u32 s{S_T0}, s{S_T1}, 108")
    a(f"s_cmp_lt_u32 s{S_T1}, 108")
    a(f"s_cselect_b32 s{S_T1}, s{S_T1}, s{S_T0}")
    a(f"s_cselect_b32 s{S_TSRD}, s{P_W2}, s{P_WO}")
    a(f"s_cselect_b32 s{S_TSRD+1}, s{P_W2+1}, s{P_WO+1}")
    a(f"s_mov_b32 s{S_T0}, {640*1280}")
    a(f"s_cselect_b32 s{S_TSRD+2}, {1728*1280}, s{S_T0}")
    a(f"s_mov_b32 s{S_TSRD+3}, 0x00020000")
    a(f"s_mul_i32 s{S_T1}, s{S_T1}, {16*1280}")
    a(f"s_lshl_b32 s{S_T2}, s{S_T2}, 8")
    a(f"s_add_u32 s{S_T1}, s{S_T1}, s{S_T2}")
    a(f"v_lshlrev_b32 v{T}, 2, v1")
    for kk in range(16):
        if kk and kk % 3 == 0:
            a(f"s_add_u32 s{S_T1}, s{S_T1}, {3*1280}")
        a(f"buffer_load_dword v{V_TL+kk}, v{T}, s[{S_TSRD}:{S_TSRD+3}], s{S_T1} offen offset:{(kk%3)*1280}")
    a.label(f"k1_ntl{tag}")


def tr_stores(a, tag, nafter):
    T = V_T
    make_srd(a, S_SRDY, P_WS, WF_OFF, WF_SIZE)
    a(f"v_lshrrev_b32 v{T}, 4, v1")
    a(f"v_lshlrev_b32 v{T}, 10, v{T}")
    a(f"v_and_b32 v{T+1}, 15, v1")
    a(f"v_lshl_add_u32 v{T}, v{T+1}, 5, v{T}")
    a(f"s_mov_b32 s{S_T0}, 0x05040100")
    a(f"s_mov_b32 s{S_T1}, 0x07060302")
    a(f"s_waitcnt vmcnt({nafter})")
    for e in range(2):
        for h in range(2):
            dd = V_TR + (e * 2 + h) * 4
            for i, ka in enumerate((4 * h, 4 * h + 2, 8 + 4 * h, 8 + 4 * h + 2)):
                a(f"v_perm_b32 v{dd+i}, v{V_TL+ka+1}, v{V_TL+ka}, s{S_T1 if e else S_T0}")
            a(f"buffer_store_dwordx4 {vr(dd, 4)}, v{T}, s[{S_SRDY}:{S_SRDY+3}], s{S_TP} offen offset:{e*16 + h*512}")


def gen_k1(a):
    T = V_T
    kqk, kv, kh = Kind(True, 1, False), Kind(True, 1, True), Kind(False, 4, False)
    a.label("k1_kernel")
    tl_start(a)
    stamp(a, 0)
    a(f"s_cmp_ge_u32 s2, {K1_WGS}")
    a("s_cbranch_scc1 k1_end")
    load_ptrs(a)
    a("v_lshrrev_b32 v1, 6, v0")
    a("s_nop 0")
    a(f"v_readfirstlane_b32 s{S_WAVE}, v1")
    a("v_and_b32 v1, 63, v0")
    a(f"s_and_b32 s{S_T0}, s2, 1")
    a(f"s_lshl_b32 s{S_T0}, s{S_T0}, 3")
    a(f"s_bfe_u32 s{S_T1}, s2, 0x30003")
    a(f"s_add_u32 s{S_RT}, s{S_T0}, s{S_T1}")
    a(f"s_bfe_u32 s{S_T0}, s2, 0x20001")
    a(f"s_lshl_b32 s{S_T0}, s{S_T0}, 2")
    a(f"s_lshr_b32 s{S_T1}, s2, 6")
    a(f"s_add_u32 s{S_CT}, s{S_T0}, s{S_T1}")
    a(f"s_lshl_b32 s{S_T0}, s{S_RT}, 7")
    a(f"s_lshl_b32 s{S_T1}, s{S_WAVE}, 3")
    a(f"s_add_u32 s{S_T0}, s{S_T0}, s{S_T1}")
    a(f"s_mul_i32 s{S_AW}, s{S_T0}, 1280")
    a(f"s_mul_i32 s{S_BW}, s{S_CT}, 320")
    a(f"s_lshl_b32 s{S_MW}, s{S_WAVE}, 10")
    a(f"s_lshl_b32 s{S_T0}, s{S_CT}, 6")
    a(f"s_lshl_b32 s{S_T1}, s{S_CT}, 8")
    a(f"s_sub_u32 s{S_T1}, s{S_T1}, {12*256 - 768}")
    a(f"s_cmp_lt_u32 s{S_CT}, 12")
    a(f"s_cselect_b32 s{S_T4}, s{S_T0}, s{S_T1}")
    a(f"s_lshl_b32 s{S_T0}, s{S_T4}, 1")
    a(f"s_mul_i32 s{S_T1}, s{S_WAVE}, {8*3456}")
    a(f"s_add_u32 s{S_PW}, s{S_T0}, s{S_T1}")
    a(f"v_lshrrev_b32 v{T}, 3, v1")
    a(f"v_lshrrev_b32 v{T+1}, 4, v1")
    a(f"s_and_b32 s{S_T0}, s{S_WAVE}, 1")
    a(f"s_lshl_b32 s{S_T0}, s{S_T0}, 2")
    a(f"v_add_u32 v{T+3}, s{S_T0}, v{T+1}")
    a(f"v_and_b32 v{T+2}, 7, v1")
    a(f"v_xor_b32 v{T+3}, v{T+2}, v{T+3}")
    a(f"v_lshlrev_b32 v{T+3}, 4, v{T+3}")
    a(f"s_movk_i32 s{S_T0}, 1280")
    a(f"v_mad_u32_u24 v{V_DA}, v{T}, s{S_T0}, v{T+3}")
    a(f"v_and_b32 v{T+1}, 1, v{T+1}")
    a(f"v_lshlrev_b32 v{T+1}, 2, v{T+1}")
    a(f"v_xor_b32 v{T+3}, v{T+2}, v{T+1}")
    a(f"v_lshlrev_b32 v{T+3}, 4, v{T+3}")
    a(f"s_movk_i32 s{S_T0}, 3456")
    a(f"v_mad_u32_u24 v{V_DP}, v{T}, s{S_T0}, v{T+3}")
    a(f"v_lshlrev_b32 v{T}, 4, v1")
    a(f"v_add_u32 v{T}, s{S_MW}, v{T}")
    a(f"s_movk_i32 s{S_T0}, 205")
    a(f"s_movk_i32 s{S_T1}, {3840 - 320}")
    for i in range(5):
        a(f"v_add_u32 v{T+1}, {i*4096}, v{T}")
        a(f"v_lshrrev_b32 v{T+2}, 6, v{T+1}")
        a(f"v_mul_u32_u24 v{T+2}, s{S_T0}, v{T+2}")
        a(f"v_lshrrev_b32 v{T+2}, 10, v{T+2}")
        a(f"v_mad_u32_u24 v{V_DB+i}, v{T+2}, s{S_T1}, v{T+1}")
    a(f"v_and_b32 v{T}, 31, v1")
    a(f"v_lshrrev_b32 v{T+1}, 5, v1")
    a(f"v_bfe_u32 v{T+2}, v1, 1, 3")
    a(f"s_lshl_b32 s{S_T0}, s{S_WAVE}, 12")
    a(f"v_lshlrev_b32 v{T+3}, 7, v{T}")
    a(f"v_add_u32 v{T+3}, s{S_T0}, v{T+3}")
    for ks in range(4):
        a(f"v_add_u32 v{T+4}, {2*ks}, v{T+1}")
        a(f"v_xor_b32 v{T+4}, v{T+4}, v{T+2}")
        a(f"v_lshlrev_b32 v{T+4}, 4, v{T+4}")
        a(f"v_add_u32 v{V_AA+ks}, v{T+3}, v{T+4}")
    a(f"s_mov_b32 s{S_T0}, {STG}")
    a(f"s_mov_b32 s{S_T1}, {2*STG}")
    for ks in range(4):
        a(f"v_add_u32 v{V_AA+4+ks}, s{S_T0}, v{V_AA+ks}")
        a(f"v_add_u32 v{V_AA+8+ks}, s{S_T1}, v{V_AA+ks}")
    a(f"v_bfe_u32 v{T}, v1, 2, 2")
    a(f"v_and_b32 v{T+2}, 3, v1")
    a(f"v_bfe_u32 v{T+3}, v1, 4, 1")
    a(f"v_lshl_add_u32 v{T+4}, v{T+1}, 3, v{T}")
    a(f"v_lshlrev_b32 v{T+5}, 3, v{T+2}")
    a(f"v_lshl_add_u32 v{T+5}, v{T+3}, 5, v{T+5}")
    a(f"v_mul_u32_u24 v{T+6}, 320, v{T+4}")
    a(f"v_add_u32 v{T+6}, v{T+6}, v{T+5}")
    a(f"v_add_u32 v{V_BQ}, {QOFF}, v{T+6}")
    a(f"v_add_u32 v{V_BQ+1}, s{S_T0}, v{V_BQ}")
    a(f"v_add_u32 v{V_BQ+2}, s{S_T1}, v{V_BQ}")
    a(f"v_lshl_add_u32 v{T+6}, v{T+4}, 7, v{T+5}")
    a(f"v_lshrrev_b32 v{T+7}, 1, v{T}")
    for j in range(2):
        a(f"v_xor_b32 v{T+8}, {j}, v{T+7}")
        a(f"v_lshl_add_u32 v{V_BP+j}, v{T+8}, 6, v{T+6}")
        a(f"v_add_u32 v{V_BP+2+j}, s{S_T0}, v{V_BP+j}")
        a(f"v_add_u32 v{V_BP+4+j}, s{S_T1}, v{V_BP+j}")
    a("s_waitcnt lgkmcnt(0)")
    make_srd(a, S_SRDA, P_X, 0, 2048 * 1280)
    make_srd(a, S_SRDB, P_WQKV, 0, 640 * 3840)
    make_srd(a, S_SRDP, P_W1, 0, 640 * 3456)
    a(f"s_cmp_ge_u32 s{S_CT}, 12")
    a("s_cbranch_scc1 k1_h")
    a(f"s_cmp_ge_u32 s{S_CT}, 8")
    a("s_cbranch_scc1 k1_v")
    k1_main(a, kqk)
    EB = STG
    h_epilogue(a, kqk, EB + 40960)
    a(f"s_mov_b32 s{S_T0}, {f32bits(QSCALE)}")
    a(f"s_cmp_lt_u32 s{S_CT}, 4")
    a(f"s_cselect_b32 s{S_T4}, s{S_T0}, 1.0")
    a(f"s_mov_b32 s{S_T5}, s{S_T4}")
    a(f"s_movk_i32 s{S_T3}, 2560")
    a(f"s_cselect_b32 s{S_T3}, 1280, s{S_T3}")
    a(f"s_cselect_b32 s{S_T0}, {QF_OFF}, {KV_OFF}")
    a(f"s_mov_b32 s{S_T1}, {KV_SIZE}")
    a(f"s_cselect_b32 s{S_T1}, {QF_SIZE}, s{S_T1}")
    a(f"s_add_u32 s{S_SRDO}, s{P_WS}, s{S_T0}")
    a(f"s_addc_u32 s{S_SRDO+1}, s{P_WS+1}, 0")
    a(f"s_mov_b32 s{S_SRDO+2}, s{S_T1}")
    a(f"s_mov_b32 s{S_SRDO+3}, 0x00020000")
    a(f"s_mul_i32 s{S_T0}, s{S_WAVE}, 10240")
    a(f"s_add_u32 s{S_T0}, s{S_T0}, {EB}")
    a(f"v_and_b32 v{T}, 31, v1")
    a(f"v_lshrrev_b32 v{T+1}, 5, v1")
    a(f"v_lshlrev_b32 v{T+2}, 4, v{T}")
    a(f"v_add_u32 v{T+2}, s{S_T0}, v{T+2}")
    a(f"v_lshlrev_b32 v{T+3}, 3, v{T}")
    a(f"v_add_u32 v{T+3}, s{S_T0}, v{T+3}")
    a("v_cmp_gt_u32 vcc, 32, v1")

    def off(n):
        hd, d = n // 20, n % 20
        if d < 16:
            return hd * 1280 + (d >> 3) * 512 + ((d >> 2) & 1) * 8, False
        return hd * 1280 + 1024, True
    kk = 0
    for tn in range(5):
        for g in range(4):
            r = V_ACC + tn * 16 + 4 * g
            n0 = tn * 32 + 8 * g
            (c0, e0), (c1, e1) = off(n0), off(n0 + 4)
            ad = T + 4 + (kk % 2)
            dd = T + 6 + 2 * (kk % 2)
            kk += 1
            b0 = T + 3 if e0 else T + 2
            b1 = T + 3 if e1 else T + 2
            if e0 == e1:
                a(f"v_mad_u32_u24 v{ad}, v{T+1}, {c1 - c0}, v{b0}" if c1 - c0 <= 64 else f"v_mov_b32 v{ad}, {c1-c0}")
                if c1 - c0 > 64:
                    a(f"v_mad_u32_u24 v{ad}, v{T+1}, v{ad}, v{b0}")
            else:
                a(f"v_add_u32 v{ad}, {c1 - c0}, v{b1}")
                a(f"v_cndmask_b32 v{ad}, v{ad}, v{b0}, vcc")
            a(f"v_pk_mul_f32 v[{r}:{r+1}], v[{r}:{r+1}], s[{S_T4}:{S_T5}]")
            a(f"v_pk_mul_f32 v[{r+2}:{r+3}], v[{r+2}:{r+3}], s[{S_T4}:{S_T5}]")
            a(f"v_cvt_pk_bf16_f32 v{dd}, v{r}, v{r+1}")
            a(f"v_cvt_pk_bf16_f32 v{dd+1}, v{r+2}, v{r+3}")
            a(f"ds_write_b64 v{ad}, v[{dd}:{dd+1}] offset:{c0}")
    a(f"v_lshlrev_b32 v{T}, 4, v1")
    a(f"v_add_u32 v{T+1}, s{S_T0}, v{T}")
    a(f"v_lshrrev_b32 v{T+2}, 4, v1")
    a(f"s_and_b32 s{S_T0}, s{S_CT}, 3")
    a(f"s_lshl_b32 s{S_T0}, s{S_T0}, 9")
    a(f"s_lshl_b32 s{S_T1}, s{S_RT}, 2")
    a(f"s_add_u32 s{S_T0}, s{S_T0}, s{S_T1}")
    a(f"s_add_u32 s{S_T0}, s{S_T0}, s{S_WAVE}")
    a(f"s_mul_i32 s{S_T0}, s{S_T0}, s{S_T3}")
    a(f"s_lshl_b32 s{S_T1}, s{S_T3}, 6")
    a(f"s_sub_u32 s{S_T1}, s{S_T1}, 1280")
    a(f"s_movk_i32 s{S_T2}, 205")
    a("s_waitcnt lgkmcnt(0)")
    QD = V_FR + 16
    for i in range(10):
        a(f"ds_read_b128 {vr(QD + 4*i, 4)}, v{T+1} offset:{i*1024}")
    for i in range(10):
        ad = V_ACC + i
        a(f"v_add_u32 v{ad}, {4*i}, v{T+2}")
        a(f"v_mul_u32_u24 v{ad}, s{S_T2}, v{ad}")
        a(f"v_lshrrev_b32 v{ad}, 10, v{ad}")
        a(f"v_mul_lo_u32 v{ad}, v{ad}, s{S_T1}")
        a(f"v_add_u32 v{ad}, v{ad}, v{T}")
        if i:
            a(f"v_add_u32 v{ad}, {i*1024}, v{ad}")
    for i in range(10):
        a(f"s_waitcnt lgkmcnt({9-i})")
        a(f"buffer_store_dwordx4 {vr(QD + 4*i, 4)}, v{V_ACC+i}, s[{S_SRDO}:{S_SRDO+3}], s{S_T0} offen{SC1}")
    stamp_out(a, 6)
    tl_end(a, 0)
    a("s_endpgm")
    a.label("k1_v")
    k1_main(a, kv)
    h_epilogue(a, kv, EB)
    make_srd(a, S_SRDO, P_WS, KV_OFF, KV_SIZE)
    a(f"v_and_b32 v{T}, 31, v1")
    a(f"v_lshrrev_b32 v{T+1}, 5, v1")
    a(f"v_mul_u32_u24 v{T+1}, 320, v{T+1}")
    a(f"v_add_u32 v{T+1}, 1280, v{T+1}")
    a(f"s_sub_u32 s{S_T0}, s{S_CT}, 8")
    a(f"s_lshl_b32 s{S_T0}, s{S_T0}, 9")
    a(f"s_lshl_b32 s{S_T1}, s{S_RT}, 2")
    a(f"s_add_u32 s{S_T0}, s{S_T0}, s{S_T1}")
    a(f"s_add_u32 s{S_T0}, s{S_T0}, s{S_WAVE}")
    a(f"s_mul_i32 s{S_T0}, s{S_T0}, 2560")
    a(f"s_movk_i32 s{S_T3}, 3277")
    a(f"s_mov_b32 s{S_T2}, {64*2560}")
    VD = V_FR + 16
    for tn in range(5):
        a(f"v_add_u32 v{T+2}, {tn*32}, v{T}")
        a(f"v_mul_u32_u24 v{T+3}, s{S_T3}, v{T+2}")
        a(f"v_lshrrev_b32 v{T+3}, 16, v{T+3}")
        a(f"v_mul_u32_u24 v{T+4}, 20, v{T+3}")
        a(f"v_sub_u32 v{T+4}, v{T+2}, v{T+4}")
        a(f"v_mul_lo_u32 v{T+3}, v{T+3}, s{S_T2}")
        a(f"v_lshl_add_u32 v{T+5}, v{T+4}, 4, v{T+1}")
        a(f"v_add_u32 v{VD+40+tn}, v{T+5}, v{T+3}")
        for m in range(2):
            r = V_ACC + tn * 16 + 8 * m
            dd = VD + (tn * 2 + m) * 4
            for i in range(4):
                a(f"v_cvt_pk_bf16_f32 v{dd+i}, v{r+2*i}, v{r+2*i+1}")
            a(f"buffer_store_dwordx4 v[{dd}:{dd+3}], v{VD+40+tn}, s[{S_SRDO}:{S_SRDO+3}], s{S_T0} offen offset:{m*640}{SC1}")
    stamp_out(a, 6)
    tl_end(a, 0)
    a("s_endpgm")
    a.label("k1_h")
    k1_main(a, kh)
    h_epilogue(a, kh, EB)
    stamp_out(a, 6)
    tl_end(a, 0)
    a.label("k1_end")
    a("s_endpgm")
    return dict(name="k1_kernel", vgpr=V_ACC + 128, sgpr=96, grid=K1_WGS, block=256, lds=K1_S * STG)


def gen_gate(a, s_idx, wave8=True):
    make_srd(a, S_SRDA, P_X, 0, 2048 * 1280)
    make_srd(a, S_SRDB, P_GW, 0, 1280)
    make_srd(a, S_SRDO, P_WS, G_OFF, G_SIZE)
    a("v_and_b32 v2, 15, v1")
    a("v_lshrrev_b32 v3, 4, v1")
    a("v_lshlrev_b32 v4, 4, v2")
    for i in range(5):
        a(f"buffer_load_dwordx4 v[{24+4*i}:{27+4*i}], v4, s[{S_SRDB}:{S_SRDB+3}], 0 offen offset:{i*256}")
    a(f"s_lshl_b32 s{S_T0}, s{s_idx}, 8")
    a(f"s_lshl_b32 s{S_T1}, s{S_WAVE}, 5")
    a(f"s_add_u32 s{S_T0}, s{S_T0}, s{S_T1}")
    a(f"v_add_u32 v5, s{S_T0}, v3")
    a(f"v_mul_u32_u24 v6, 1280, v5")
    a(f"v_add_u32 v6, v6, v4")
    a(f"v_lshlrev_b32 v7, 2, v5")
    a("v_cmp_eq_u32 vcc, 0, v2")
    a(f"s_mov_b64 s[{S_EX0}:{S_EX0+1}], vcc")
    for p in range(8):
        for i in range(5):
            a(f"s_mov_b32 s{S_T0}, {p*4*1280}")
            a(f"buffer_load_dwordx4 v[{48+4*i}:{51+4*i}], v6, s[{S_SRDA}:{S_SRDA+3}], s{S_T0} offen offset:{i*256}")
        a("s_waitcnt vmcnt(0)")
        a("v_mov_b32 v8, 0")
        for i in range(20):
            a(f"v_dot2_f32_bf16 v8, v{24+i}, v{48+i}, v8")
        a("s_nop 3")
        for sh in (8, 4, 2, 1):
            a("s_nop 1")
            a(f"v_add_f32_dpp v8, v8, v8 row_ror:{sh} row_mask:0xf bank_mask:0xf")
        a("s_nop 1")
        a("v_cvt_pk_bf16_f32 v8, v8, v8")
        a("v_lshlrev_b32 v8, 16, v8")
        a(f"v_mul_f32 v8, {f32bits(-math.log2(math.e))}, v8")
        a("v_exp_f32 v8, v8")
        a("s_nop 0")
        a("v_add_f32 v8, 1.0, v8")
        a("v_rcp_f32 v8, v8")
        a("s_nop 0")
        a("v_cvt_pk_bf16_f32 v8, v8, v8")
        a("v_lshlrev_b32 v8, 16, v8")
        a(f"s_mov_b64 exec, s[{S_EX0}:{S_EX0+1}]")
        a(f"buffer_store_dword v8, v7, s[{S_SRDO}:{S_SRDO+3}], 0 offen offset:{p*16}")
        a("s_mov_b64 exec, -1")
        a("s_nop 1")
    a("s_endpgm")
```

```python
import math
from gen import *

K1_WGS = 256
K1_S = 3
K1_P = 3 if 'p3' in DBG else 2
ASZ = 128 * 128
STG = 49152
QOFF = ASZ
V_DA = 2
V_DB = 3
V_DP = 8
V_AA = 9
V_BQ = 21
V_BP = 24
V_T = 30
V_FR = 44
V_ACC = 116
KST = 10
S_PW = 62
S_ROLE = 63
S_SRDP = 64
S_ST = 68


def stamp(a, i):
    if 'kstamp' in DBG:
        a(f"{'s_memtime' if 'cyc' in DBG else 's_memrealtime'} s[{S_ST+2*i}:{S_ST+2*i+1}]")


def sentinel(a):
    T = V_T
    make_srd(a, S_SRDX, P_WS, O_OFF, O_SIZE)
    a(f"s_mul_i32 s{S_T0}, s2, 10240")
    a(f"s_add_u32 s{S_T0}, s{S_T0}, s{S_MW}")
    a(f"v_lshlrev_b32 v{T+4}, 4, v1")
    a(f"v_add_u32 v{T+4}, s{S_T0}, v{T+4}")
    for i in range(4):
        a(f"v_mov_b32 v{T+6+i}, -1")
    for i in range(3):
        a(f"s_movk_i32 s{S_T0}, {i*4096}")
        a(f"buffer_store_dwordx4 v[{T+6}:{T+9}], v{T+4}, s[{S_SRDX}:{S_SRDX+3}], s{S_T0} offen")


HELP = 'nohelp' not in DBG


def stamp_out(a, n):
    if not HELP: sentinel(a)
    if 'kstamp' not in DBG: return
    T = V_T
    a("s_waitcnt vmcnt(0) lgkmcnt(0)")
    stamp(a, n - 1)
    a("s_waitcnt lgkmcnt(0)")
    make_srd(a, S_SRDY, P_WS, 0x2000000, 0x100000)
    a(f"s_lshl_b32 s{S_T5}, s2, 2")
    a(f"s_add_u32 s{S_T5}, s{S_T5}, s{S_WAVE}")
    a(f"s_lshl_b32 s{S_T5}, s{S_T5}, 6")
    a(f"v_mov_b32 v{T+2}, s{S_T5}")
    a("s_mov_b64 exec, 1")
    for i in range(n):
        a(f"v_mov_b32 v{T+3}, s{S_ST+2*i}")
        a(f"buffer_store_dword v{T+3}, v{T+2}, s[{S_SRDY}:{S_SRDY+3}], 0 offen offset:{4*i}")
    a("s_mov_b64 exec, -1")


class Kind:
    def __init__(self, hasq, npan, swapq):
        self.hasq, self.npan, self.swapq = hasq, npan, swapq
        self.poff = ASZ + (20480 if hasq else 0)
        self.units = [('q', tn) for tn in range(5)] if hasq else []
        self.units += [('p', p, j) for p in range(npan) for j in range(2)]
        self.nu = len(self.units)
        self.per = 4 + (5 if hasq else 0) + 2 * npan
        self.nr = 1 + 2 * self.nu


def dma_list(k, t):
    st = t % K1_S
    out = []
    if 'nodma' in DBG: return out
    for i in range(4):
        out.append([f"s_add_u32 m0, s{S_MW}, {st * STG + i * 4096}",
                    f"s_add_u32 s{S_T0}, s{S_AW}, {i * 32 * 1280 + t * 128}",
                    f"buffer_load_dwordx4 v{V_DA}, s[{S_SRDA}:{S_SRDA+3}], s{S_T0} offen lds"])
    if k.hasq:
        for i in range(5):
            out.append([f"s_add_u32 m0, s{S_MW}, {st * STG + QOFF + i * 4096}",
                        f"s_add_u32 s{S_T0}, s{S_BW}, {t * 64 * 3840}",
                        f"buffer_load_dwordx4 v{V_DB+i}, s[{S_SRDB}:{S_SRDB+3}], s{S_T0} offen lds"])
    for p in range(k.npan):
        for i in range(2):
            out.append([f"s_add_u32 m0, s{S_MW}, {st * STG + k.poff + p * 8192 + i * 4096}",
                        f"s_add_u32 s{S_T0}, s{S_PW}, {(t * 64 + i * 32) * 3456 + p * 128}",
                        f"buffer_load_dwordx4 v{V_DP}, s[{S_SRDP}:{S_SRDP+3}], s{S_T0} offen lds"])
    return out


def rd(k, t, ks, u):
    st = t % K1_S
    if 'noreads' in DBG: return []
    fb = V_FR + (ks % 2) * 36
    if u == 'A':
        return [f"ds_read_b128 {vr(fb, 4)}, v{V_AA + st*4 + ks}"]
    un = k.units[u]
    if un[0] == 'q':
        return [f"ds_read_b64_tr_b16 {vr(fb + 4 + u*4 + w*2, 2)}, v{V_BQ+st} offset:{(ks*16 + 4*w)*320 + un[1]*64}" for w in range(2)]
    return [f"ds_read_b64_tr_b16 {vr(fb + 4 + u*4 + w*2, 2)}, v{V_BP+st*2+un[2]} offset:{k.poff + un[1]*8192 + (ks*16 + 4*w)*128}" for w in range(2)]


def mfma(k, ks, u, first):
    fb = V_FR + (ks % 2) * 36
    A = vr(fb, 4)
    B = vr(fb + 4 + u * 4, 4)
    acc = vr(V_ACC + u * 16, 16)
    cin = "0" if first else acc
    if k.swapq and k.units[u][0] == 'q':
        return f"v_mfma_f32_32x32x16_bf16 {acc}, {A}, {B}, {cin}"
    return f"v_mfma_f32_32x32x16_bf16 {acc}, {B}, {A}, {cin}"


S_PF = 91
PF0 = 3 if 'pf3' in DBG else 2


def prefetch(a, k):
    if 'pf' not in DBG: return []
    T = V_T
    P = T + 11
    out = []
    a(f"v_mov_b32 v{T+5}, 0x7f000000")
    a(f"v_lshrrev_b32 v{T+2}, 3, v1")
    a(f"v_mul_u32_u24 v{T+2}, 1280, v{T+2}")
    a(f"v_and_b32 v{T+3}, 7, v1")
    a(f"v_lshl_add_u32 v{T+2}, v{T+3}, 7, v{T+2}")
    a(f"v_cmp_le_u32 vcc, {PF0 - 2}, v{T+3}")
    a(f"s_and_b32 s{S_T1}, s{S_CT}, 3")
    a(f"s_mul_i32 s{S_T0}, s{S_T1}, {32*1280}")
    a(f"v_cndmask_b32 v{T+2}, v{T+5}, v{T+2}, vcc")
    a(f"s_add_u32 s{S_PF}, s{S_T0}, s{S_AW}")
    out.append([f"buffer_load_dword v{P}, v{T+2}, s[{S_SRDA}:{S_SRDA+3}], s{S_PF} offen offset:256"])
    nr = (640 - PF0 * 64 + 127) // 128
    a(f"s_and_b32 s{S_T0}, s{S_RT}, 7")
    a(f"s_lshl_b32 s{S_T0}, s{S_T0}, 4")
    a(f"s_lshl_b32 s{S_T1}, s{S_T1}, 2")
    a(f"s_add_u32 s{S_T0}, s{S_T0}, s{S_T1}")
    a(f"s_add_u32 s{S_T0}, s{S_T0}, s{S_WAVE}")
    a(f"s_mul_i32 s{S_T0}, s{S_T0}, {nr}")
    a(f"s_add_u32 s{S_T0}, s{S_T0}, {640 - 128*nr}")
    a(f"s_lshr_b32 s{S_T1}, s{S_CT}, 2")
    a(f"v_lshrrev_b32 v{T+7}, 4, v1")
    a(f"v_and_b32 v{T+3}, 15, v1")
    a(f"v_cmp_gt_u32 s[{S_EX0}:{S_EX0+1}], {nr}, v{T+7}")
    if k.hasq:
        a(f"v_mul_u32_u24 v{T+4}, 3840, v{T+7}")
        a(f"v_lshl_add_u32 v{T+4}, v{T+3}, 7, v{T+4}")
        a(f"v_cmp_gt_u32 vcc, 10, v{T+3}")
        a(f"s_mul_i32 s{S_T2}, s{S_T0}, 3840")
        a(f"s_and_b64 vcc, vcc, s[{S_EX0}:{S_EX0+1}]")
        a(f"s_mul_i32 s{S_T3}, s{S_T1}, 1280")
        a(f"v_cndmask_b32 v{T+4}, v{T+5}, v{T+4}, vcc")
        a(f"s_add_u32 s{S_PF+1}, s{S_T2}, s{S_T3}")
        out.append([f"buffer_load_dword v{P+1}, v{T+4}, s[{S_SRDB}:{S_SRDB+3}], s{S_PF+1} offen"])
        a(f"v_subrev_u32 v{T+3}, 10, v{T+3}")
        a(f"v_cmp_gt_u32 vcc, 4, v{T+3}")
        a(f"s_lshl_b32 s{S_T3}, s{S_T1}, 9")
    else:
        a(f"v_cmp_gt_u32 vcc, 15, v{T+3}")
        a(f"s_movk_i32 s{S_T3}, 1536")
    a(f"v_mul_u32_u24 v{T+6}, 3456, v{T+7}")
    a(f"v_lshl_add_u32 v{T+6}, v{T+3}, 7, v{T+6}")
    a(f"s_and_b64 vcc, vcc, s[{S_EX0}:{S_EX0+1}]")
    a(f"s_mul_i32 s{S_T2}, s{S_T0}, 3456")
    a(f"v_cndmask_b32 v{T+6}, v{T+5}, v{T+6}, vcc")
    a(f"s_add_u32 s{S_PF+2}, s{S_T2}, s{S_T3}")
    out.append([f"buffer_load_dword v{P+2}, v{T+6}, s[{S_SRDP}:{S_SRDP+3}], s{S_PF+2} offen"])
    return out


def k1_main(a, k):
    if 'pf' in DBG:
        make_srd(a, S_SRDA, P_X, 0, 2048 * 1280)
        make_srd(a, S_SRDB, P_WQKV, 0, 640 * 3840)
        make_srd(a, S_SRDP, P_W1, 0, 640 * 3456)
        for g in prefetch(a, k):
            for l in g: a(l)
    a("s_barrier")
    stamp(a, 1)
    for ks in range(2):
        for w in ['A'] + list(range(k.nu)):
            for l in rd(k, 0, ks, w): a(l)
    for t in range(KST):
        for ks in range(4):
            nt, nks = (t, ks + 2) if ks < 2 else (t + 1, ks - 2)
            has = nt < KST
            last = (t == KST - 1 and ks == 3)
            a(f"s_waitcnt lgkmcnt({0 if last else min(k.nr, 15)})")
            pend = []
            for u in range(k.nu):
                if 'nomfma' not in DBG or t == 0: a(mfma(k, ks, u, t == 0 and ks == 0))
                if has:
                    pend += rd(k, nt, nks, u)
                if ks == 2 and has and u == 0:
                    continue
                if ks == 2 and has and u == 1:
                    a(f"s_waitcnt lgkmcnt(0)")
                    a("s_barrier")
                    if t in (0, 4): stamp(a, {0: 2, 4: 3}[t])
                for l in pend: a(l)
                pend = []
            if has:
                for l in rd(k, nt, nks, 'A'): a(l)
    a("s_nop 15")
    a("s_nop 3")
    stamp(a, 4)
    if 'noepi' in DBG: a("s_endpgm")


def k1_loader(a, k, tag):
    T = V_T
    GW = 44
    GX = 64
    TL = 84
    TR = 100
    SR = S_TSRD
    vm = VM()

    def emit(g, t):
        for l in g: a(l)
        vm.add(t)
    for t in range(K1_P):
        for g in dma_list(k, t): emit(g, t)

    def side_loads():
        a(f"s_lshl_b32 s{S_T0}, s2, 2")
        a(f"s_add_u32 s{S_T0}, s{S_T0}, s{S_WAVE}")
        a(f"s_cmp_lt_u32 s{S_T0}, 740")
        a(f"s_cselect_b32 s{S_TF}, 0, 0x7f000000")
        a(f"s_min_u32 s{S_T0}, s{S_T0}, 739")
        a(f"s_mul_i32 s{S_T1}, s{S_T0}, 205")
        a(f"s_lshr_b32 s{S_T1}, s{S_T1}, 10")
        a(f"s_mul_i32 s{S_T2}, s{S_T1}, 5")
        a(f"s_sub_u32 s{S_T2}, s{S_T0}, s{S_T2}")
        a(f"s_mul_i32 s{S_TP}, s{S_T1}, 20")
        a(f"s_lshl_b32 s{S_T0}, s{S_T2}, 2")
        a(f"s_add_u32 s{S_TP}, s{S_TP}, s{S_T0}")
        a(f"s_lshl_b32 s{S_TP}, s{S_TP}, 10")
        a(f"s_sub_u32 s{S_T0}, s{S_T1}, 108")
        a(f"s_cmp_lt_u32 s{S_T1}, 108")
        a(f"s_cselect_b32 s{S_T1}, s{S_T1}, s{S_T0}")
        a(f"s_cselect_b32 s{SR}, s{P_W2}, s{P_WO}")
        a(f"s_cselect_b32 s{SR+1}, s{P_W2+1}, s{P_WO+1}")
        a(f"s_mov_b32 s{S_T0}, {640*1280}")
        a(f"s_cselect_b32 s{SR+2}, {1728*1280}, s{S_T0}")
        a(f"s_mov_b32 s{SR+3}, 0x00020000")
        a(f"s_mul_i32 s{S_T1}, s{S_T1}, {16*1280}")
        a(f"s_lshl_b32 s{S_T2}, s{S_T2}, 8")
        a(f"s_add_u32 s{S_T1}, s{S_T1}, s{S_T2}")
        a(f"v_lshlrev_b32 v{T+2}, 2, v1")
        a(f"v_add_u32 v{T+2}, s{S_TF}, v{T+2}")
        for kk in range(16):
            if kk and kk % 3 == 0:
                a(f"s_add_u32 s{S_T1}, s{S_T1}, {3*1280}")
            a(f"buffer_load_dword v{TL+kk}, v{T+2}, s[{SR}:{SR+3}], s{S_T1} offen offset:{(kk%3)*1280}")
            vm.add('tl')
        make_srd(a, S_SRDY, P_GW, 0, 1280)
        a(f"s_cmp_lt_u32 s{S_WAVE}, 2")
        a(f"s_cselect_b32 s{S_GR}, 0, 0x7f000000")
        a(f"v_and_b32 v{T}, 15, v1")
        a(f"v_lshrrev_b32 v{T+1}, 4, v1")
        a(f"v_lshlrev_b32 v{T}, 4, v{T}")
        a(f"v_add_u32 v{T}, s{S_GR}, v{T}")
        for i in range(5):
            a(f"buffer_load_dwordx4 v[{GW+4*i}:{GW+4*i+3}], v{T}, s[{S_SRDY}:{S_SRDY+3}], 0 offen offset:{i*256}")
            vm.add('tl')
        a(f"v_mul_u32_u24 v{T+1}, 1280, v{T+1}")
        a(f"v_add_u32 v{T}, v{T}, v{T+1}")
        a(f"s_lshl_b32 s{S_T0}, s2, 1")
        a(f"s_and_b32 s{S_T1}, s{S_WAVE}, 1")
        a(f"s_add_u32 s{S_T0}, s{S_T0}, s{S_T1}")
        a(f"s_lshl_b32 s{S_T5}, s{S_T0}, 4")
        a(f"s_mul_i32 s{S_T0}, s{S_T0}, {4*1280}")
        for i in range(5):
            a(f"buffer_load_dwordx4 v[{GX+4*i}:{GX+4*i+3}], v{T}, s[{S_SRDA}:{S_SRDA+3}], s{S_T0} offen offset:{i*256}")
            vm.add('tl')

    def side_sentinel():
        make_srd(a, S_SRDX, P_WS, O_OFF, O_SIZE)
        a(f"s_mul_i32 s{S_T0}, s2, 10240")
        a(f"s_add_u32 s{S_T0}, s{S_T0}, s{S_MW}")
        a(f"v_lshlrev_b32 v{T+4}, 4, v1")
        a(f"v_add_u32 v{T+4}, s{S_T0}, v{T+4}")
        a(f"v_add_u32 v{T+5}, s{S_GR}, v{T+4}")
        for i in range(4):
            a(f"v_mov_b32 v{T+6+i}, -1")
        for i in range(3):
            a(f"s_movk_i32 s{S_T0}, {i*4096}")
            a(f"buffer_store_dwordx4 v[{T+6}:{T+9}], v{T+4+(i==2)}, s[{S_SRDX}:{S_SRDX+3}], s{S_T0} offen")
            vm.add('st')

    def side_work():
        make_srd(a, S_SRDY, P_WS, WF_OFF, WF_SIZE)
        make_srd(a, S_SRDX, P_WS, G_OFF, G_SIZE)
        a(f"v_lshrrev_b32 v{T}, 4, v1")
        a(f"v_lshlrev_b32 v{T+8}, 2, v{T}")
        a(f"v_add_u32 v{T+8}, s{S_GR}, v{T+8}")
        a(f"v_lshlrev_b32 v{T}, 10, v{T}")
        a(f"v_and_b32 v{T+1}, 15, v1")
        a(f"v_lshl_add_u32 v{T}, v{T+1}, 5, v{T}")
        a(f"v_add_u32 v{T}, s{S_TF}, v{T}")
        a(f"s_mov_b32 s{S_T0}, 0x05040100")
        a(f"s_mov_b32 s{S_T1}, 0x07060302")
        a(f"v_cmp_eq_u32 s[{S_EX0}:{S_EX0+1}], 0, v{T+1}")
        a(f"s_waitcnt vmcnt({vm.need('tl')})")
        for e in range(2):
            for h in range(2):
                dd = TR + (e * 2 + h) * 4
                for i, ka in enumerate((4 * h, 4 * h + 2, 8 + 4 * h, 8 + 4 * h + 2)):
                    a(f"v_perm_b32 v{dd+i}, v{TL+ka+1}, v{TL+ka}, s{S_T1 if e else S_T0}")
                a(f"buffer_store_dwordx4 {vr(dd, 4)}, v{T}, s[{S_SRDY}:{S_SRDY+3}], s{S_TP} offen offset:{e*16 + h*512}")
                vm.add('st')
        g = T + 2
        a(f"v_mov_b32 v{g}, 0")
        a(f"v_mov_b32 v{g+1}, 0")
        for i in range(20):
            a(f"v_dot2_f32_bf16 v{g+i%2}, v{GW+i}, v{GX+i}, v{g+i%2}")
        a("s_nop 3")
        a(f"v_add_f32 v{g}, v{g}, v{g+1}")
        for sh in (8, 4, 2, 1):
            a("s_nop 1")
            a(f"v_add_f32_dpp v{g}, v{g}, v{g} row_ror:{sh} row_mask:0xf bank_mask:0xf")
        a("s_nop 1")
        a(f"v_cvt_pk_bf16_f32 v{g}, v{g}, v{g}")
        a(f"v_lshlrev_b32 v{g}, 16, v{g}")
        a(f"v_mul_f32 v{g}, {f32bits(-math.log2(math.e))}, v{g}")
        a(f"v_exp_f32 v{g}, v{g}")
        a("s_nop 0")
        a(f"v_add_f32 v{g}, 1.0, v{g}")
        a(f"v_rcp_f32 v{g}, v{g}")
        a("s_nop 0")
        a(f"v_cvt_pk_bf16_f32 v{g}, v{g}, v{g}")
        a(f"v_lshlrev_b32 v{g}, 16, v{g}")
        a(f"s_mov_b64 exec, s[{S_EX0}:{S_EX0+1}]")
        a(f"buffer_store_dword v{g}, v{T+8}, s[{S_SRDX}:{S_SRDX+3}], s{S_T5} offen")
        a("s_mov_b64 exec, -1")
        vm.add('st')

    SL = 0 if 'sl0' in DBG else 1
    SW = SL + 2
    nd = 'nodma' in DBG
    if SL == 0:
        side_loads(); side_sentinel()
    a(f"s_waitcnt vmcnt({0 if nd else vm.need(0)})")
    a("s_barrier")
    for t in range(K1_P, K1_S):
        for g in dma_list(k, t): emit(g, t)
    if SL == 1:
        side_loads(); side_sentinel()
    for t in range(KST - 1):
        a(f"s_waitcnt vmcnt({0 if nd else vm.need(t + 1)})")
        a("s_barrier")
        if t + K1_S < KST:
            for g in dma_list(k, t + K1_S): emit(g, t + K1_S)
        if t + 2 == SW:
            side_work()
    a("s_endpgm")


def h_epilogue(a, k, lds_base):
    T = V_T
    u0 = 5 if k.hasq else 0
    make_srd(a, S_SRDX, P_WS, H_OFF, H_SIZE)
    a(f"v_lshlrev_b32 v{T}, 4, v1")
    a(f"s_lshl_b32 s{S_T0}, s{S_RT}, 2")
    a(f"s_add_u32 s{S_T0}, s{S_T0}, s{S_WAVE}")
    a(f"s_mul_i32 s{S_T0}, s{S_T0}, {108*1024}")
    a(f"s_lshl_b32 s{S_T1}, s{S_T4}, 6")
    a(f"s_add_u32 s{S_T0}, s{S_T0}, s{S_T1}")
    kk = 0
    for p in range(k.npan):
        if p == 3:
            a(f"s_cmp_ge_u32 s{S_T4}, {DFF - 192}")
            a("s_cbranch_scc1 k1_hdone")
        if p:
            a(f"s_add_u32 s{S_T0}, s{S_T0}, 4096")
        for j in range(2):
            for sg in range(2):
                r = V_ACC + (u0 + p * 2 + j) * 16 + 8 * sg
                dd = V_FR + 4 * (kk % 8)
                kk += 1
                for i in range(4):
                    a(f"v_cvt_pk_bf16_f32 v{dd+i}, v{r+2*i}, v{r+2*i+1}")
                for i in range(4):
                    a(f"v_pk_max_i16 v{dd+i}, v{dd+i}, 0")
                a(f"buffer_store_dwordx4 {vr(dd, 4)}, v{T}, s[{S_SRDX}:{S_SRDX+3}], s{S_T0} offen offset:{(j*2+sg)*1024}{SC1}")
    if k.npan == 4:
        a.label("k1_hdone")


S_TSRD = 84
S_TP = 88
S_TF = 89
S_GR = 90
SC1 = ' sc1' if 'sc1' in DBG else ''
V_TL = V_ACC
V_TR = V_ACC + 16


def tr_loads(a, tag):
    T = V_T
    a(f"s_mov_b32 s{S_TP}, 0x40000000")
    a(f"s_lshl_b32 s{S_T0}, s{S_CT}, 4")
    a(f"s_add_u32 s{S_T0}, s{S_T0}, s{S_RT}")
    a(f"s_lshl_b32 s{S_T0}, s{S_T0}, 2")
    a(f"s_add_u32 s{S_T0}, s{S_T0}, s{S_WAVE}")
    a(f"s_cmp_lt_u32 s{S_T0}, 740")
    a(f"s_cselect_b32 s{S_TF}, 1, 0")
    a(f"s_cbranch_scc0 k1_ntl{tag}")
    a(f"s_mul_i32 s{S_T1}, s{S_T0}, 205")
    a(f"s_lshr_b32 s{S_T1}, s{S_T1}, 10")
    a(f"s_mul_i32 s{S_T2}, s{S_T1}, 5")
    a(f"s_sub_u32 s{S_T2}, s{S_T0}, s{S_T2}")
    a(f"s_mul_i32 s{S_TP}, s{S_T1}, 20")
    a(f"s_lshl_b32 s{S_T0}, s{S_T2}, 2")
    a(f"s_add_u32 s{S_TP}, s{S_TP}, s{S_T0}")
    a(f"s_lshl_b32 s{S_TP}, s{S_TP}, 10")
    a(f"s_sub_u32 s{S_T0}, s{S_T1}, 108")
    a(f"s_cmp_lt_u32 s{S_T1}, 108")
    a(f"s_cselect_b32 s{S_T1}, s{S_T1}, s{S_T0}")
    a(f"s_cselect_b32 s{S_TSRD}, s{P_W2}, s{P_WO}")
    a(f"s_cselect_b32 s{S_TSRD+1}, s{P_W2+1}, s{P_WO+1}")
    a(f"s_mov_b32 s{S_T0}, {640*1280}")
    a(f"s_cselect_b32 s{S_TSRD+2}, {1728*1280}, s{S_T0}")
    a(f"s_mov_b32 s{S_TSRD+3}, 0x00020000")
    a(f"s_mul_i32 s{S_T1}, s{S_T1}, {16*1280}")
    a(f"s_lshl_b32 s{S_T2}, s{S_T2}, 8")
    a(f"s_add_u32 s{S_T1}, s{S_T1}, s{S_T2}")
    a(f"v_lshlrev_b32 v{T}, 2, v1")
    for kk in range(16):
        if kk and kk % 3 == 0:
            a(f"s_add_u32 s{S_T1}, s{S_T1}, {3*1280}")
        a(f"buffer_load_dword v{V_TL+kk}, v{T}, s[{S_TSRD}:{S_TSRD+3}], s{S_T1} offen offset:{(kk%3)*1280}")
    a.label(f"k1_ntl{tag}")


def tr_stores(a, tag, nafter):
    T = V_T
    make_srd(a, S_SRDY, P_WS, WF_OFF, WF_SIZE)
    a(f"v_lshrrev_b32 v{T}, 4, v1")
    a(f"v_lshlrev_b32 v{T}, 10, v{T}")
    a(f"v_and_b32 v{T+1}, 15, v1")
    a(f"v_lshl_add_u32 v{T}, v{T+1}, 5, v{T}")
    a(f"s_mov_b32 s{S_T0}, 0x05040100")
    a(f"s_mov_b32 s{S_T1}, 0x07060302")
    a(f"s_waitcnt vmcnt({nafter})")
    for e in range(2):
        for h in range(2):
            dd = V_TR + (e * 2 + h) * 4
            for i, ka in enumerate((4 * h, 4 * h + 2, 8 + 4 * h, 8 + 4 * h + 2)):
                a(f"v_perm_b32 v{dd+i}, v{V_TL+ka+1}, v{V_TL+ka}, s{S_T1 if e else S_T0}")
            a(f"buffer_store_dwordx4 {vr(dd, 4)}, v{T}, s[{S_SRDY}:{S_SRDY+3}], s{S_TP} offen offset:{e*16 + h*512}")


def gen_k1(a):
    T = V_T
    kqk, kv, kh = Kind(True, 1, False), Kind(True, 1, True), Kind(False, 4, False)
    a.label("k1_kernel")
    tl_start(a)
    stamp(a, 0)
    a(f"s_cmp_ge_u32 s2, {K1_WGS}")
    a("s_cbranch_scc1 k1_end")
    load_ptrs(a)
    a("v_lshrrev_b32 v1, 6, v0")
    a("s_nop 0")
    a(f"v_readfirstlane_b32 s{S_ROLE}, v1")
    a("v_and_b32 v1, 63, v0")
    a("s_nop 1")
    a(f"s_and_b32 s{S_WAVE}, s{S_ROLE}, 3")
    a(f"s_and_b32 s{S_T0}, s2, 1")
    a(f"s_lshl_b32 s{S_T0}, s{S_T0}, 3")
    a(f"s_bfe_u32 s{S_T1}, s2, 0x30003")
    a(f"s_add_u32 s{S_RT}, s{S_T0}, s{S_T1}")
    a(f"s_bfe_u32 s{S_T0}, s2, 0x20001")
    a(f"s_lshl_b32 s{S_T0}, s{S_T0}, 2")
    a(f"s_lshr_b32 s{S_T1}, s2, 6")
    a(f"s_add_u32 s{S_CT}, s{S_T0}, s{S_T1}")
    a(f"s_lshl_b32 s{S_T0}, s{S_RT}, 7")
    a(f"s_lshl_b32 s{S_T1}, s{S_WAVE}, 3")
    a(f"s_add_u32 s{S_T0}, s{S_T0}, s{S_T1}")
    a(f"s_mul_i32 s{S_AW}, s{S_T0}, 1280")
    a(f"s_mul_i32 s{S_BW}, s{S_CT}, 320")
    a(f"s_lshl_b32 s{S_MW}, s{S_WAVE}, 10")
    a(f"s_lshl_b32 s{S_T0}, s{S_CT}, 6")
    a(f"s_lshl_b32 s{S_T1}, s{S_CT}, 8")
    a(f"s_sub_u32 s{S_T1}, s{S_T1}, {12*256 - 768}")
    a(f"s_cmp_lt_u32 s{S_CT}, 12")
    a(f"s_cselect_b32 s{S_T4}, s{S_T0}, s{S_T1}")
    a(f"s_lshl_b32 s{S_T0}, s{S_T4}, 1")
    a(f"s_mul_i32 s{S_T1}, s{S_WAVE}, {8*3456}")
    a(f"s_add_u32 s{S_PW}, s{S_T0}, s{S_T1}")
    a(f"s_cmp_lt_u32 s{S_ROLE}, 4")
    a("s_cbranch_scc1 k1_cons")
    a(f"v_lshrrev_b32 v{T}, 3, v1")
    a(f"v_lshrrev_b32 v{T+1}, 4, v1")
    a(f"s_and_b32 s{S_T0}, s{S_WAVE}, 1")
    a(f"s_lshl_b32 s{S_T0}, s{S_T0}, 2")
    a(f"v_add_u32 v{T+3}, s{S_T0}, v{T+1}")
    a(f"v_and_b32 v{T+2}, 7, v1")
    a(f"v_xor_b32 v{T+3}, v{T+2}, v{T+3}")
    a(f"v_lshlrev_b32 v{T+3}, 4, v{T+3}")
    a(f"s_movk_i32 s{S_T0}, 1280")
    a(f"v_mad_u32_u24 v{V_DA}, v{T}, s{S_T0}, v{T+3}")
    a(f"v_and_b32 v{T+1}, 1, v{T+1}")
    a(f"v_lshlrev_b32 v{T+1}, 2, v{T+1}")
    a(f"v_xor_b32 v{T+3}, v{T+2}, v{T+1}")
    a(f"v_lshlrev_b32 v{T+3}, 4, v{T+3}")
    a(f"s_movk_i32 s{S_T0}, 3456")
    a(f"v_mad_u32_u24 v{V_DP}, v{T}, s{S_T0}, v{T+3}")
    a(f"v_lshlrev_b32 v{T}, 4, v1")
    a(f"v_add_u32 v{T}, s{S_MW}, v{T}")
    a(f"s_movk_i32 s{S_T0}, 205")
    a(f"s_movk_i32 s{S_T1}, {3840 - 320}")
    for i in range(5):
        a(f"v_add_u32 v{T+1}, {i*4096}, v{T}")
        a(f"v_lshrrev_b32 v{T+2}, 6, v{T+1}")
        a(f"v_mul_u32_u24 v{T+2}, s{S_T0}, v{T+2}")
        a(f"v_lshrrev_b32 v{T+2}, 10, v{T+2}")
        a(f"v_mad_u32_u24 v{V_DB+i}, v{T+2}, s{S_T1}, v{T+1}")
    a("s_waitcnt lgkmcnt(0)")
    make_srd(a, S_SRDA, P_X, 0, 2048 * 1280)
    make_srd(a, S_SRDB, P_WQKV, 0, 640 * 3840)
    make_srd(a, S_SRDP, P_W1, 0, 640 * 3456)
    a(f"s_cmp_ge_u32 s{S_CT}, 12")
    a("s_cbranch_scc1 k1_lh")
    k1_loader(a, kqk, 'q')
    a.label("k1_lh")
    k1_loader(a, kh, 'h')
    a.label("k1_cons")
    a(f"v_and_b32 v{T}, 31, v1")
    a(f"v_lshrrev_b32 v{T+1}, 5, v1")
    a(f"v_bfe_u32 v{T+2}, v1, 1, 3")
    a(f"s_lshl_b32 s{S_T0}, s{S_WAVE}, 12")
    a(f"v_lshlrev_b32 v{T+3}, 7, v{T}")
    a(f"v_add_u32 v{T+3}, s{S_T0}, v{T+3}")
    for ks in range(4):
        a(f"v_add_u32 v{T+4}, {2*ks}, v{T+1}")
        a(f"v_xor_b32 v{T+4}, v{T+4}, v{T+2}")
        a(f"v_lshlrev_b32 v{T+4}, 4, v{T+4}")
        a(f"v_add_u32 v{V_AA+ks}, v{T+3}, v{T+4}")
    a(f"s_mov_b32 s{S_T0}, {STG}")
    a(f"s_mov_b32 s{S_T1}, {2*STG}")
    for ks in range(4):
        a(f"v_add_u32 v{V_AA+4+ks}, s{S_T0}, v{V_AA+ks}")
        a(f"v_add_u32 v{V_AA+8+ks}, s{S_T1}, v{V_AA+ks}")
    a(f"v_bfe_u32 v{T}, v1, 2, 2")
    a(f"v_and_b32 v{T+2}, 3, v1")
    a(f"v_bfe_u32 v{T+3}, v1, 4, 1")
    a(f"v_lshl_add_u32 v{T+4}, v{T+1}, 3, v{T}")
    a(f"v_lshlrev_b32 v{T+5}, 3, v{T+2}")
    a(f"v_lshl_add_u32 v{T+5}, v{T+3}, 5, v{T+5}")
    a(f"v_mul_u32_u24 v{T+6}, 320, v{T+4}")
    a(f"v_add_u32 v{T+6}, v{T+6}, v{T+5}")
    a(f"v_add_u32 v{V_BQ}, {QOFF}, v{T+6}")
    a(f"v_add_u32 v{V_BQ+1}, s{S_T0}, v{V_BQ}")
    a(f"v_add_u32 v{V_BQ+2}, s{S_T1}, v{V_BQ}")
    a(f"v_lshl_add_u32 v{T+6}, v{T+4}, 7, v{T+5}")
    a(f"v_lshrrev_b32 v{T+7}, 1, v{T}")
    for j in range(2):
        a(f"v_xor_b32 v{T+8}, {j}, v{T+7}")
        a(f"v_lshl_add_u32 v{V_BP+j}, v{T+8}, 6, v{T+6}")
        a(f"v_add_u32 v{V_BP+2+j}, s{S_T0}, v{V_BP+j}")
        a(f"v_add_u32 v{V_BP+4+j}, s{S_T1}, v{V_BP+j}")
    a("s_waitcnt lgkmcnt(0)")
    a(f"s_cmp_ge_u32 s{S_CT}, 12")
    a("s_cbranch_scc1 k1_h")
    a(f"s_cmp_ge_u32 s{S_CT}, 8")
    a("s_cbranch_scc1 k1_v")
    k1_main(a, kqk)
    EB = STG
    h_epilogue(a, kqk, EB + 40960)
    a(f"s_mov_b32 s{S_T0}, {f32bits(QSCALE)}")
    a(f"s_cmp_lt_u32 s{S_CT}, 4")
    a(f"s_cselect_b32 s{S_T4}, s{S_T0}, 1.0")
    a(f"s_mov_b32 s{S_T5}, s{S_T4}")
    a(f"s_movk_i32 s{S_T3}, 2560")
    a(f"s_cselect_b32 s{S_T3}, 1280, s{S_T3}")
    a(f"s_cselect_b32 s{S_T0}, {QF_OFF}, {KV_OFF}")
    a(f"s_mov_b32 s{S_T1}, {KV_SIZE}")
    a(f"s_cselect_b32 s{S_T1}, {QF_SIZE}, s{S_T1}")
    a(f"s_add_u32 s{S_SRDO}, s{P_WS}, s{S_T0}")
    a(f"s_addc_u32 s{S_SRDO+1}, s{P_WS+1}, 0")
    a(f"s_mov_b32 s{S_SRDO+2}, s{S_T1}")
    a(f"s_mov_b32 s{S_SRDO+3}, 0x00020000")
    a(f"s_mul_i32 s{S_T0}, s{S_WAVE}, 10240")
    a(f"s_add_u32 s{S_T0}, s{S_T0}, {EB}")
    a(f"v_and_b32 v{T}, 31, v1")
    a(f"v_lshrrev_b32 v{T+1}, 5, v1")
    a(f"v_lshlrev_b32 v{T+2}, 4, v{T}")
    a(f"v_add_u32 v{T+2}, s{S_T0}, v{T+2}")
    a(f"v_lshlrev_b32 v{T+3}, 3, v{T}")
    a(f"v_add_u32 v{T+3}, s{S_T0}, v{T+3}")
    a("v_cmp_gt_u32 vcc, 32, v1")

    def off(n):
        hd, d = n // 20, n % 20
        if d < 16:
            return hd * 1280 + (d >> 3) * 512 + ((d >> 2) & 1) * 8, False
        return hd * 1280 + 1024, True
    kk = 0
    for tn in range(5):
        for g in range(4):
            r = V_ACC + tn * 16 + 4 * g
            n0 = tn * 32 + 8 * g
            (c0, e0), (c1, e1) = off(n0), off(n0 + 4)
            ad = T + 4 + (kk % 2)
            dd = T + 6 + 2 * (kk % 2)
            kk += 1
            b0 = T + 3 if e0 else T + 2
            b1 = T + 3 if e1 else T + 2
            if e0 == e1:
                a(f"v_mad_u32_u24 v{ad}, v{T+1}, {c1 - c0}, v{b0}" if c1 - c0 <= 64 else f"v_mov_b32 v{ad}, {c1-c0}")
                if c1 - c0 > 64:
                    a(f"v_mad_u32_u24 v{ad}, v{T+1}, v{ad}, v{b0}")
            else:
                a(f"v_add_u32 v{ad}, {c1 - c0}, v{b1}")
                a(f"v_cndmask_b32 v{ad}, v{ad}, v{b0}, vcc")
            a(f"v_pk_mul_f32 v[{r}:{r+1}], v[{r}:{r+1}], s[{S_T4}:{S_T5}]")
            a(f"v_pk_mul_f32 v[{r+2}:{r+3}], v[{r+2}:{r+3}], s[{S_T4}:{S_T5}]")
            a(f"v_cvt_pk_bf16_f32 v{dd}, v{r}, v{r+1}")
            a(f"v_cvt_pk_bf16_f32 v{dd+1}, v{r+2}, v{r+3}")
            a(f"ds_write_b64 v{ad}, v[{dd}:{dd+1}] offset:{c0}")
    a(f"v_lshlrev_b32 v{T}, 4, v1")
    a(f"v_add_u32 v{T+1}, s{S_T0}, v{T}")
    a(f"v_lshrrev_b32 v{T+2}, 4, v1")
    a(f"s_and_b32 s{S_T0}, s{S_CT}, 3")
    a(f"s_lshl_b32 s{S_T0}, s{S_T0}, 9")
    a(f"s_lshl_b32 s{S_T1}, s{S_RT}, 2")
    a(f"s_add_u32 s{S_T0}, s{S_T0}, s{S_T1}")
    a(f"s_add_u32 s{S_T0}, s{S_T0}, s{S_WAVE}")
    a(f"s_mul_i32 s{S_T0}, s{S_T0}, s{S_T3}")
    a(f"s_lshl_b32 s{S_T1}, s{S_T3}, 6")
    a(f"s_sub_u32 s{S_T1}, s{S_T1}, 1280")
    a(f"s_movk_i32 s{S_T2}, 205")
    a("s_waitcnt lgkmcnt(0)")
    QD = V_FR + 16
    for i in range(10):
        a(f"ds_read_b128 {vr(QD + 4*i, 4)}, v{T+1} offset:{i*1024}")
    for i in range(10):
        ad = V_ACC + i
        a(f"v_add_u32 v{ad}, {4*i}, v{T+2}")
        a(f"v_mul_u32_u24 v{ad}, s{S_T2}, v{ad}")
        a(f"v_lshrrev_b32 v{ad}, 10, v{ad}")
        a(f"v_mul_lo_u32 v{ad}, v{ad}, s{S_T1}")
        a(f"v_add_u32 v{ad}, v{ad}, v{T}")
        if i:
            a(f"v_add_u32 v{ad}, {i*1024}, v{ad}")
    for i in range(10):
        a(f"s_waitcnt lgkmcnt({9-i})")
        a(f"buffer_store_dwordx4 {vr(QD + 4*i, 4)}, v{V_ACC+i}, s[{S_SRDO}:{S_SRDO+3}], s{S_T0} offen{SC1}")
    stamp_out(a, 6)
    tl_end(a, 0)
    a("s_endpgm")
    a.label("k1_v")
    k1_main(a, kv)
    h_epilogue(a, kv, EB)
    make_srd(a, S_SRDO, P_WS, KV_OFF, KV_SIZE)
    a(f"v_and_b32 v{T}, 31, v1")
    a(f"v_lshrrev_b32 v{T+1}, 5, v1")
    a(f"v_mul_u32_u24 v{T+1}, 320, v{T+1}")
    a(f"v_add_u32 v{T+1}, 1280, v{T+1}")
    a(f"s_sub_u32 s{S_T0}, s{S_CT}, 8")
    a(f"s_lshl_b32 s{S_T0}, s{S_T0}, 9")
    a(f"s_lshl_b32 s{S_T1}, s{S_RT}, 2")
    a(f"s_add_u32 s{S_T0}, s{S_T0}, s{S_T1}")
    a(f"s_add_u32 s{S_T0}, s{S_T0}, s{S_WAVE}")
    a(f"s_mul_i32 s{S_T0}, s{S_T0}, 2560")
    a(f"s_movk_i32 s{S_T3}, 3277")
    a(f"s_mov_b32 s{S_T2}, {64*2560}")
    VD = V_FR + 16
    for tn in range(5):
        a(f"v_add_u32 v{T+2}, {tn*32}, v{T}")
        a(f"v_mul_u32_u24 v{T+3}, s{S_T3}, v{T+2}")
        a(f"v_lshrrev_b32 v{T+3}, 16, v{T+3}")
        a(f"v_mul_u32_u24 v{T+4}, 20, v{T+3}")
        a(f"v_sub_u32 v{T+4}, v{T+2}, v{T+4}")
        a(f"v_mul_lo_u32 v{T+3}, v{T+3}, s{S_T2}")
        a(f"v_lshl_add_u32 v{T+5}, v{T+4}, 4, v{T+1}")
        a(f"v_add_u32 v{VD+40+tn}, v{T+5}, v{T+3}")
        for m in range(2):
            r = V_ACC + tn * 16 + 8 * m
            dd = VD + (tn * 2 + m) * 4
            for i in range(4):
                a(f"v_cvt_pk_bf16_f32 v{dd+i}, v{r+2*i}, v{r+2*i+1}")
            a(f"buffer_store_dwordx4 v[{dd}:{dd+3}], v{VD+40+tn}, s[{S_SRDO}:{S_SRDO+3}], s{S_T0} offen offset:{m*640}{SC1}")
    stamp_out(a, 6)
    tl_end(a, 0)
    a("s_endpgm")
    a.label("k1_h")
    k1_main(a, kh)
    h_epilogue(a, kh, EB)
    stamp_out(a, 6)
    tl_end(a, 0)
    a.label("k1_end")
    a("s_endpgm")
    return dict(name="k1_kernel", vgpr=V_ACC + 128, sgpr=96, grid=K1_WGS, block=512, lds=K1_S * STG)


def gen_gate(a, s_idx, wave8=True):
    make_srd(a, S_SRDA, P_X, 0, 2048 * 1280)
    make_srd(a, S_SRDB, P_GW, 0, 1280)
    make_srd(a, S_SRDO, P_WS, G_OFF, G_SIZE)
    a("v_and_b32 v2, 15, v1")
    a("v_lshrrev_b32 v3, 4, v1")
    a("v_lshlrev_b32 v4, 4, v2")
    for i in range(5):
        a(f"buffer_load_dwordx4 v[{24+4*i}:{27+4*i}], v4, s[{S_SRDB}:{S_SRDB+3}], 0 offen offset:{i*256}")
    a(f"s_lshl_b32 s{S_T0}, s{s_idx}, 8")
    a(f"s_lshl_b32 s{S_T1}, s{S_WAVE}, 5")
    a(f"s_add_u32 s{S_T0}, s{S_T0}, s{S_T1}")
    a(f"v_add_u32 v5, s{S_T0}, v3")
    a(f"v_mul_u32_u24 v6, 1280, v5")
    a(f"v_add_u32 v6, v6, v4")
    a(f"v_lshlrev_b32 v7, 2, v5")
    a("v_cmp_eq_u32 vcc, 0, v2")
    a(f"s_mov_b64 s[{S_EX0}:{S_EX0+1}], vcc")
    for p in range(8):
        for i in range(5):
            a(f"s_mov_b32 s{S_T0}, {p*4*1280}")
            a(f"buffer_load_dwordx4 v[{48+4*i}:{51+4*i}], v6, s[{S_SRDA}:{S_SRDA+3}], s{S_T0} offen offset:{i*256}")
        a("s_waitcnt vmcnt(0)")
        a("v_mov_b32 v8, 0")
        for i in range(20):
            a(f"v_dot2_f32_bf16 v8, v{24+i}, v{48+i}, v8")
        a("s_nop 3")
        for sh in (8, 4, 2, 1):
            a("s_nop 1")
            a(f"v_add_f32_dpp v8, v8, v8 row_ror:{sh} row_mask:0xf bank_mask:0xf")
        a("s_nop 1")
        a("v_cvt_pk_bf16_f32 v8, v8, v8")
        a("v_lshlrev_b32 v8, 16, v8")
        a(f"v_mul_f32 v8, {f32bits(-math.log2(math.e))}, v8")
        a("v_exp_f32 v8, v8")
        a("s_nop 0")
        a("v_add_f32 v8, 1.0, v8")
        a("v_rcp_f32 v8, v8")
        a("s_nop 0")
        a("v_cvt_pk_bf16_f32 v8, v8, v8")
        a("v_lshlrev_b32 v8, 16, v8")
        a(f"s_mov_b64 exec, s[{S_EX0}:{S_EX0+1}]")
        a(f"buffer_store_dword v8, v7, s[{S_SRDO}:{S_SRDO+3}], 0 offen offset:{p*16}")
        a("s_mov_b64 exec, -1")
        a("s_nop 1")
    a("s_endpgm")
```

```python
import math
from gen import *

K1_WGS = 256
K1_S = 3
K1_P = 3 if 'p3' in DBG else 2
ASZ = 128 * 128
STG = 49152
QOFF = ASZ
V_DA = 2
V_DB = 3
V_DP = 8
V_AA = 9
V_BQ = 21
V_BP = 24
V_T = 30
V_FR = 44
V_ACC = 116
KST = 10
S_PW = 62
S_ROLE = 63
S_SRDP = 64
S_ST = 68


def stamp(a, i):
    if 'kstamp' in DBG:
        a(f"{'s_memtime' if 'cyc' in DBG else 's_memrealtime'} s[{S_ST+2*i}:{S_ST+2*i+1}]")


def sentinel(a):
    T = V_T
    make_srd(a, S_SRDX, P_WS, O_OFF, O_SIZE)
    a(f"s_mul_i32 s{S_T0}, s2, 10240")
    a(f"s_add_u32 s{S_T0}, s{S_T0}, s{S_MW}")
    a(f"v_lshlrev_b32 v{T+4}, 4, v1")
    a(f"v_add_u32 v{T+4}, s{S_T0}, v{T+4}")
    for i in range(4):
        a(f"v_mov_b32 v{T+6+i}, -1")
    for i in range(3):
        a(f"s_movk_i32 s{S_T0}, {i*4096}")
        a(f"buffer_store_dwordx4 v[{T+6}:{T+9}], v{T+4}, s[{S_SRDX}:{S_SRDX+3}], s{S_T0} offen")


HELP = 'nohelp' not in DBG


def stamp_out(a, n):
    if not HELP: sentinel(a)
    if 'kstamp' not in DBG: return
    T = V_T
    a("s_waitcnt vmcnt(0) lgkmcnt(0)")
    stamp(a, n - 1)
    a("s_waitcnt lgkmcnt(0)")
    make_srd(a, S_SRDY, P_WS, 0x2000000, 0x100000)
    a(f"s_lshl_b32 s{S_T5}, s2, 2")
    a(f"s_add_u32 s{S_T5}, s{S_T5}, s{S_WAVE}")
    a(f"s_lshl_b32 s{S_T5}, s{S_T5}, 6")
    a(f"v_mov_b32 v{T+2}, s{S_T5}")
    a("s_mov_b64 exec, 1")
    for i in range(n):
        a(f"v_mov_b32 v{T+3}, s{S_ST+2*i}")
        a(f"buffer_store_dword v{T+3}, v{T+2}, s[{S_SRDY}:{S_SRDY+3}], 0 offen offset:{4*i}")
    a("s_mov_b64 exec, -1")


class Kind:
    def __init__(self, hasq, npan, swapq):
        self.hasq, self.npan, self.swapq = hasq, npan, swapq
        self.poff = ASZ + (20480 if hasq else 0)
        self.units = [('q', tn) for tn in range(5)] if hasq else []
        self.units += [('p', p, j) for p in range(npan) for j in range(2)]
        self.nu = len(self.units)
        self.per = 4 + (5 if hasq else 0) + 2 * npan
        self.nr = 1 + 2 * self.nu


def dma_list(k, t):
    st = t % K1_S
    out = []
    if 'nodma' in DBG: return out
    for i in range(4):
        out.append([f"s_add_u32 m0, s{S_MW}, {st * STG + i * 4096}",
                    f"s_add_u32 s{S_T0}, s{S_AW}, {i * 32 * 1280 + t * 128}",
                    f"buffer_load_dwordx4 v{V_DA}, s[{S_SRDA}:{S_SRDA+3}], s{S_T0} offen lds"])
    if k.hasq:
        for i in range(5):
            out.append([f"s_add_u32 m0, s{S_MW}, {st * STG + QOFF + i * 4096}",
                        f"s_add_u32 s{S_T0}, s{S_BW}, {t * 64 * 3840}",
                        f"buffer_load_dwordx4 v{V_DB+i}, s[{S_SRDB}:{S_SRDB+3}], s{S_T0} offen lds"])
    for p in range(k.npan):
        for i in range(2):
            out.append([f"s_add_u32 m0, s{S_MW}, {st * STG + k.poff + p * 8192 + i * 4096}",
                        f"s_add_u32 s{S_T0}, s{S_PW}, {(t * 64 + i * 32) * 3456 + p * 128}",
                        f"buffer_load_dwordx4 v{V_DP}, s[{S_SRDP}:{S_SRDP+3}], s{S_T0} offen lds"])
    return out


def rd(k, t, ks, u):
    st = t % K1_S
    if 'noreads' in DBG: return []
    fb = V_FR + (ks % 2) * 36
    if u == 'A':
        return [f"ds_read_b128 {vr(fb, 4)}, v{V_AA + st*4 + ks}"]
    un = k.units[u]
    if un[0] == 'q':
        return [f"ds_read_b64_tr_b16 {vr(fb + 4 + u*4 + w*2, 2)}, v{V_BQ+st} offset:{(ks*16 + 4*w)*320 + un[1]*64}" for w in range(2)]
    return [f"ds_read_b64_tr_b16 {vr(fb + 4 + u*4 + w*2, 2)}, v{V_BP+st*2+un[2]} offset:{k.poff + un[1]*8192 + (ks*16 + 4*w)*128}" for w in range(2)]


def mfma(k, ks, u, first):
    fb = V_FR + (ks % 2) * 36
    A = vr(fb, 4)
    B = vr(fb + 4 + u * 4, 4)
    acc = vr(V_ACC + u * 16, 16)
    cin = "0" if first else acc
    if k.swapq and k.units[u][0] == 'q':
        return f"v_mfma_f32_32x32x16_bf16 {acc}, {A}, {B}, {cin}"
    return f"v_mfma_f32_32x32x16_bf16 {acc}, {B}, {A}, {cin}"


S_PF = 91
PF0 = 3 if 'pf3' in DBG else 2


def prefetch(a, k):
    if 'pf' not in DBG: return []
    T = V_T
    P = T + 11
    out = []
    a(f"v_mov_b32 v{T+5}, 0x7f000000")
    a(f"v_lshrrev_b32 v{T+2}, 3, v1")
    a(f"v_mul_u32_u24 v{T+2}, 1280, v{T+2}")
    a(f"v_and_b32 v{T+3}, 7, v1")
    a(f"v_lshl_add_u32 v{T+2}, v{T+3}, 7, v{T+2}")
    a(f"v_cmp_le_u32 vcc, {PF0 - 2}, v{T+3}")
    a(f"s_and_b32 s{S_T1}, s{S_CT}, 3")
    a(f"s_mul_i32 s{S_T0}, s{S_T1}, {32*1280}")
    a(f"v_cndmask_b32 v{T+2}, v{T+5}, v{T+2}, vcc")
    a(f"s_add_u32 s{S_PF}, s{S_T0}, s{S_AW}")
    out.append([f"buffer_load_dword v{P}, v{T+2}, s[{S_SRDA}:{S_SRDA+3}], s{S_PF} offen offset:256"])
    nr = (640 - PF0 * 64 + 127) // 128
    a(f"s_and_b32 s{S_T0}, s{S_RT}, 7")
    a(f"s_lshl_b32 s{S_T0}, s{S_T0}, 4")
    a(f"s_lshl_b32 s{S_T1}, s{S_T1}, 2")
    a(f"s_add_u32 s{S_T0}, s{S_T0}, s{S_T1}")
    a(f"s_add_u32 s{S_T0}, s{S_T0}, s{S_WAVE}")
    a(f"s_mul_i32 s{S_T0}, s{S_T0}, {nr}")
    a(f"s_add_u32 s{S_T0}, s{S_T0}, {640 - 128*nr}")
    a(f"s_lshr_b32 s{S_T1}, s{S_CT}, 2")
    a(f"v_lshrrev_b32 v{T+7}, 4, v1")
    a(f"v_and_b32 v{T+3}, 15, v1")
    a(f"v_cmp_gt_u32 s[{S_EX0}:{S_EX0+1}], {nr}, v{T+7}")
    if k.hasq:
        a(f"v_mul_u32_u24 v{T+4}, 3840, v{T+7}")
        a(f"v_lshl_add_u32 v{T+4}, v{T+3}, 7, v{T+4}")
        a(f"v_cmp_gt_u32 vcc, 10, v{T+3}")
        a(f"s_mul_i32 s{S_T2}, s{S_T0}, 3840")
        a(f"s_and_b64 vcc, vcc, s[{S_EX0}:{S_EX0+1}]")
        a(f"s_mul_i32 s{S_T3}, s{S_T1}, 1280")
        a(f"v_cndmask_b32 v{T+4}, v{T+5}, v{T+4}, vcc")
        a(f"s_add_u32 s{S_PF+1}, s{S_T2}, s{S_T3}")
        out.append([f"buffer_load_dword v{P+1}, v{T+4}, s[{S_SRDB}:{S_SRDB+3}], s{S_PF+1} offen"])
        a(f"v_subrev_u32 v{T+3}, 10, v{T+3}")
        a(f"v_cmp_gt_u32 vcc, 4, v{T+3}")
        a(f"s_lshl_b32 s{S_T3}, s{S_T1}, 9")
    else:
        a(f"v_cmp_gt_u32 vcc, 15, v{T+3}")
        a(f"s_movk_i32 s{S_T3}, 1536")
    a(f"v_mul_u32_u24 v{T+6}, 3456, v{T+7}")
    a(f"v_lshl_add_u32 v{T+6}, v{T+3}, 7, v{T+6}")
    a(f"s_and_b64 vcc, vcc, s[{S_EX0}:{S_EX0+1}]")
    a(f"s_mul_i32 s{S_T2}, s{S_T0}, 3456")
    a(f"v_cndmask_b32 v{T+6}, v{T+5}, v{T+6}, vcc")
    a(f"s_add_u32 s{S_PF+2}, s{S_T2}, s{S_T3}")
    out.append([f"buffer_load_dword v{P+2}, v{T+6}, s[{S_SRDP}:{S_SRDP+3}], s{S_PF+2} offen"])
    return out


def k1_main(a, k):
    if 'pf' in DBG:
        make_srd(a, S_SRDA, P_X, 0, 2048 * 1280)
        make_srd(a, S_SRDB, P_WQKV, 0, 640 * 3840)
        make_srd(a, S_SRDP, P_W1, 0, 640 * 3456)
        for g in prefetch(a, k):
            for l in g: a(l)
    a("s_barrier")
    stamp(a, 1)
    for ks in range(2):
        for w in ['A'] + list(range(k.nu)):
            for l in rd(k, 0, ks, w): a(l)
    for t in range(KST):
        for ks in range(4):
            nt, nks = (t, ks + 2) if ks < 2 else (t + 1, ks - 2)
            has = nt < KST
            last = (t == KST - 1 and ks == 3)
            a(f"s_waitcnt lgkmcnt({0 if last else min(k.nr, 15)})")
            pend = []
            for u in range(k.nu):
                if 'nomfma' not in DBG or t == 0: a(mfma(k, ks, u, t == 0 and ks == 0))
                if has:
                    pend += rd(k, nt, nks, u)
                if ks == 2 and has and u == 0:
                    continue
                if ks == 2 and has and u == 1:
                    a(f"s_waitcnt lgkmcnt(0)")
                    a("s_barrier")
                    if t in (0, 4): stamp(a, {0: 2, 4: 3}[t])
                for l in pend: a(l)
                pend = []
            if has:
                for l in rd(k, nt, nks, 'A'): a(l)
    a("s_nop 15")
    a("s_nop 3")
    stamp(a, 4)
    if 'noepi' in DBG: a("s_endpgm")


def k1_loader(a, k, tag):
    S_SD0 = S_T0
    T = V_T
    GW = 44
    GX = 64
    TL = 84
    TR = 100
    SR = S_TSRD
    vm = VM()

    def emit(g, t):
        for l in g: a(l)
        vm.add(t)
    for t in range(K1_P):
        for g in dma_list(k, t): emit(g, t)

    def side_loads():
        a(f"s_lshl_b32 s{S_T0}, s2, 2")
        a(f"s_add_u32 s{S_T0}, s{S_T0}, s{S_WAVE}")
        a(f"s_cmp_lt_u32 s{S_T0}, 740")
        a(f"s_cselect_b32 s{S_TF}, 0, 0x7f000000")
        a(f"s_min_u32 s{S_T0}, s{S_T0}, 739")
        a(f"s_mul_i32 s{S_T1}, s{S_T0}, 205")
        a(f"s_lshr_b32 s{S_T1}, s{S_T1}, 10")
        a(f"s_mul_i32 s{S_T2}, s{S_T1}, 5")
        a(f"s_sub_u32 s{S_T2}, s{S_T0}, s{S_T2}")
        a(f"s_mul_i32 s{S_TP}, s{S_T1}, 20")
        a(f"s_lshl_b32 s{S_T0}, s{S_T2}, 2")
        a(f"s_add_u32 s{S_TP}, s{S_TP}, s{S_T0}")
        a(f"s_lshl_b32 s{S_TP}, s{S_TP}, 10")
        a(f"s_sub_u32 s{S_T0}, s{S_T1}, 108")
        a(f"s_cmp_lt_u32 s{S_T1}, 108")
        a(f"s_cselect_b32 s{S_T1}, s{S_T1}, s{S_T0}")
        a(f"s_cselect_b32 s{SR}, s{P_W2}, s{P_WO}")
        a(f"s_cselect_b32 s{SR+1}, s{P_W2+1}, s{P_WO+1}")
        a(f"s_mov_b32 s{S_T0}, {640*1280}")
        a(f"s_cselect_b32 s{SR+2}, {1728*1280}, s{S_T0}")
        a(f"s_mov_b32 s{SR+3}, 0x00020000")
        a(f"s_mul_i32 s{S_T1}, s{S_T1}, {16*1280}")
        a(f"s_lshl_b32 s{S_T2}, s{S_T2}, 8")
        a(f"s_add_u32 s{S_T1}, s{S_T1}, s{S_T2}")
        a(f"v_lshlrev_b32 v{T+2}, 2, v1")
        a(f"v_add_u32 v{T+2}, s{S_TF}, v{T+2}")
        for kk in range(16):
            if kk and kk % 3 == 0:
                a(f"s_add_u32 s{S_T1}, s{S_T1}, {3*1280}")
            a(f"buffer_load_dword v{TL+kk}, v{T+2}, s[{SR}:{SR+3}], s{S_T1} offen offset:{(kk%3)*1280}")
            vm.add('tl')
        make_srd(a, S_SRDY, P_GW, 0, 1280)
        a(f"s_cmp_lt_u32 s{S_WAVE}, 2")
        a(f"s_cselect_b32 s{S_GR}, 0, 0x7f000000")
        a(f"v_and_b32 v{T}, 15, v1")
        a(f"v_lshrrev_b32 v{T+1}, 4, v1")
        a(f"v_lshlrev_b32 v{T}, 4, v{T}")
        a(f"v_add_u32 v{T}, s{S_GR}, v{T}")
        for i in range(5):
            a(f"buffer_load_dwordx4 v[{GW+4*i}:{GW+4*i+3}], v{T}, s[{S_SRDY}:{S_SRDY+3}], 0 offen offset:{i*256}")
            vm.add('tl')
        a(f"v_mul_u32_u24 v{T+1}, 1280, v{T+1}")
        a(f"v_add_u32 v{T}, v{T}, v{T+1}")
        a(f"s_lshl_b32 s{S_T0}, s2, 1")
        a(f"s_and_b32 s{S_T1}, s{S_WAVE}, 1")
        a(f"s_add_u32 s{S_T0}, s{S_T0}, s{S_T1}")
        a(f"s_lshl_b32 s{S_T5}, s{S_T0}, 4")
        a(f"s_mul_i32 s{S_T3}, s{S_T0}, {4*1280}")
        for i in range(5):
            a(f"buffer_load_dwordx4 v[{GX+4*i}:{GX+4*i+3}], v{T}, s[{S_SRDA}:{S_SRDA+3}], s{S_T3} offen offset:{i*256}")
            vm.add('tl')

    def side_sentinel():
        make_srd(a, S_SRDX, P_WS, O_OFF, O_SIZE)
        a(f"s_mul_i32 s{S_T0}, s2, 10240")
        a(f"s_add_u32 s{S_T0}, s{S_T0}, s{S_MW}")
        a(f"v_lshlrev_b32 v{T+4}, 4, v1")
        a(f"v_add_u32 v{T+4}, s{S_T0}, v{T+4}")
        a(f"v_add_u32 v{T+5}, s{S_GR}, v{T+4}")
        for i in range(4):
            a(f"v_mov_b32 v{T+6+i}, -1")
        for i in range(3):
            a(f"s_movk_i32 s{S_T0}, {i*4096}")
            a(f"buffer_store_dwordx4 v[{T+6}:{T+9}], v{T+4+(i==2)}, s[{S_SRDX}:{S_SRDX+3}], s{S_T0} offen")
            vm.add('st')

    def side_work():
        make_srd(a, S_SRDY, P_WS, WF_OFF, WF_SIZE)
        make_srd(a, S_SRDX, P_WS, G_OFF, G_SIZE)
        a(f"v_lshrrev_b32 v{T}, 4, v1")
        a(f"v_lshlrev_b32 v{T+8}, 2, v{T}")
        a(f"v_add_u32 v{T+8}, s{S_GR}, v{T+8}")
        a(f"v_lshlrev_b32 v{T}, 10, v{T}")
        a(f"v_and_b32 v{T+1}, 15, v1")
        a(f"v_lshl_add_u32 v{T}, v{T+1}, 5, v{T}")
        a(f"v_add_u32 v{T}, s{S_TF}, v{T}")
        a(f"s_mov_b32 s{S_T0}, 0x05040100")
        a(f"s_mov_b32 s{S_T1}, 0x07060302")
        a(f"v_cmp_eq_u32 s[{S_EX0}:{S_EX0+1}], 0, v{T+1}")
        a(f"s_waitcnt vmcnt({vm.need('tl')})")
        for e in range(2):
            for h in range(2):
                dd = TR + (e * 2 + h) * 4
                for i, ka in enumerate((4 * h, 4 * h + 2, 8 + 4 * h, 8 + 4 * h + 2)):
                    a(f"v_perm_b32 v{dd+i}, v{TL+ka+1}, v{TL+ka}, s{S_T1 if e else S_T0}")
                a(f"buffer_store_dwordx4 {vr(dd, 4)}, v{T}, s[{S_SRDY}:{S_SRDY+3}], s{S_TP} offen offset:{e*16 + h*512}")
                vm.add('st')
        g = T + 2
        a(f"v_mov_b32 v{g}, 0")
        a(f"v_mov_b32 v{g+1}, 0")
        for i in range(20):
            a(f"v_dot2_f32_bf16 v{g+i%2}, v{GW+i}, v{GX+i}, v{g+i%2}")
        a("s_nop 3")
        a(f"v_add_f32 v{g}, v{g}, v{g+1}")
        for sh in (8, 4, 2, 1):
            a("s_nop 1")
            a(f"v_add_f32_dpp v{g}, v{g}, v{g} row_ror:{sh} row_mask:0xf bank_mask:0xf")
        a("s_nop 1")
        a(f"v_cvt_pk_bf16_f32 v{g}, v{g}, v{g}")
        a(f"v_lshlrev_b32 v{g}, 16, v{g}")
        a(f"v_mul_f32 v{g}, {f32bits(-math.log2(math.e))}, v{g}")
        a(f"v_exp_f32 v{g}, v{g}")
        a("s_nop 0")
        a(f"v_add_f32 v{g}, 1.0, v{g}")
        a(f"v_rcp_f32 v{g}, v{g}")
        a("s_nop 0")
        a(f"v_cvt_pk_bf16_f32 v{g}, v{g}, v{g}")
        a(f"v_lshlrev_b32 v{g}, 16, v{g}")
        a(f"s_mov_b64 exec, s[{S_EX0}:{S_EX0+1}]")
        a(f"buffer_store_dword v{g}, v{T+8}, s[{S_SRDX}:{S_SRDX+3}], s{S_T5} offen")
        a("s_mov_b64 exec, -1")
        vm.add('st')

    real_a, real_vm = a, vm
    cap = []

    class Cap:
        def __call__(self, l): cap.append(l)
    a = Cap()
    vm = VM()
    side_loads()
    a, vm = real_a, real_vm
    groups, cur = [], []
    for l in cap:
        cur.append(l)
        if l.startswith("buffer_load"):
            groups.append(cur); cur = []
    assert not cur and len(groups) == 26
    plan, SW = {1: 5, 2: 5, 3: 6, 4: 5, 5: 5}, 6
    if 'sp2' in DBG: plan, SW = {1: 16, 2: 10}, 4
    if 'sp3' in DBG: plan, SW = {1: 5, 2: 5, 3: 6, 4: 5, 5: 5}, 6
    if 'sp4' in DBG: plan, SW = {2: 8, 3: 8, 4: 10}, 6

    def side(b):
        for _ in range(plan.get(b, 0)):
            for l in groups.pop(0): a(l.replace(f"s{S_T0},", f"s{S_SD0},").replace(f"s{S_T0} ", f"s{S_SD0} ") if False else l)
            vm.add('tl')
    nd = 'nodma' in DBG
    a(f"s_cmp_lt_u32 s{S_WAVE}, 2")
    a(f"s_cselect_b32 s{S_GR}, 0, 0x7f000000")
    a(f"s_waitcnt vmcnt({0 if nd else vm.need(0)})")
    a("s_barrier")
    side_sentinel()
    side(1)
    for t in range(K1_P, K1_S):
        for g in dma_list(k, t): emit(g, t)
    for t in range(KST - 1):
        a(f"s_waitcnt vmcnt({0 if nd else vm.need(t + 1)})")
        a("s_barrier")
        side(t + 2)
        if t + 2 == SW and 'swearly' in DBG:
            side_work()
        if t + K1_S < KST:
            for g in dma_list(k, t + K1_S): emit(g, t + K1_S)
        if t + 2 == SW and 'swearly' not in DBG:
            side_work()
    assert not groups
    a("s_endpgm")


def h_epilogue(a, k, lds_base):
    T = V_T
    u0 = 5 if k.hasq else 0
    make_srd(a, S_SRDX, P_WS, H_OFF, H_SIZE)
    a(f"v_lshlrev_b32 v{T}, 4, v1")
    a(f"s_lshl_b32 s{S_T0}, s{S_RT}, 2")
    a(f"s_add_u32 s{S_T0}, s{S_T0}, s{S_WAVE}")
    a(f"s_mul_i32 s{S_T0}, s{S_T0}, {108*1024}")
    a(f"s_lshl_b32 s{S_T1}, s{S_T4}, 6")
    a(f"s_add_u32 s{S_T0}, s{S_T0}, s{S_T1}")
    kk = 0
    for p in range(k.npan):
        if p == 3:
            a(f"s_cmp_ge_u32 s{S_T4}, {DFF - 192}")
            a("s_cbranch_scc1 k1_hdone")
        if p:
            a(f"s_add_u32 s{S_T0}, s{S_T0}, 4096")
        for j in range(2):
            for sg in range(2):
                r = V_ACC + (u0 + p * 2 + j) * 16 + 8 * sg
                dd = V_FR + 4 * (kk % 8)
                kk += 1
                for i in range(4):
                    a(f"v_cvt_pk_bf16_f32 v{dd+i}, v{r+2*i}, v{r+2*i+1}")
                for i in range(4):
                    a(f"v_pk_max_i16 v{dd+i}, v{dd+i}, 0")
                a(f"buffer_store_dwordx4 {vr(dd, 4)}, v{T}, s[{S_SRDX}:{S_SRDX+3}], s{S_T0} offen offset:{(j*2+sg)*1024}{SC1}")
    if k.npan == 4:
        a.label("k1_hdone")


S_TSRD = 84
S_TP = 88
S_TF = 89
S_GR = 90
SC1 = ' sc1' if 'sc1' in DBG else (' nt' if 'nt' in DBG else (' sc0' if 'sc0' in DBG else (' sc1 nt' if 'sc1nt' in DBG else '')))
V_TL = V_ACC
V_TR = V_ACC + 16


def tr_loads(a, tag):
    T = V_T
    a(f"s_mov_b32 s{S_TP}, 0x40000000")
    a(f"s_lshl_b32 s{S_T0}, s{S_CT}, 4")
    a(f"s_add_u32 s{S_T0}, s{S_T0}, s{S_RT}")
    a(f"s_lshl_b32 s{S_T0}, s{S_T0}, 2")
    a(f"s_add_u32 s{S_T0}, s{S_T0}, s{S_WAVE}")
    a(f"s_cmp_lt_u32 s{S_T0}, 740")
    a(f"s_cselect_b32 s{S_TF}, 1, 0")
    a(f"s_cbranch_scc0 k1_ntl{tag}")
    a(f"s_mul_i32 s{S_T1}, s{S_T0}, 205")
    a(f"s_lshr_b32 s{S_T1}, s{S_T1}, 10")
    a(f"s_mul_i32 s{S_T2}, s{S_T1}, 5")
    a(f"s_sub_u32 s{S_T2}, s{S_T0}, s{S_T2}")
    a(f"s_mul_i32 s{S_TP}, s{S_T1}, 20")
    a(f"s_lshl_b32 s{S_T0}, s{S_T2}, 2")
    a(f"s_add_u32 s{S_TP}, s{S_TP}, s{S_T0}")
    a(f"s_lshl_b32 s{S_TP}, s{S_TP}, 10")
    a(f"s_sub_u32 s{S_T0}, s{S_T1}, 108")
    a(f"s_cmp_lt_u32 s{S_T1}, 108")
    a(f"s_cselect_b32 s{S_T1}, s{S_T1}, s{S_T0}")
    a(f"s_cselect_b32 s{S_TSRD}, s{P_W2}, s{P_WO}")
    a(f"s_cselect_b32 s{S_TSRD+1}, s{P_W2+1}, s{P_WO+1}")
    a(f"s_mov_b32 s{S_T0}, {640*1280}")
    a(f"s_cselect_b32 s{S_TSRD+2}, {1728*1280}, s{S_T0}")
    a(f"s_mov_b32 s{S_TSRD+3}, 0x00020000")
    a(f"s_mul_i32 s{S_T1}, s{S_T1}, {16*1280}")
    a(f"s_lshl_b32 s{S_T2}, s{S_T2}, 8")
    a(f"s_add_u32 s{S_T1}, s{S_T1}, s{S_T2}")
    a(f"v_lshlrev_b32 v{T}, 2, v1")
    for kk in range(16):
        if kk and kk % 3 == 0:
            a(f"s_add_u32 s{S_T1}, s{S_T1}, {3*1280}")
        a(f"buffer_load_dword v{V_TL+kk}, v{T}, s[{S_TSRD}:{S_TSRD+3}], s{S_T1} offen offset:{(kk%3)*1280}")
    a.label(f"k1_ntl{tag}")


def tr_stores(a, tag, nafter):
    T = V_T
    make_srd(a, S_SRDY, P_WS, WF_OFF, WF_SIZE)
    a(f"v_lshrrev_b32 v{T}, 4, v1")
    a(f"v_lshlrev_b32 v{T}, 10, v{T}")
    a(f"v_and_b32 v{T+1}, 15, v1")
    a(f"v_lshl_add_u32 v{T}, v{T+1}, 5, v{T}")
    a(f"s_mov_b32 s{S_T0}, 0x05040100")
    a(f"s_mov_b32 s{S_T1}, 0x07060302")
    a(f"s_waitcnt vmcnt({nafter})")
    for e in range(2):
        for h in range(2):
            dd = V_TR + (e * 2 + h) * 4
            for i, ka in enumerate((4 * h, 4 * h + 2, 8 + 4 * h, 8 + 4 * h + 2)):
                a(f"v_perm_b32 v{dd+i}, v{V_TL+ka+1}, v{V_TL+ka}, s{S_T1 if e else S_T0}")
            a(f"buffer_store_dwordx4 {vr(dd, 4)}, v{T}, s[{S_SRDY}:{S_SRDY+3}], s{S_TP} offen offset:{e*16 + h*512}")


def gen_k1(a):
    T = V_T
    kqk, kv, kh = Kind(True, 1, False), Kind(True, 1, True), Kind(False, 4, False)
    a.label("k1_kernel")
    tl_start(a)
    stamp(a, 0)
    a(f"s_cmp_ge_u32 s2, {K1_WGS}")
    a("s_cbranch_scc1 k1_end")
    load_ptrs(a)
    a("v_lshrrev_b32 v1, 6, v0")
    a("s_nop 0")
    a(f"v_readfirstlane_b32 s{S_ROLE}, v1")
    a("v_and_b32 v1, 63, v0")
    a("s_nop 1")
    a(f"s_and_b32 s{S_WAVE}, s{S_ROLE}, 3")
    a(f"s_and_b32 s{S_T0}, s2, 1")
    a(f"s_lshl_b32 s{S_T0}, s{S_T0}, 3")
    a(f"s_bfe_u32 s{S_T1}, s2, 0x30003")
    a(f"s_add_u32 s{S_RT}, s{S_T0}, s{S_T1}")
    a(f"s_bfe_u32 s{S_T0}, s2, 0x20001")
    a(f"s_lshl_b32 s{S_T0}, s{S_T0}, 2")
    a(f"s_lshr_b32 s{S_T1}, s2, 6")
    a(f"s_add_u32 s{S_CT}, s{S_T0}, s{S_T1}")
    if 'm1' in DBG:
        a(f"s_and_b32 s{S_RT}, s2, 15")
        a(f"s_lshr_b32 s{S_CT}, s2, 4")
    if 'm2' in DBG:
        a(f"s_and_b32 s{S_CT}, s2, 15")
        a(f"s_lshr_b32 s{S_RT}, s2, 4")
    a(f"s_lshl_b32 s{S_T0}, s{S_RT}, 7")
    a(f"s_lshl_b32 s{S_T1}, s{S_WAVE}, 3")
    a(f"s_add_u32 s{S_T0}, s{S_T0}, s{S_T1}")
    a(f"s_mul_i32 s{S_AW}, s{S_T0}, 1280")
    a(f"s_mul_i32 s{S_BW}, s{S_CT}, 320")
    a(f"s_lshl_b32 s{S_MW}, s{S_WAVE}, 10")
    a(f"s_lshl_b32 s{S_T0}, s{S_CT}, 6")
    a(f"s_lshl_b32 s{S_T1}, s{S_CT}, 8")
    a(f"s_sub_u32 s{S_T1}, s{S_T1}, {12*256 - 768}")
    a(f"s_cmp_lt_u32 s{S_CT}, 12")
    a(f"s_cselect_b32 s{S_T4}, s{S_T0}, s{S_T1}")
    a(f"s_lshl_b32 s{S_T0}, s{S_T4}, 1")
    a(f"s_mul_i32 s{S_T1}, s{S_WAVE}, {8*3456}")
    a(f"s_add_u32 s{S_PW}, s{S_T0}, s{S_T1}")
    a(f"s_cmp_lt_u32 s{S_ROLE}, 4")
    a("s_cbranch_scc1 k1_cons")
    a(f"v_lshrrev_b32 v{T}, 3, v1")
    a(f"v_lshrrev_b32 v{T+1}, 4, v1")
    a(f"s_and_b32 s{S_T0}, s{S_WAVE}, 1")
    a(f"s_lshl_b32 s{S_T0}, s{S_T0}, 2")
    a(f"v_add_u32 v{T+3}, s{S_T0}, v{T+1}")
    a(f"v_and_b32 v{T+2}, 7, v1")
    a(f"v_xor_b32 v{T+3}, v{T+2}, v{T+3}")
    a(f"v_lshlrev_b32 v{T+3}, 4, v{T+3}")
    a(f"s_movk_i32 s{S_T0}, 1280")
    a(f"v_mad_u32_u24 v{V_DA}, v{T}, s{S_T0}, v{T+3}")
    a(f"v_and_b32 v{T+1}, 1, v{T+1}")
    a(f"v_lshlrev_b32 v{T+1}, 2, v{T+1}")
    a(f"v_xor_b32 v{T+3}, v{T+2}, v{T+1}")
    a(f"v_lshlrev_b32 v{T+3}, 4, v{T+3}")
    a(f"s_movk_i32 s{S_T0}, 3456")
    a(f"v_mad_u32_u24 v{V_DP}, v{T}, s{S_T0}, v{T+3}")
    a(f"v_lshlrev_b32 v{T}, 4, v1")
    a(f"v_add_u32 v{T}, s{S_MW}, v{T}")
    a(f"s_movk_i32 s{S_T0}, 205")
    a(f"s_movk_i32 s{S_T1}, {3840 - 320}")
    for i in range(5):
        a(f"v_add_u32 v{T+1}, {i*4096}, v{T}")
        a(f"v_lshrrev_b32 v{T+2}, 6, v{T+1}")
        a(f"v_mul_u32_u24 v{T+2}, s{S_T0}, v{T+2}")
        a(f"v_lshrrev_b32 v{T+2}, 10, v{T+2}")
        a(f"v_mad_u32_u24 v{V_DB+i}, v{T+2}, s{S_T1}, v{T+1}")
    a("s_waitcnt lgkmcnt(0)")
    make_srd(a, S_SRDA, P_X, 0, 2048 * 1280)
    make_srd(a, S_SRDB, P_WQKV, 0, 640 * 3840)
    make_srd(a, S_SRDP, P_W1, 0, 640 * 3456)
    a(f"s_cmp_ge_u32 s{S_CT}, 12")
    a("s_cbranch_scc1 k1_lh")
    k1_loader(a, kqk, 'q')
    a.label("k1_lh")
    k1_loader(a, kh, 'h')
    a.label("k1_cons")
    a(f"v_and_b32 v{T}, 31, v1")
    a(f"v_lshrrev_b32 v{T+1}, 5, v1")
    a(f"v_bfe_u32 v{T+2}, v1, 1, 3")
    a(f"s_lshl_b32 s{S_T0}, s{S_WAVE}, 12")
    a(f"v_lshlrev_b32 v{T+3}, 7, v{T}")
    a(f"v_add_u32 v{T+3}, s{S_T0}, v{T+3}")
    for ks in range(4):
        a(f"v_add_u32 v{T+4}, {2*ks}, v{T+1}")
        a(f"v_xor_b32 v{T+4}, v{T+4}, v{T+2}")
        a(f"v_lshlrev_b32 v{T+4}, 4, v{T+4}")
        a(f"v_add_u32 v{V_AA+ks}, v{T+3}, v{T+4}")
    a(f"s_mov_b32 s{S_T0}, {STG}")
    a(f"s_mov_b32 s{S_T1}, {2*STG}")
    for ks in range(4):
        a(f"v_add_u32 v{V_AA+4+ks}, s{S_T0}, v{V_AA+ks}")
        a(f"v_add_u32 v{V_AA+8+ks}, s{S_T1}, v{V_AA+ks}")
    a(f"v_bfe_u32 v{T}, v1, 2, 2")
    a(f"v_and_b32 v{T+2}, 3, v1")
    a(f"v_bfe_u32 v{T+3}, v1, 4, 1")
    a(f"v_lshl_add_u32 v{T+4}, v{T+1}, 3, v{T}")
    a(f"v_lshlrev_b32 v{T+5}, 3, v{T+2}")
    a(f"v_lshl_add_u32 v{T+5}, v{T+3}, 5, v{T+5}")
    a(f"v_mul_u32_u24 v{T+6}, 320, v{T+4}")
    a(f"v_add_u32 v{T+6}, v{T+6}, v{T+5}")
    a(f"v_add_u32 v{V_BQ}, {QOFF}, v{T+6}")
    a(f"v_add_u32 v{V_BQ+1}, s{S_T0}, v{V_BQ}")
    a(f"v_add_u32 v{V_BQ+2}, s{S_T1}, v{V_BQ}")
    a(f"v_lshl_add_u32 v{T+6}, v{T+4}, 7, v{T+5}")
    a(f"v_lshrrev_b32 v{T+7}, 1, v{T}")
    for j in range(2):
        a(f"v_xor_b32 v{T+8}, {j}, v{T+7}")
        a(f"v_lshl_add_u32 v{V_BP+j}, v{T+8}, 6, v{T+6}")
        a(f"v_add_u32 v{V_BP+2+j}, s{S_T0}, v{V_BP+j}")
        a(f"v_add_u32 v{V_BP+4+j}, s{S_T1}, v{V_BP+j}")
    a("s_waitcnt lgkmcnt(0)")
    a(f"s_cmp_ge_u32 s{S_CT}, 12")
    a("s_cbranch_scc1 k1_h")
    a(f"s_cmp_ge_u32 s{S_CT}, 8")
    a("s_cbranch_scc1 k1_v")
    k1_main(a, kqk)
    EB = STG
    h_epilogue(a, kqk, EB + 40960)
    a(f"s_mov_b32 s{S_T0}, {f32bits(QSCALE)}")
    a(f"s_cmp_lt_u32 s{S_CT}, 4")
    a(f"s_cselect_b32 s{S_T4}, s{S_T0}, 1.0")
    a(f"s_mov_b32 s{S_T5}, s{S_T4}")
    a(f"s_movk_i32 s{S_T3}, 2560")
    a(f"s_cselect_b32 s{S_T3}, 1280, s{S_T3}")
    a(f"s_cselect_b32 s{S_T0}, {QF_OFF}, {KV_OFF}")
    a(f"s_mov_b32 s{S_T1}, {KV_SIZE}")
    a(f"s_cselect_b32 s{S_T1}, {QF_SIZE}, s{S_T1}")
    a(f"s_add_u32 s{S_SRDO}, s{P_WS}, s{S_T0}")
    a(f"s_addc_u32 s{S_SRDO+1}, s{P_WS+1}, 0")
    a(f"s_mov_b32 s{S_SRDO+2}, s{S_T1}")
    a(f"s_mov_b32 s{S_SRDO+3}, 0x00020000")
    a(f"s_mul_i32 s{S_T0}, s{S_WAVE}, 10240")
    a(f"s_add_u32 s{S_T0}, s{S_T0}, {EB}")
    a(f"v_and_b32 v{T}, 31, v1")
    a(f"v_lshrrev_b32 v{T+1}, 5, v1")
    a(f"v_lshlrev_b32 v{T+2}, 4, v{T}")
    a(f"v_add_u32 v{T+2}, s{S_T0}, v{T+2}")
    a(f"v_lshlrev_b32 v{T+3}, 3, v{T}")
    a(f"v_add_u32 v{T+3}, s{S_T0}, v{T+3}")
    a("v_cmp_gt_u32 vcc, 32, v1")

    def off(n):
        hd, d = n // 20, n % 20
        if d < 16:
            return hd * 1280 + (d >> 3) * 512 + ((d >> 2) & 1) * 8, False
        return hd * 1280 + 1024, True
    kk = 0
    for tn in range(5):
        for g in range(4):
            r = V_ACC + tn * 16 + 4 * g
            n0 = tn * 32 + 8 * g
            (c0, e0), (c1, e1) = off(n0), off(n0 + 4)
            ad = T + 4 + (kk % 2)
            dd = T + 6 + 2 * (kk % 2)
            kk += 1
            b0 = T + 3 if e0 else T + 2
            b1 = T + 3 if e1 else T + 2
            if e0 == e1:
                a(f"v_mad_u32_u24 v{ad}, v{T+1}, {c1 - c0}, v{b0}" if c1 - c0 <= 64 else f"v_mov_b32 v{ad}, {c1-c0}")
                if c1 - c0 > 64:
                    a(f"v_mad_u32_u24 v{ad}, v{T+1}, v{ad}, v{b0}")
            else:
                a(f"v_add_u32 v{ad}, {c1 - c0}, v{b1}")
                a(f"v_cndmask_b32 v{ad}, v{ad}, v{b0}, vcc")
            a(f"v_pk_mul_f32 v[{r}:{r+1}], v[{r}:{r+1}], s[{S_T4}:{S_T5}]")
            a(f"v_pk_mul_f32 v[{r+2}:{r+3}], v[{r+2}:{r+3}], s[{S_T4}:{S_T5}]")
            a(f"v_cvt_pk_bf16_f32 v{dd}, v{r}, v{r+1}")
            a(f"v_cvt_pk_bf16_f32 v{dd+1}, v{r+2}, v{r+3}")
            a(f"ds_write_b64 v{ad}, v[{dd}:{dd+1}] offset:{c0}")
    a(f"v_lshlrev_b32 v{T}, 4, v1")
    a(f"v_add_u32 v{T+1}, s{S_T0}, v{T}")
    a(f"v_lshrrev_b32 v{T+2}, 4, v1")
    a(f"s_and_b32 s{S_T0}, s{S_CT}, 3")
    a(f"s_lshl_b32 s{S_T0}, s{S_T0}, 9")
    a(f"s_lshl_b32 s{S_T1}, s{S_RT}, 2")
    a(f"s_add_u32 s{S_T0}, s{S_T0}, s{S_T1}")
    a(f"s_add_u32 s{S_T0}, s{S_T0}, s{S_WAVE}")
    a(f"s_mul_i32 s{S_T0}, s{S_T0}, s{S_T3}")
    a(f"s_lshl_b32 s{S_T1}, s{S_T3}, 6")
    a(f"s_sub_u32 s{S_T1}, s{S_T1}, 1280")
    a(f"s_movk_i32 s{S_T2}, 205")
    a("s_waitcnt lgkmcnt(0)")
    QD = V_FR + 16
    for i in range(10):
        a(f"ds_read_b128 {vr(QD + 4*i, 4)}, v{T+1} offset:{i*1024}")
    for i in range(10):
        ad = V_ACC + i
        a(f"v_add_u32 v{ad}, {4*i}, v{T+2}")
        a(f"v_mul_u32_u24 v{ad}, s{S_T2}, v{ad}")
        a(f"v_lshrrev_b32 v{ad}, 10, v{ad}")
        a(f"v_mul_lo_u32 v{ad}, v{ad}, s{S_T1}")
        a(f"v_add_u32 v{ad}, v{ad}, v{T}")
        if i:
            a(f"v_add_u32 v{ad}, {i*1024}, v{ad}")
    for i in range(10):
        a(f"s_waitcnt lgkmcnt({9-i})")
        a(f"buffer_store_dwordx4 {vr(QD + 4*i, 4)}, v{V_ACC+i}, s[{S_SRDO}:{S_SRDO+3}], s{S_T0} offen{SC1}")
    stamp_out(a, 6)
    tl_end(a, 0)
    a("s_endpgm")
    a.label("k1_v")
    k1_main(a, kv)
    h_epilogue(a, kv, EB)
    make_srd(a, S_SRDO, P_WS, KV_OFF, KV_SIZE)
    a(f"v_and_b32 v{T}, 31, v1")
    a(f"v_lshrrev_b32 v{T+1}, 5, v1")
    a(f"v_mul_u32_u24 v{T+1}, 320, v{T+1}")
    a(f"v_add_u32 v{T+1}, 1280, v{T+1}")
    a(f"s_sub_u32 s{S_T0}, s{S_CT}, 8")
    a(f"s_lshl_b32 s{S_T0}, s{S_T0}, 9")
    a(f"s_lshl_b32 s{S_T1}, s{S_RT}, 2")
    a(f"s_add_u32 s{S_T0}, s{S_T0}, s{S_T1}")
    a(f"s_add_u32 s{S_T0}, s{S_T0}, s{S_WAVE}")
    a(f"s_mul_i32 s{S_T0}, s{S_T0}, 2560")
    a(f"s_movk_i32 s{S_T3}, 3277")
    a(f"s_mov_b32 s{S_T2}, {64*2560}")
    VD = V_FR + 16
    for tn in range(5):
        a(f"v_add_u32 v{T+2}, {tn*32}, v{T}")
        a(f"v_mul_u32_u24 v{T+3}, s{S_T3}, v{T+2}")
        a(f"v_lshrrev_b32 v{T+3}, 16, v{T+3}")
        a(f"v_mul_u32_u24 v{T+4}, 20, v{T+3}")
        a(f"v_sub_u32 v{T+4}, v{T+2}, v{T+4}")
        a(f"v_mul_lo_u32 v{T+3}, v{T+3}, s{S_T2}")
        a(f"v_lshl_add_u32 v{T+5}, v{T+4}, 4, v{T+1}")
        a(f"v_add_u32 v{VD+40+tn}, v{T+5}, v{T+3}")
        for m in range(2):
            r = V_ACC + tn * 16 + 8 * m
            dd = VD + (tn * 2 + m) * 4
            for i in range(4):
                a(f"v_cvt_pk_bf16_f32 v{dd+i}, v{r+2*i}, v{r+2*i+1}")
            a(f"buffer_store_dwordx4 v[{dd}:{dd+3}], v{VD+40+tn}, s[{S_SRDO}:{S_SRDO+3}], s{S_T0} offen offset:{m*640}{SC1}")
    stamp_out(a, 6)
    tl_end(a, 0)
    a("s_endpgm")
    a.label("k1_h")
    k1_main(a, kh)
    h_epilogue(a, kh, EB)
    stamp_out(a, 6)
    tl_end(a, 0)
    a.label("k1_end")
    a("s_endpgm")
    return dict(name="k1_kernel", vgpr=V_ACC + 128, sgpr=96, grid=K1_WGS, block=512, lds=K1_S * STG)


def gen_gate(a, s_idx, wave8=True):
    make_srd(a, S_SRDA, P_X, 0, 2048 * 1280)
    make_srd(a, S_SRDB, P_GW, 0, 1280)
    make_srd(a, S_SRDO, P_WS, G_OFF, G_SIZE)
    a("v_and_b32 v2, 15, v1")
    a("v_lshrrev_b32 v3, 4, v1")
    a("v_lshlrev_b32 v4, 4, v2")
    for i in range(5):
        a(f"buffer_load_dwordx4 v[{24+4*i}:{27+4*i}], v4, s[{S_SRDB}:{S_SRDB+3}], 0 offen offset:{i*256}")
    a(f"s_lshl_b32 s{S_T0}, s{s_idx}, 8")
    a(f"s_lshl_b32 s{S_T1}, s{S_WAVE}, 5")
    a(f"s_add_u32 s{S_T0}, s{S_T0}, s{S_T1}")
    a(f"v_add_u32 v5, s{S_T0}, v3")
    a(f"v_mul_u32_u24 v6, 1280, v5")
    a(f"v_add_u32 v6, v6, v4")
    a(f"v_lshlrev_b32 v7, 2, v5")
    a("v_cmp_eq_u32 vcc, 0, v2")
    a(f"s_mov_b64 s[{S_EX0}:{S_EX0+1}], vcc")
    for p in range(8):
        for i in range(5):
            a(f"s_mov_b32 s{S_T0}, {p*4*1280}")
            a(f"buffer_load_dwordx4 v[{48+4*i}:{51+4*i}], v6, s[{S_SRDA}:{S_SRDA+3}], s{S_T0} offen offset:{i*256}")
        a("s_waitcnt vmcnt(0)")
        a("v_mov_b32 v8, 0")
        for i in range(20):
            a(f"v_dot2_f32_bf16 v8, v{24+i}, v{48+i}, v8")
        a("s_nop 3")
        for sh in (8, 4, 2, 1):
            a("s_nop 1")
            a(f"v_add_f32_dpp v8, v8, v8 row_ror:{sh} row_mask:0xf bank_mask:0xf")
        a("s_nop 1")
        a("v_cvt_pk_bf16_f32 v8, v8, v8")
        a("v_lshlrev_b32 v8, 16, v8")
        a(f"v_mul_f32 v8, {f32bits(-math.log2(math.e))}, v8")
        a("v_exp_f32 v8, v8")
        a("s_nop 0")
        a("v_add_f32 v8, 1.0, v8")
        a("v_rcp_f32 v8, v8")
        a("s_nop 0")
        a("v_cvt_pk_bf16_f32 v8, v8, v8")
        a("v_lshlrev_b32 v8, 16, v8")
        a(f"s_mov_b64 exec, s[{S_EX0}:{S_EX0+1}]")
        a(f"buffer_store_dword v8, v7, s[{S_SRDO}:{S_SRDO+3}], 0 offen offset:{p*16}")
        a("s_mov_b64 exec, -1")
        a("s_nop 1")
    a("s_endpgm")
```

```python
import math
from gen import *

K1_WGS = 256
K1_S = 3
K1_P = 3 if 'p3' in DBG else 2
ASZ = 128 * 128
STG = 49152
QOFF = ASZ
V_DA = 2
V_DB = 3
V_DP = 8
V_AA = 9
V_BQ = 21
V_BP = 24
V_T = 30
V_FR = 44
V_ACC = 116
KST = 10
S_PW = 62
S_ROLE = 63
S_SRDP = 64
S_ST = 68


def stamp(a, i):
    if 'kstamp' in DBG:
        a(f"{'s_memtime' if 'cyc' in DBG else 's_memrealtime'} s[{S_ST+2*i}:{S_ST+2*i+1}]")


def sentinel(a):
    T = V_T
    make_srd(a, S_SRDX, P_WS, O_OFF, O_SIZE)
    a(f"s_mul_i32 s{S_T0}, s2, 10240")
    a(f"s_add_u32 s{S_T0}, s{S_T0}, s{S_MW}")
    a(f"v_lshlrev_b32 v{T+4}, 4, v1")
    a(f"v_add_u32 v{T+4}, s{S_T0}, v{T+4}")
    for i in range(4):
        a(f"v_mov_b32 v{T+6+i}, -1")
    for i in range(3):
        a(f"s_movk_i32 s{S_T0}, {i*4096}")
        a(f"buffer_store_dwordx4 v[{T+6}:{T+9}], v{T+4}, s[{S_SRDX}:{S_SRDX+3}], s{S_T0} offen")


HELP = 'nohelp' not in DBG


def stamp_out(a, n):
    if not HELP: sentinel(a)
    if 'kstamp' not in DBG: return
    T = V_T
    a("s_waitcnt vmcnt(0) lgkmcnt(0)")
    stamp(a, n - 1)
    a("s_waitcnt lgkmcnt(0)")
    make_srd(a, S_SRDY, P_WS, 0x2000000, 0x100000)
    a(f"s_lshl_b32 s{S_T5}, s2, 2")
    a(f"s_add_u32 s{S_T5}, s{S_T5}, s{S_WAVE}")
    a(f"s_lshl_b32 s{S_T5}, s{S_T5}, 6")
    a(f"v_mov_b32 v{T+2}, s{S_T5}")
    a("s_mov_b64 exec, 1")
    for i in range(n):
        a(f"v_mov_b32 v{T+3}, s{S_ST+2*i}")
        a(f"buffer_store_dword v{T+3}, v{T+2}, s[{S_SRDY}:{S_SRDY+3}], 0 offen offset:{4*i}")
    a("s_mov_b64 exec, -1")


class Kind:
    def __init__(self, hasq, npan, swapq):
        self.hasq, self.npan, self.swapq = hasq, npan, swapq
        self.poff = ASZ + (20480 if hasq else 0)
        self.units = [('q', tn) for tn in range(5)] if hasq else []
        self.units += [('p', p, j) for p in range(npan) for j in range(2)]
        self.nu = len(self.units)
        self.per = 4 + (5 if hasq else 0) + 2 * npan
        self.nr = 1 + 2 * self.nu


def dma_list(k, t):
    st = t % K1_S
    out = []
    if 'nodma' in DBG: return out
    for i in range(4):
        out.append([f"s_add_u32 m0, s{S_MW}, {st * STG + i * 4096}",
                    f"s_add_u32 s{S_T0}, s{S_AW}, {i * 32 * 1280 + t * 128}",
                    f"buffer_load_dwordx4 v{V_DA}, s[{S_SRDA}:{S_SRDA+3}], s{S_T0} offen lds"])
    if k.hasq:
        for i in range(5):
            out.append([f"s_add_u32 m0, s{S_MW}, {st * STG + QOFF + i * 4096}",
                        f"s_add_u32 s{S_T0}, s{S_BW}, {t * 64 * 3840}",
                        f"buffer_load_dwordx4 v{V_DB+i}, s[{S_SRDB}:{S_SRDB+3}], s{S_T0} offen lds"])
    for p in range(k.npan):
        for i in range(2):
            out.append([f"s_add_u32 m0, s{S_MW}, {st * STG + k.poff + p * 8192 + i * 4096}",
                        f"s_add_u32 s{S_T0}, s{S_PW}, {(t * 64 + i * 32) * 3456 + p * 128}",
                        f"buffer_load_dwordx4 v{V_DP}, s[{S_SRDP}:{S_SRDP+3}], s{S_T0} offen lds"])
    return out


def rd(k, t, ks, u):
    st = t % K1_S
    if 'noreads' in DBG: return []
    fb = V_FR + (ks % 2) * 36
    if u == 'A':
        return [f"ds_read_b128 {vr(fb, 4)}, v{V_AA + st*4 + ks}"]
    un = k.units[u]
    if un[0] == 'q':
        return [f"ds_read_b64_tr_b16 {vr(fb + 4 + u*4 + w*2, 2)}, v{V_BQ+st} offset:{(ks*16 + 4*w)*320 + un[1]*64}" for w in range(2)]
    return [f"ds_read_b64_tr_b16 {vr(fb + 4 + u*4 + w*2, 2)}, v{V_BP+st*2+un[2]} offset:{k.poff + un[1]*8192 + (ks*16 + 4*w)*128}" for w in range(2)]


def mfma(k, ks, u, first):
    fb = V_FR + (ks % 2) * 36
    A = vr(fb, 4)
    B = vr(fb + 4 + u * 4, 4)
    acc = vr(V_ACC + u * 16, 16)
    cin = "0" if first else acc
    if k.swapq and k.units[u][0] == 'q':
        return f"v_mfma_f32_32x32x16_bf16 {acc}, {A}, {B}, {cin}"
    return f"v_mfma_f32_32x32x16_bf16 {acc}, {B}, {A}, {cin}"


S_PF = 91
PF0 = 3 if 'pf3' in DBG else 2


def prefetch(a, k):
    if 'pf' not in DBG: return []
    T = V_T
    P = T + 11
    out = []
    a(f"v_mov_b32 v{T+5}, 0x7f000000")
    a(f"v_lshrrev_b32 v{T+2}, 3, v1")
    a(f"v_mul_u32_u24 v{T+2}, 1280, v{T+2}")
    a(f"v_and_b32 v{T+3}, 7, v1")
    a(f"v_lshl_add_u32 v{T+2}, v{T+3}, 7, v{T+2}")
    a(f"v_cmp_le_u32 vcc, {PF0 - 2}, v{T+3}")
    a(f"s_and_b32 s{S_T1}, s{S_CT}, 3")
    a(f"s_mul_i32 s{S_T0}, s{S_T1}, {32*1280}")
    a(f"v_cndmask_b32 v{T+2}, v{T+5}, v{T+2}, vcc")
    a(f"s_add_u32 s{S_PF}, s{S_T0}, s{S_AW}")
    out.append([f"buffer_load_dword v{P}, v{T+2}, s[{S_SRDA}:{S_SRDA+3}], s{S_PF} offen offset:256"])
    nr = (640 - PF0 * 64 + 127) // 128
    a(f"s_and_b32 s{S_T0}, s{S_RT}, 7")
    a(f"s_lshl_b32 s{S_T0}, s{S_T0}, 4")
    a(f"s_lshl_b32 s{S_T1}, s{S_T1}, 2")
    a(f"s_add_u32 s{S_T0}, s{S_T0}, s{S_T1}")
    a(f"s_add_u32 s{S_T0}, s{S_T0}, s{S_WAVE}")
    a(f"s_mul_i32 s{S_T0}, s{S_T0}, {nr}")
    a(f"s_add_u32 s{S_T0}, s{S_T0}, {640 - 128*nr}")
    a(f"s_lshr_b32 s{S_T1}, s{S_CT}, 2")
    a(f"v_lshrrev_b32 v{T+7}, 4, v1")
    a(f"v_and_b32 v{T+3}, 15, v1")
    a(f"v_cmp_gt_u32 s[{S_EX0}:{S_EX0+1}], {nr}, v{T+7}")
    if k.hasq:
        a(f"v_mul_u32_u24 v{T+4}, 3840, v{T+7}")
        a(f"v_lshl_add_u32 v{T+4}, v{T+3}, 7, v{T+4}")
        a(f"v_cmp_gt_u32 vcc, 10, v{T+3}")
        a(f"s_mul_i32 s{S_T2}, s{S_T0}, 3840")
        a(f"s_and_b64 vcc, vcc, s[{S_EX0}:{S_EX0+1}]")
        a(f"s_mul_i32 s{S_T3}, s{S_T1}, 1280")
        a(f"v_cndmask_b32 v{T+4}, v{T+5}, v{T+4}, vcc")
        a(f"s_add_u32 s{S_PF+1}, s{S_T2}, s{S_T3}")
        out.append([f"buffer_load_dword v{P+1}, v{T+4}, s[{S_SRDB}:{S_SRDB+3}], s{S_PF+1} offen"])
        a(f"v_subrev_u32 v{T+3}, 10, v{T+3}")
        a(f"v_cmp_gt_u32 vcc, 4, v{T+3}")
        a(f"s_lshl_b32 s{S_T3}, s{S_T1}, 9")
    else:
        a(f"v_cmp_gt_u32 vcc, 15, v{T+3}")
        a(f"s_movk_i32 s{S_T3}, 1536")
    a(f"v_mul_u32_u24 v{T+6}, 3456, v{T+7}")
    a(f"v_lshl_add_u32 v{T+6}, v{T+3}, 7, v{T+6}")
    a(f"s_and_b64 vcc, vcc, s[{S_EX0}:{S_EX0+1}]")
    a(f"s_mul_i32 s{S_T2}, s{S_T0}, 3456")
    a(f"v_cndmask_b32 v{T+6}, v{T+5}, v{T+6}, vcc")
    a(f"s_add_u32 s{S_PF+2}, s{S_T2}, s{S_T3}")
    out.append([f"buffer_load_dword v{P+2}, v{T+6}, s[{S_SRDP}:{S_SRDP+3}], s{S_PF+2} offen"])
    return out


def k1_main(a, k):
    if 'pf' in DBG:
        make_srd(a, S_SRDA, P_X, 0, 2048 * 1280)
        make_srd(a, S_SRDB, P_WQKV, 0, 640 * 3840)
        make_srd(a, S_SRDP, P_W1, 0, 640 * 3456)
        for g in prefetch(a, k):
            for l in g: a(l)
    a("s_barrier")
    stamp(a, 1)
    for ks in range(2):
        for w in ['A'] + list(range(k.nu)):
            for l in rd(k, 0, ks, w): a(l)
    for t in range(KST):
        for ks in range(4):
            nt, nks = (t, ks + 2) if ks < 2 else (t + 1, ks - 2)
            has = nt < KST
            last = (t == KST - 1 and ks == 3)
            a(f"s_waitcnt lgkmcnt({0 if last else min(k.nr, 15)})")
            pend = []
            for u in range(k.nu):
                if 'nomfma' not in DBG or t == 0: a(mfma(k, ks, u, t == 0 and ks == 0))
                if has:
                    pend += rd(k, nt, nks, u)
                if ks == 2 and has and u == 0:
                    continue
                if ks == 2 and has and u == 1:
                    a(f"s_waitcnt lgkmcnt(0)")
                    a("s_barrier")
                    if t in (0, 4): stamp(a, {0: 2, 4: 3}[t])
                for l in pend: a(l)
                pend = []
            if has:
                for l in rd(k, nt, nks, 'A'): a(l)
    a("s_nop 15")
    a("s_nop 3")
    stamp(a, 4)
    if 'noepi' in DBG: a("s_endpgm")


def k1_loader(a, k, tag):
    S_SD0 = S_T0
    T = V_T
    GW = 44
    GX = 64
    TL = 84
    TR = 100
    SR = S_TSRD
    vm = VM()

    def emit(g, t):
        for l in g: a(l)
        vm.add(t)
    for t in range(K1_P):
        for g in dma_list(k, t): emit(g, t)

    def side_loads():
        a(f"s_lshl_b32 s{S_T0}, s2, 2")
        a(f"s_add_u32 s{S_T0}, s{S_T0}, s{S_WAVE}")
        a(f"s_cmp_lt_u32 s{S_T0}, 740")
        a(f"s_cselect_b32 s{S_TF}, 0, 0x7f000000")
        a(f"s_min_u32 s{S_T0}, s{S_T0}, 739")
        a(f"s_mul_i32 s{S_T1}, s{S_T0}, 205")
        a(f"s_lshr_b32 s{S_T1}, s{S_T1}, 10")
        a(f"s_mul_i32 s{S_T2}, s{S_T1}, 5")
        a(f"s_sub_u32 s{S_T2}, s{S_T0}, s{S_T2}")
        a(f"s_mul_i32 s{S_TP}, s{S_T1}, 20")
        a(f"s_lshl_b32 s{S_T0}, s{S_T2}, 2")
        a(f"s_add_u32 s{S_TP}, s{S_TP}, s{S_T0}")
        a(f"s_lshl_b32 s{S_TP}, s{S_TP}, 10")
        a(f"s_sub_u32 s{S_T0}, s{S_T1}, 108")
        a(f"s_cmp_lt_u32 s{S_T1}, 108")
        a(f"s_cselect_b32 s{S_T1}, s{S_T1}, s{S_T0}")
        a(f"s_cselect_b32 s{SR}, s{P_W2}, s{P_WO}")
        a(f"s_cselect_b32 s{SR+1}, s{P_W2+1}, s{P_WO+1}")
        a(f"s_mov_b32 s{S_T0}, {640*1280}")
        a(f"s_cselect_b32 s{SR+2}, {1728*1280}, s{S_T0}")
        a(f"s_mov_b32 s{SR+3}, 0x00020000")
        a(f"s_mul_i32 s{S_T1}, s{S_T1}, {16*1280}")
        a(f"s_lshl_b32 s{S_T2}, s{S_T2}, 8")
        a(f"s_add_u32 s{S_T1}, s{S_T1}, s{S_T2}")
        a(f"v_lshlrev_b32 v{T+2}, 2, v1")
        a(f"v_add_u32 v{T+2}, s{S_TF}, v{T+2}")
        for kk in range(16):
            if kk and kk % 3 == 0:
                a(f"s_add_u32 s{S_T1}, s{S_T1}, {3*1280}")
            a(f"buffer_load_dword v{TL+kk}, v{T+2}, s[{SR}:{SR+3}], s{S_T1} offen offset:{(kk%3)*1280}")
            vm.add('tl')
        make_srd(a, S_SRDY, P_GW, 0, 1280)
        a(f"s_cmp_lt_u32 s{S_WAVE}, 2")
        a(f"s_cselect_b32 s{S_GR}, 0, 0x7f000000")
        a(f"v_and_b32 v{T}, 15, v1")
        a(f"v_lshrrev_b32 v{T+1}, 4, v1")
        a(f"v_lshlrev_b32 v{T}, 4, v{T}")
        a(f"v_add_u32 v{T}, s{S_GR}, v{T}")
        for i in range(5):
            a(f"buffer_load_dwordx4 v[{GW+4*i}:{GW+4*i+3}], v{T}, s[{S_SRDY}:{S_SRDY+3}], 0 offen offset:{i*256}")
            vm.add('tl')
        a(f"v_mul_u32_u24 v{T+1}, 1280, v{T+1}")
        a(f"v_add_u32 v{T}, v{T}, v{T+1}")
        a(f"s_lshl_b32 s{S_T0}, s2, 1")
        a(f"s_and_b32 s{S_T1}, s{S_WAVE}, 1")
        a(f"s_add_u32 s{S_T0}, s{S_T0}, s{S_T1}")
        a(f"s_lshl_b32 s{S_T5}, s{S_T0}, 4")
        a(f"s_mul_i32 s{S_T3}, s{S_T0}, {4*1280}")
        for i in range(5):
            a(f"buffer_load_dwordx4 v[{GX+4*i}:{GX+4*i+3}], v{T}, s[{S_SRDA}:{S_SRDA+3}], s{S_T3} offen offset:{i*256}")
            vm.add('tl')

    def side_sentinel():
        make_srd(a, S_SRDX, P_WS, O_OFF, O_SIZE)
        a(f"s_mul_i32 s{S_T0}, s2, 10240")
        a(f"s_add_u32 s{S_T0}, s{S_T0}, s{S_MW}")
        a(f"v_lshlrev_b32 v{T+4}, 4, v1")
        a(f"v_add_u32 v{T+4}, s{S_T0}, v{T+4}")
        a(f"v_add_u32 v{T+5}, s{S_GR}, v{T+4}")
        for i in range(4):
            a(f"v_mov_b32 v{T+6+i}, -1")
        for i in range(3):
            a(f"s_movk_i32 s{S_T0}, {i*4096}")
            a(f"buffer_store_dwordx4 v[{T+6}:{T+9}], v{T+4+(i==2)}, s[{S_SRDX}:{S_SRDX+3}], s{S_T0} offen{' sc1' if 'ssc1' in DBG else ''}")
            vm.add('st')

    def side_work():
        make_srd(a, S_SRDO, P_WS, WF_OFF, WF_SIZE)
        make_srd(a, S_SRDX, P_WS, G_OFF, G_SIZE)
        a(f"v_lshrrev_b32 v{T+10}, 4, v1")
        a(f"v_lshlrev_b32 v{T+8}, 2, v{T+10}")
        a(f"v_add_u32 v{T+8}, s{S_GR}, v{T+8}")
        a(f"v_lshlrev_b32 v{T+10}, 10, v{T+10}")
        a(f"v_and_b32 v{T+11}, 15, v1")
        a(f"v_lshl_add_u32 v{T+10}, v{T+11}, 5, v{T+10}")
        a(f"v_add_u32 v{T+10}, s{S_TF}, v{T+10}")
        a(f"s_mov_b32 s{S_T0}, 0x05040100")
        a(f"s_mov_b32 s{S_T1}, 0x07060302")
        a(f"v_cmp_eq_u32 s[{S_EX0}:{S_EX0+1}], 0, v{T+11}")
        a(f"s_waitcnt vmcnt({vm.need('tl')})")
        for e in range(2):
            for h in range(2):
                dd = TR + (e * 2 + h) * 4
                for i, ka in enumerate((4 * h, 4 * h + 2, 8 + 4 * h, 8 + 4 * h + 2)):
                    a(f"v_perm_b32 v{dd+i}, v{TL+ka+1}, v{TL+ka}, s{S_T1 if e else S_T0}")
                a(f"buffer_store_dwordx4 {vr(dd, 4)}, v{T+10}, s[{S_SRDO}:{S_SRDO+3}], s{S_TP} offen offset:{e*16 + h*512}{' sc1' if 'wsc1' in DBG else ''}")
                vm.add('st')

    def side_gate():
        a(f"s_waitcnt vmcnt({vm.need('gl')})")
        g = T + 2
        a(f"v_mov_b32 v{g}, 0")
        a(f"v_mov_b32 v{g+1}, 0")
        for i in range(20):
            a(f"v_dot2_f32_bf16 v{g+i%2}, v{GW+i}, v{GX+i}, v{g+i%2}")
        a("s_nop 3")
        a(f"v_add_f32 v{g}, v{g}, v{g+1}")
        for sh in (8, 4, 2, 1):
            a("s_nop 1")
            a(f"v_add_f32_dpp v{g}, v{g}, v{g} row_ror:{sh} row_mask:0xf bank_mask:0xf")
        a("s_nop 1")
        a(f"v_cvt_pk_bf16_f32 v{g}, v{g}, v{g}")
        a(f"v_lshlrev_b32 v{g}, 16, v{g}")
        a(f"v_mul_f32 v{g}, {f32bits(-math.log2(math.e))}, v{g}")
        a(f"v_exp_f32 v{g}, v{g}")
        a("s_nop 0")
        a(f"v_add_f32 v{g}, 1.0, v{g}")
        a(f"v_rcp_f32 v{g}, v{g}")
        a("s_nop 0")
        a(f"v_cvt_pk_bf16_f32 v{g}, v{g}, v{g}")
        a(f"v_lshlrev_b32 v{g}, 16, v{g}")
        a(f"s_mov_b64 exec, s[{S_EX0}:{S_EX0+1}]")
        a(f"buffer_store_dword v{g}, v{T+8}, s[{S_SRDX}:{S_SRDX+3}], s{S_T5} offen")
        a("s_mov_b64 exec, -1")
        vm.add('st')

    real_a, real_vm = a, vm
    cap = []

    class Cap:
        def __call__(self, l): cap.append(l)
    a = Cap()
    vm = VM()
    side_loads()
    a, vm = real_a, real_vm
    groups, cur = [], []
    for l in cap:
        cur.append(l)
        if l.startswith("buffer_load"):
            groups.append(cur); cur = []
    assert not cur and len(groups) == 26
    plan, SW, SG = {1: 5, 2: 5, 3: 6, 4: 5, 5: 5}, 4, 7
    if 'sq2' in DBG: plan, SW, SG = {1: 8, 2: 8, 4: 5, 5: 5}, 3, 7
    if 'sq1' in DBG: plan, SW, SG = {1: 16, 4: 5, 5: 5}, 2, 7
    if 'sq3' in DBG: plan, SW, SG = {1: 5, 2: 5, 3: 6, 4: 5, 5: 5}, 5, 7
    cnt = [0]

    def side(b):
        for _ in range(plan.get(b, 0)):
            for l in groups.pop(0): a(l)
            vm.add('tl' if cnt[0] < 16 else 'gl')
            cnt[0] += 1
    nd = 'nodma' in DBG
    a(f"s_cmp_lt_u32 s{S_WAVE}, 2")
    a(f"s_cselect_b32 s{S_GR}, 0, 0x7f000000")
    a(f"s_waitcnt vmcnt({0 if nd else vm.need(0)})")
    a("s_barrier")
    side_sentinel()
    side(1)
    for t in range(K1_P, K1_S):
        for g in dma_list(k, t): emit(g, t)
    for t in range(KST - 1):
        a(f"s_waitcnt vmcnt({0 if nd else vm.need(t + 1)})")
        a("s_barrier")
        side(t + 2)
        if t + 2 == SW and 'swearly' in DBG:
            side_work()
        if t + K1_S < KST:
            for g in dma_list(k, t + K1_S): emit(g, t + K1_S)
        if t + 2 == SW and 'swearly' not in DBG:
            side_work()
        if t + 2 == SG:
            side_gate()
    assert not groups
    a("s_endpgm")


def h_epilogue(a, k, lds_base):
    T = V_T
    u0 = 5 if k.hasq else 0
    make_srd(a, S_SRDX, P_WS, H_OFF, H_SIZE)
    a(f"v_lshlrev_b32 v{T}, 4, v1")
    a(f"s_lshl_b32 s{S_T0}, s{S_RT}, 2")
    a(f"s_add_u32 s{S_T0}, s{S_T0}, s{S_WAVE}")
    a(f"s_mul_i32 s{S_T0}, s{S_T0}, {108*1024}")
    a(f"s_lshl_b32 s{S_T1}, s{S_T4}, 6")
    a(f"s_add_u32 s{S_T0}, s{S_T0}, s{S_T1}")
    kk = 0
    for p in range(k.npan):
        if p == 3:
            a(f"s_cmp_ge_u32 s{S_T4}, {DFF - 192}")
            a("s_cbranch_scc1 k1_hdone")
        if p:
            a(f"s_add_u32 s{S_T0}, s{S_T0}, 4096")
        for j in range(2):
            for sg in range(2):
                r = V_ACC + (u0 + p * 2 + j) * 16 + 8 * sg
                dd = V_FR + 4 * (kk % 8)
                kk += 1
                for i in range(4):
                    a(f"v_cvt_pk_bf16_f32 v{dd+i}, v{r+2*i}, v{r+2*i+1}")
                for i in range(4):
                    a(f"v_pk_max_i16 v{dd+i}, v{dd+i}, 0")
                a(f"buffer_store_dwordx4 {vr(dd, 4)}, v{T}, s[{S_SRDX}:{S_SRDX+3}], s{S_T0} offen offset:{(j*2+sg)*1024}{SC1}")
    if k.npan == 4:
        a.label("k1_hdone")


S_TSRD = 84
S_TP = 88
S_TF = 89
S_GR = 90
SC1 = ' sc1' if 'sc1' in DBG else (' nt' if 'nt' in DBG else (' sc0' if 'sc0' in DBG else (' sc1 nt' if 'sc1nt' in DBG else '')))
V_TL = V_ACC
V_TR = V_ACC + 16


def tr_loads(a, tag):
    T = V_T
    a(f"s_mov_b32 s{S_TP}, 0x40000000")
    a(f"s_lshl_b32 s{S_T0}, s{S_CT}, 4")
    a(f"s_add_u32 s{S_T0}, s{S_T0}, s{S_RT}")
    a(f"s_lshl_b32 s{S_T0}, s{S_T0}, 2")
    a(f"s_add_u32 s{S_T0}, s{S_T0}, s{S_WAVE}")
    a(f"s_cmp_lt_u32 s{S_T0}, 740")
    a(f"s_cselect_b32 s{S_TF}, 1, 0")
    a(f"s_cbranch_scc0 k1_ntl{tag}")
    a(f"s_mul_i32 s{S_T1}, s{S_T0}, 205")
    a(f"s_lshr_b32 s{S_T1}, s{S_T1}, 10")
    a(f"s_mul_i32 s{S_T2}, s{S_T1}, 5")
    a(f"s_sub_u32 s{S_T2}, s{S_T0}, s{S_T2}")
    a(f"s_mul_i32 s{S_TP}, s{S_T1}, 20")
    a(f"s_lshl_b32 s{S_T0}, s{S_T2}, 2")
    a(f"s_add_u32 s{S_TP}, s{S_TP}, s{S_T0}")
    a(f"s_lshl_b32 s{S_TP}, s{S_TP}, 10")
    a(f"s_sub_u32 s{S_T0}, s{S_T1}, 108")
    a(f"s_cmp_lt_u32 s{S_T1}, 108")
    a(f"s_cselect_b32 s{S_T1}, s{S_T1}, s{S_T0}")
    a(f"s_cselect_b32 s{S_TSRD}, s{P_W2}, s{P_WO}")
    a(f"s_cselect_b32 s{S_TSRD+1}, s{P_W2+1}, s{P_WO+1}")
    a(f"s_mov_b32 s{S_T0}, {640*1280}")
    a(f"s_cselect_b32 s{S_TSRD+2}, {1728*1280}, s{S_T0}")
    a(f"s_mov_b32 s{S_TSRD+3}, 0x00020000")
    a(f"s_mul_i32 s{S_T1}, s{S_T1}, {16*1280}")
    a(f"s_lshl_b32 s{S_T2}, s{S_T2}, 8")
    a(f"s_add_u32 s{S_T1}, s{S_T1}, s{S_T2}")
    a(f"v_lshlrev_b32 v{T}, 2, v1")
    for kk in range(16):
        if kk and kk % 3 == 0:
            a(f"s_add_u32 s{S_T1}, s{S_T1}, {3*1280}")
        a(f"buffer_load_dword v{V_TL+kk}, v{T}, s[{S_TSRD}:{S_TSRD+3}], s{S_T1} offen offset:{(kk%3)*1280}")
    a.label(f"k1_ntl{tag}")


def tr_stores(a, tag, nafter):
    T = V_T
    make_srd(a, S_SRDY, P_WS, WF_OFF, WF_SIZE)
    a(f"v_lshrrev_b32 v{T}, 4, v1")
    a(f"v_lshlrev_b32 v{T}, 10, v{T}")
    a(f"v_and_b32 v{T+1}, 15, v1")
    a(f"v_lshl_add_u32 v{T}, v{T+1}, 5, v{T}")
    a(f"s_mov_b32 s{S_T0}, 0x05040100")
    a(f"s_mov_b32 s{S_T1}, 0x07060302")
    a(f"s_waitcnt vmcnt({nafter})")
    for e in range(2):
        for h in range(2):
            dd = V_TR + (e * 2 + h) * 4
            for i, ka in enumerate((4 * h, 4 * h + 2, 8 + 4 * h, 8 + 4 * h + 2)):
                a(f"v_perm_b32 v{dd+i}, v{V_TL+ka+1}, v{V_TL+ka}, s{S_T1 if e else S_T0}")
            a(f"buffer_store_dwordx4 {vr(dd, 4)}, v{T}, s[{S_SRDY}:{S_SRDY+3}], s{S_TP} offen offset:{e*16 + h*512}")


def gen_k1(a):
    T = V_T
    kqk, kv, kh = Kind(True, 1, False), Kind(True, 1, True), Kind(False, 4, False)
    a.label("k1_kernel")
    tl_start(a)
    stamp(a, 0)
    a(f"s_cmp_ge_u32 s2, {K1_WGS}")
    a("s_cbranch_scc1 k1_end")
    load_ptrs(a)
    a("v_lshrrev_b32 v1, 6, v0")
    a("s_nop 0")
    a(f"v_readfirstlane_b32 s{S_ROLE}, v1")
    a("v_and_b32 v1, 63, v0")
    a("s_nop 1")
    a(f"s_and_b32 s{S_WAVE}, s{S_ROLE}, 3")
    a(f"s_and_b32 s{S_T0}, s2, 1")
    a(f"s_lshl_b32 s{S_T0}, s{S_T0}, 3")
    a(f"s_bfe_u32 s{S_T1}, s2, 0x30003")
    a(f"s_add_u32 s{S_RT}, s{S_T0}, s{S_T1}")
    a(f"s_bfe_u32 s{S_T0}, s2, 0x20001")
    a(f"s_lshl_b32 s{S_T0}, s{S_T0}, 2")
    a(f"s_lshr_b32 s{S_T1}, s2, 6")
    a(f"s_add_u32 s{S_CT}, s{S_T0}, s{S_T1}")
    if 'm1' in DBG:
        a(f"s_and_b32 s{S_RT}, s2, 15")
        a(f"s_lshr_b32 s{S_CT}, s2, 4")
    if 'm2' in DBG:
        a(f"s_and_b32 s{S_CT}, s2, 15")
        a(f"s_lshr_b32 s{S_RT}, s2, 4")
    a(f"s_lshl_b32 s{S_T0}, s{S_RT}, 7")
    a(f"s_lshl_b32 s{S_T1}, s{S_WAVE}, 3")
    a(f"s_add_u32 s{S_T0}, s{S_T0}, s{S_T1}")
    a(f"s_mul_i32 s{S_AW}, s{S_T0}, 1280")
    a(f"s_mul_i32 s{S_BW}, s{S_CT}, 320")
    a(f"s_lshl_b32 s{S_MW}, s{S_WAVE}, 10")
    a(f"s_lshl_b32 s{S_T0}, s{S_CT}, 6")
    a(f"s_lshl_b32 s{S_T1}, s{S_CT}, 8")
    a(f"s_sub_u32 s{S_T1}, s{S_T1}, {12*256 - 768}")
    a(f"s_cmp_lt_u32 s{S_CT}, 12")
    a(f"s_cselect_b32 s{S_T4}, s{S_T0}, s{S_T1}")
    a(f"s_lshl_b32 s{S_T0}, s{S_T4}, 1")
    a(f"s_mul_i32 s{S_T1}, s{S_WAVE}, {8*3456}")
    a(f"s_add_u32 s{S_PW}, s{S_T0}, s{S_T1}")
    a(f"s_cmp_lt_u32 s{S_ROLE}, 4")
    a("s_cbranch_scc1 k1_cons")
    a(f"v_lshrrev_b32 v{T}, 3, v1")
    a(f"v_lshrrev_b32 v{T+1}, 4, v1")
    a(f"s_and_b32 s{S_T0}, s{S_WAVE}, 1")
    a(f"s_lshl_b32 s{S_T0}, s{S_T0}, 2")
    a(f"v_add_u32 v{T+3}, s{S_T0}, v{T+1}")
    a(f"v_and_b32 v{T+2}, 7, v1")
    a(f"v_xor_b32 v{T+3}, v{T+2}, v{T+3}")
    a(f"v_lshlrev_b32 v{T+3}, 4, v{T+3}")
    a(f"s_movk_i32 s{S_T0}, 1280")
    a(f"v_mad_u32_u24 v{V_DA}, v{T}, s{S_T0}, v{T+3}")
    a(f"v_and_b32 v{T+1}, 1, v{T+1}")
    a(f"v_lshlrev_b32 v{T+1}, 2, v{T+1}")
    a(f"v_xor_b32 v{T+3}, v{T+2}, v{T+1}")
    a(f"v_lshlrev_b32 v{T+3}, 4, v{T+3}")
    a(f"s_movk_i32 s{S_T0}, 3456")
    a(f"v_mad_u32_u24 v{V_DP}, v{T}, s{S_T0}, v{T+3}")
    a(f"v_lshlrev_b32 v{T}, 4, v1")
    a(f"v_add_u32 v{T}, s{S_MW}, v{T}")
    a(f"s_movk_i32 s{S_T0}, 205")
    a(f"s_movk_i32 s{S_T1}, {3840 - 320}")
    for i in range(5):
        a(f"v_add_u32 v{T+1}, {i*4096}, v{T}")
        a(f"v_lshrrev_b32 v{T+2}, 6, v{T+1}")
        a(f"v_mul_u32_u24 v{T+2}, s{S_T0}, v{T+2}")
        a(f"v_lshrrev_b32 v{T+2}, 10, v{T+2}")
        a(f"v_mad_u32_u24 v{V_DB+i}, v{T+2}, s{S_T1}, v{T+1}")
    a("s_waitcnt lgkmcnt(0)")
    make_srd(a, S_SRDA, P_X, 0, 2048 * 1280)
    make_srd(a, S_SRDB, P_WQKV, 0, 640 * 3840)
    make_srd(a, S_SRDP, P_W1, 0, 640 * 3456)
    a(f"s_cmp_ge_u32 s{S_CT}, 12")
    a("s_cbranch_scc1 k1_lh")
    k1_loader(a, kqk, 'q')
    a.label("k1_lh")
    k1_loader(a, kh, 'h')
    a.label("k1_cons")
    a(f"v_and_b32 v{T}, 31, v1")
    a(f"v_lshrrev_b32 v{T+1}, 5, v1")
    a(f"v_bfe_u32 v{T+2}, v1, 1, 3")
    a(f"s_lshl_b32 s{S_T0}, s{S_WAVE}, 12")
    a(f"v_lshlrev_b32 v{T+3}, 7, v{T}")
    a(f"v_add_u32 v{T+3}, s{S_T0}, v{T+3}")
    for ks in range(4):
        a(f"v_add_u32 v{T+4}, {2*ks}, v{T+1}")
        a(f"v_xor_b32 v{T+4}, v{T+4}, v{T+2}")
        a(f"v_lshlrev_b32 v{T+4}, 4, v{T+4}")
        a(f"v_add_u32 v{V_AA+ks}, v{T+3}, v{T+4}")
    a(f"s_mov_b32 s{S_T0}, {STG}")
    a(f"s_mov_b32 s{S_T1}, {2*STG}")
    for ks in range(4):
        a(f"v_add_u32 v{V_AA+4+ks}, s{S_T0}, v{V_AA+ks}")
        a(f"v_add_u32 v{V_AA+8+ks}, s{S_T1}, v{V_AA+ks}")
    a(f"v_bfe_u32 v{T}, v1, 2, 2")
    a(f"v_and_b32 v{T+2}, 3, v1")
    a(f"v_bfe_u32 v{T+3}, v1, 4, 1")
    a(f"v_lshl_add_u32 v{T+4}, v{T+1}, 3, v{T}")
    a(f"v_lshlrev_b32 v{T+5}, 3, v{T+2}")
    a(f"v_lshl_add_u32 v{T+5}, v{T+3}, 5, v{T+5}")
    a(f"v_mul_u32_u24 v{T+6}, 320, v{T+4}")
    a(f"v_add_u32 v{T+6}, v{T+6}, v{T+5}")
    a(f"v_add_u32 v{V_BQ}, {QOFF}, v{T+6}")
    a(f"v_add_u32 v{V_BQ+1}, s{S_T0}, v{V_BQ}")
    a(f"v_add_u32 v{V_BQ+2}, s{S_T1}, v{V_BQ}")
    a(f"v_lshl_add_u32 v{T+6}, v{T+4}, 7, v{T+5}")
    a(f"v_lshrrev_b32 v{T+7}, 1, v{T}")
    for j in range(2):
        a(f"v_xor_b32 v{T+8}, {j}, v{T+7}")
        a(f"v_lshl_add_u32 v{V_BP+j}, v{T+8}, 6, v{T+6}")
        a(f"v_add_u32 v{V_BP+2+j}, s{S_T0}, v{V_BP+j}")
        a(f"v_add_u32 v{V_BP+4+j}, s{S_T1}, v{V_BP+j}")
    a("s_waitcnt lgkmcnt(0)")
    a(f"s_cmp_ge_u32 s{S_CT}, 12")
    a("s_cbranch_scc1 k1_h")
    a(f"s_cmp_ge_u32 s{S_CT}, 8")
    a("s_cbranch_scc1 k1_v")
    k1_main(a, kqk)
    EB = STG
    h_epilogue(a, kqk, EB + 40960)
    a(f"s_mov_b32 s{S_T0}, {f32bits(QSCALE)}")
    a(f"s_cmp_lt_u32 s{S_CT}, 4")
    a(f"s_cselect_b32 s{S_T4}, s{S_T0}, 1.0")
    a(f"s_mov_b32 s{S_T5}, s{S_T4}")
    a(f"s_movk_i32 s{S_T3}, 2560")
    a(f"s_cselect_b32 s{S_T3}, 1280, s{S_T3}")
    a(f"s_mov_b32 s{S_T0}, {KV_OFF}")
    a(f"s_cselect_b32 s{S_T0}, {QF_OFF}, s{S_T0}")
    a(f"s_mov_b32 s{S_T1}, {KV_SIZE}")
    a(f"s_cselect_b32 s{S_T1}, {QF_SIZE}, s{S_T1}")
    a(f"s_add_u32 s{S_SRDO}, s{P_WS}, s{S_T0}")
    a(f"s_addc_u32 s{S_SRDO+1}, s{P_WS+1}, 0")
    a(f"s_mov_b32 s{S_SRDO+2}, s{S_T1}")
    a(f"s_mov_b32 s{S_SRDO+3}, 0x00020000")
    a(f"s_mul_i32 s{S_T0}, s{S_WAVE}, 10240")
    a(f"s_add_u32 s{S_T0}, s{S_T0}, {EB}")
    a(f"v_and_b32 v{T}, 31, v1")
    a(f"v_lshrrev_b32 v{T+1}, 5, v1")
    a(f"v_lshlrev_b32 v{T+2}, 4, v{T}")
    a(f"v_add_u32 v{T+2}, s{S_T0}, v{T+2}")
    a(f"v_lshlrev_b32 v{T+3}, 3, v{T}")
    a(f"v_add_u32 v{T+3}, s{S_T0}, v{T+3}")
    a("v_cmp_gt_u32 vcc, 32, v1")

    def off(n):
        hd, d = n // 20, n % 20
        if d < 16:
            return hd * 1280 + (d >> 3) * 512 + ((d >> 2) & 1) * 8, False
        return hd * 1280 + 1024, True
    kk = 0
    for tn in range(5):
        for g in range(4):
            r = V_ACC + tn * 16 + 4 * g
            n0 = tn * 32 + 8 * g
            (c0, e0), (c1, e1) = off(n0), off(n0 + 4)
            ad = T + 4 + (kk % 2)
            dd = T + 6 + 2 * (kk % 2)
            kk += 1
            b0 = T + 3 if e0 else T + 2
            b1 = T + 3 if e1 else T + 2
            if e0 == e1:
                a(f"v_mad_u32_u24 v{ad}, v{T+1}, {c1 - c0}, v{b0}" if c1 - c0 <= 64 else f"v_mov_b32 v{ad}, {c1-c0}")
                if c1 - c0 > 64:
                    a(f"v_mad_u32_u24 v{ad}, v{T+1}, v{ad}, v{b0}")
            else:
                a(f"v_add_u32 v{ad}, {c1 - c0}, v{b1}")
                a(f"v_cndmask_b32 v{ad}, v{ad}, v{b0}, vcc")
            a(f"v_pk_mul_f32 v[{r}:{r+1}], v[{r}:{r+1}], s[{S_T4}:{S_T5}]")
            a(f"v_pk_mul_f32 v[{r+2}:{r+3}], v[{r+2}:{r+3}], s[{S_T4}:{S_T5}]")
            a(f"v_cvt_pk_bf16_f32 v{dd}, v{r}, v{r+1}")
            a(f"v_cvt_pk_bf16_f32 v{dd+1}, v{r+2}, v{r+3}")
            a(f"ds_write_b64 v{ad}, v[{dd}:{dd+1}] offset:{c0}")
    a(f"v_lshlrev_b32 v{T}, 4, v1")
    a(f"v_add_u32 v{T+1}, s{S_T0}, v{T}")
    a(f"v_lshrrev_b32 v{T+2}, 4, v1")
    a(f"s_and_b32 s{S_T0}, s{S_CT}, 3")
    a(f"s_lshl_b32 s{S_T0}, s{S_T0}, 9")
    a(f"s_lshl_b32 s{S_T1}, s{S_RT}, 2")
    a(f"s_add_u32 s{S_T0}, s{S_T0}, s{S_T1}")
    a(f"s_add_u32 s{S_T0}, s{S_T0}, s{S_WAVE}")
    a(f"s_mul_i32 s{S_T0}, s{S_T0}, s{S_T3}")
    a(f"s_lshl_b32 s{S_T1}, s{S_T3}, 6")
    a(f"s_sub_u32 s{S_T1}, s{S_T1}, 1280")
    a(f"s_movk_i32 s{S_T2}, 205")
    a("s_waitcnt lgkmcnt(0)")
    QD = V_FR + 16
    for i in range(10):
        a(f"ds_read_b128 {vr(QD + 4*i, 4)}, v{T+1} offset:{i*1024}")
    for i in range(10):
        ad = V_ACC + i
        a(f"v_add_u32 v{ad}, {4*i}, v{T+2}")
        a(f"v_mul_u32_u24 v{ad}, s{S_T2}, v{ad}")
        a(f"v_lshrrev_b32 v{ad}, 10, v{ad}")
        a(f"v_mul_lo_u32 v{ad}, v{ad}, s{S_T1}")
        a(f"v_add_u32 v{ad}, v{ad}, v{T}")
        if i:
            a(f"v_add_u32 v{ad}, {i*1024}, v{ad}")
    for i in range(10):
        a(f"s_waitcnt lgkmcnt({9-i})")
        a(f"buffer_store_dwordx4 {vr(QD + 4*i, 4)}, v{V_ACC+i}, s[{S_SRDO}:{S_SRDO+3}], s{S_T0} offen{SC1}")
    stamp_out(a, 6)
    tl_end(a, 0)
    a("s_endpgm")
    a.label("k1_v")
    k1_main(a, kv)
    h_epilogue(a, kv, EB)
    make_srd(a, S_SRDO, P_WS, KV_OFF, KV_SIZE)
    a(f"v_and_b32 v{T}, 31, v1")
    a(f"v_lshrrev_b32 v{T+1}, 5, v1")
    a(f"v_mul_u32_u24 v{T+1}, 320, v{T+1}")
    a(f"v_add_u32 v{T+1}, 1280, v{T+1}")
    a(f"s_sub_u32 s{S_T0}, s{S_CT}, 8")
    a(f"s_lshl_b32 s{S_T0}, s{S_T0}, 9")
    a(f"s_lshl_b32 s{S_T1}, s{S_RT}, 2")
    a(f"s_add_u32 s{S_T0}, s{S_T0}, s{S_T1}")
    a(f"s_add_u32 s{S_T0}, s{S_T0}, s{S_WAVE}")
    a(f"s_mul_i32 s{S_T0}, s{S_T0}, 2560")
    a(f"s_movk_i32 s{S_T3}, 3277")
    a(f"s_mov_b32 s{S_T2}, {64*2560}")
    VD = V_FR + 16
    for tn in range(5):
        a(f"v_add_u32 v{T+2}, {tn*32}, v{T}")
        a(f"v_mul_u32_u24 v{T+3}, s{S_T3}, v{T+2}")
        a(f"v_lshrrev_b32 v{T+3}, 16, v{T+3}")
        a(f"v_mul_u32_u24 v{T+4}, 20, v{T+3}")
        a(f"v_sub_u32 v{T+4}, v{T+2}, v{T+4}")
        a(f"v_mul_lo_u32 v{T+3}, v{T+3}, s{S_T2}")
        a(f"v_lshl_add_u32 v{T+5}, v{T+4}, 4, v{T+1}")
        a(f"v_add_u32 v{VD+40+tn}, v{T+5}, v{T+3}")
        for m in range(2):
            r = V_ACC + tn * 16 + 8 * m
            dd = VD + (tn * 2 + m) * 4
            for i in range(4):
                a(f"v_cvt_pk_bf16_f32 v{dd+i}, v{r+2*i}, v{r+2*i+1}")
            a(f"buffer_store_dwordx4 v[{dd}:{dd+3}], v{VD+40+tn}, s[{S_SRDO}:{S_SRDO+3}], s{S_T0} offen offset:{m*640}{SC1}")
    stamp_out(a, 6)
    tl_end(a, 0)
    a("s_endpgm")
    a.label("k1_h")
    k1_main(a, kh)
    h_epilogue(a, kh, EB)
    stamp_out(a, 6)
    tl_end(a, 0)
    a.label("k1_end")
    a("s_endpgm")
    return dict(name="k1_kernel", vgpr=V_ACC + 128, sgpr=96, grid=K1_WGS, block=512, lds=K1_S * STG)


def gen_gate(a, s_idx, wave8=True):
    make_srd(a, S_SRDA, P_X, 0, 2048 * 1280)
    make_srd(a, S_SRDB, P_GW, 0, 1280)
    make_srd(a, S_SRDO, P_WS, G_OFF, G_SIZE)
    a("v_and_b32 v2, 15, v1")
    a("v_lshrrev_b32 v3, 4, v1")
    a("v_lshlrev_b32 v4, 4, v2")
    for i in range(5):
        a(f"buffer_load_dwordx4 v[{24+4*i}:{27+4*i}], v4, s[{S_SRDB}:{S_SRDB+3}], 0 offen offset:{i*256}")
    a(f"s_lshl_b32 s{S_T0}, s{s_idx}, 8")
    a(f"s_lshl_b32 s{S_T1}, s{S_WAVE}, 5")
    a(f"s_add_u32 s{S_T0}, s{S_T0}, s{S_T1}")
    a(f"v_add_u32 v5, s{S_T0}, v3")
    a(f"v_mul_u32_u24 v6, 1280, v5")
    a(f"v_add_u32 v6, v6, v4")
    a(f"v_lshlrev_b32 v7, 2, v5")
    a("v_cmp_eq_u32 vcc, 0, v2")
    a(f"s_mov_b64 s[{S_EX0}:{S_EX0+1}], vcc")
    for p in range(8):
        for i in range(5):
            a(f"s_mov_b32 s{S_T0}, {p*4*1280}")
            a(f"buffer_load_dwordx4 v[{48+4*i}:{51+4*i}], v6, s[{S_SRDA}:{S_SRDA+3}], s{S_T0} offen offset:{i*256}")
        a("s_waitcnt vmcnt(0)")
        a("v_mov_b32 v8, 0")
        for i in range(20):
            a(f"v_dot2_f32_bf16 v8, v{24+i}, v{48+i}, v8")
        a("s_nop 3")
        for sh in (8, 4, 2, 1):
            a("s_nop 1")
            a(f"v_add_f32_dpp v8, v8, v8 row_ror:{sh} row_mask:0xf bank_mask:0xf")
        a("s_nop 1")
        a("v_cvt_pk_bf16_f32 v8, v8, v8")
        a("v_lshlrev_b32 v8, 16, v8")
        a(f"v_mul_f32 v8, {f32bits(-math.log2(math.e))}, v8")
        a("v_exp_f32 v8, v8")
        a("s_nop 0")
        a("v_add_f32 v8, 1.0, v8")
        a("v_rcp_f32 v8, v8")
        a("s_nop 0")
        a("v_cvt_pk_bf16_f32 v8, v8, v8")
        a("v_lshlrev_b32 v8, 16, v8")
        a(f"s_mov_b64 exec, s[{S_EX0}:{S_EX0+1}]")
        a(f"buffer_store_dword v8, v7, s[{S_SRDO}:{S_SRDO+3}], 0 offen offset:{p*16}")
        a("s_mov_b64 exec, -1")
        a("s_nop 1")
    a("s_endpgm")
```

```python
import math
from gen import *

K2_WGS = 256
CHUNK = 40960
WIN = 24

V_DMA = 2
V_KE = 3
V_VV = 4
V_KM = 5
V_D13 = 6
V_G = 7
V_TMP = 8
V_Q1 = 12
V_Q2 = 16
V_K = 20
V_V = 36
V_P = 52
V_S = 60
V_O = 92
V_ACC = 108
V_RA = 188
V_RB = 200
NA, NB = 3, 14
NSTEP = 27
S_HEAD = 37
S_QT = 38
S_RB = 45
S_CB = 46
S_VMASK = 62
S_SRDH = 64
S_SRDW = 68
S_FA = 72
S_FB = 73
S_KQ = 74
S_FB2 = 75
S_M5 = 47
S_ST = 76


def stamp(a, i):
    if 'fstamp' in DBG:
        a(f"{'s_memtime' if 'cyc' in DBG else 's_memrealtime'} s[{S_ST+2*i}:{S_ST+2*i+1}]")


def stamp_out(a, n, T):
    if 'fstamp' not in DBG: return
    a("s_waitcnt vmcnt(0)")
    stamp(a, n - 1)
    a("s_waitcnt lgkmcnt(0)")
    make_srd(a, S_SRDY, P_WS, 0x2000000, 0x100000)
    a(f"s_lshl_b32 s{S_T5}, s2, 3")
    a(f"s_add_u32 s{S_T5}, s{S_T5}, s{S_WAVE}")
    a(f"s_lshl_b32 s{S_T5}, s{S_T5}, 6")
    a(f"v_mov_b32 v{T+2}, s{S_T5}")
    a("s_mov_b64 exec, 1")
    for i in range(n):
        a(f"v_mov_b32 v{T+3}, s{S_ST+2*i}")
        a(f"buffer_store_dword v{T+3}, v{T+2}, s[{S_SRDY}:{S_SRDY+3}], 0 offen offset:{4*i}")
    a("s_mov_b64 exec, -1")


def role(a, tg):
    T = V_TMP
    vm = VM()
    vm.add('q'); vm.add('q')
    F = tg == 0
    nt = 3 if F else 2
    j0 = 3 * tg
    L = lambda x: f'{x}_{tg}'
    NPF = 0 if 'nosplit' in DBG else (2 if 'split2' in DBG else 1)
    FIRST = [(0, i) for i in range(NPF)]
    TB = (NPF * 8192) // 2560 - 2 if NPF else -1

    def att_dma1(c, i):
        a(f"s_add_u32 m0, s{S_MW}, {c*CHUNK + i*8192}")
        a(f"s_add_u32 s{S_T0}, s{S_AW}, {c*CHUNK + i*8192}")
        a(f"buffer_load_dwordx4 v{V_DMA}, s[{S_SRDA}:{S_SRDA+3}], s{S_T0} offen lds")
        vm.add(('c', c) if (c, i) not in FIRST else 'c00')

    def att_dma(c):
        for i in range(5): att_dma1(c, i)

    WL = [(sl, jj) for sl in range(10) for jj in range(nt)]
    NSTG = 13 if F else 0
    ring_free = []
    BQ = {}
    for i in range(NSTG): BQ[WL[i]] = 12 + 4 * i if i < 10 else 60 + 4 * (i - 10)
    AQ = [72 + 4 * i for i in range(9)] + [52]
    stg_off = lambda i: (i // 10) * CHUNK + (i % 10) * 1024

    def wo_stage(i):
        sl, jj = WL[i]
        a(f"s_add_u32 m0, s{S_M5}, {stg_off(i)}")
        a(f"s_add_u32 s{S_T0}, s{S_FB2}, {sl*20480 + jj*1024}")
        a(f"buffer_load_dwordx4 v{V_DMA}, s[{S_SRDW}:{S_SRDW+3}], s{S_T0} offen lds")
        vm.add(('ws', i))

    def wo_reg(reg):
        i = NSTG + len(ring_free)
        ring_free.append(reg)
        sl, jj = WL[i]
        BQ[WL[i]] = reg
        a(f"s_add_u32 s{S_T0}, s{S_FB2}, {sl*20480 + jj*1024}")
        a(f"buffer_load_dwordx4 {vr(reg, 4)}, v{V_DMA}, s[{S_SRDW}:{S_SRDW+3}], s{S_T0} offen")
        vm.add(('wr', i))

    def read_k(t):
        if 'xlds' in DBG and t > 2: return
        kb = t % 2
        if t and t % WIN == 0:
            a(f"v_add_u32 v{V_KM}, {WIN*2560}, v{V_KM}")
            a(f"v_add_u32 v{V_KE}, {WIN*2560}, v{V_KE}")
        off = (t % WIN) * 2560
        a(f"ds_read_b128 {vr(V_K + 8*kb, 4)}, v{V_KM} offset:{off}")
        a(f"ds_read_b32 v{V_K + 8*kb + 4}, v{V_KE} offset:{off}")

    def read_v(t):
        if 'xlds' in DBG and t > 2: return
        vb = t % 2
        if t and t % WIN == 0:
            a(f"v_add_u32 v{V_VV}, {WIN*2560}, v{V_VV}")
        off = (t % WIN) * 2560
        a(f"s_mov_b64 exec, s[{S_VMASK}:{S_VMASK+1}]")
        for m in range(2):
            a(f"ds_read_b128 {vr(V_V + 8*vb + 4*m, 4)}, v{V_VV} offset:{off + m*640}")
        a("s_mov_b64 exec, -1")

    def qk(t, which):
        if 'xqk2' in DBG and which == 1: return
        kb = t % 2
        S = vr(V_S + 16 * (t % 2), 16)
        if which == 0:
            a(f"v_mfma_f32_32x32x16_bf16 {S}, {vr(V_K + 8*kb, 4)}, {vr(V_Q1, 4)}, 0")
        elif 'q16' not in DBG:
            a(f"v_mfma_f32_32x32x8_bf16 {S}, {vr(V_K + 8*kb + 4, 2)}, {vr(V_Q2, 2)}, {S}")
        else:
            a(f"v_mfma_f32_32x32x16_bf16 {S}, {vr(V_K + 8*kb + 4, 4)}, {vr(V_Q2, 4)}, {S}")

    def pv(t, m):
        if 'xpv' in DBG and t > 0: return
        vb = t % 2
        O = vr(V_O, 16)
        cin = "0" if (t == 0 and m == 0) else O
        a(f"v_mfma_f32_32x32x16_bf16 {O}, {vr(V_V + 8*vb + 4*m, 4)}, {vr(V_P + 4*m, 4)}, {cin}")

    def ld_a(i):
        if i >= NSTEP: return wo_reg(V_RA + 4*(i % NA))
        if 'nofl' in DBG: return
        vo = V_DMA
        a(f"s_add_u32 s{S_T0}, s{S_FA}, {i*4*1024}")
        a(f"buffer_load_dwordx4 {vr(V_RA + 4*(i % NA), 4)}, v{vo}, s[{S_SRDH}:{S_SRDH+3}], s{S_T0} offen")
        vm.add(('a', i))

    def ld_b(m):
        if m >= NSTEP * 5: return wo_reg(V_RB + 4*(m % NB))
        if 'nofl' in DBG: return
        i, j = divmod(m, 5)
        vo = V_DMA
        a(f"s_add_u32 s{S_T0}, s{S_FB}, {i*4*20480 + j*1024}")
        a(f"buffer_load_dwordx4 {vr(V_RB + 4*(m % NB), 4)}, v{vo}, s[{S_SRDW}:{S_SRDW+3}], s{S_T0} offen")
        vm.add(('b', m))

    def ffn(m):
        i, j = divmod(m, 5)
        acc = vr(V_ACC + 16 * j, 16)
        if 'nofl' not in DBG and 'nofw' not in DBG:
            a(f"s_waitcnt vmcnt({vm.need(('a', i), ('b', m))})")
        if 'nofm' not in DBG: a(f"v_mfma_f32_32x32x16_bf16 {acc}, {vr(V_RB + 4*(m % NB), 4)}, {vr(V_RA + 4*(i % NA), 4)}, {'0' if i == 0 else acc}")
        ld_b(m + NB)
        if j == 4:
            ld_a(i + NA)

    att_dma(0)
    make_srd(a, S_SRDH, P_WS, H_OFF, H_SIZE)
    make_srd(a, S_SRDW, P_WS, WF_OFF, WF_SIZE)
    make_srd(a, S_SRDO, P_WS, O_OFF, O_SIZE)
    a(f"s_and_b32 s{S_KQ}, s{S_WAVE}, 3")
    a(f"s_mul_i32 s{S_FB2}, s{S_KQ}, 200")
    a(f"s_mul_i32 s{S_T0}, s{S_CB}, 5")
    a(f"s_add_u32 s{S_FB2}, s{S_FB2}, s{S_T0}")
    a(f"s_lshr_b32 s{S_T0}, s{S_WAVE}, 2")
    a(f"s_mul_i32 s{S_T0}, s{S_T0}, 3")
    a(f"s_add_u32 s{S_FB2}, s{S_FB2}, s{S_T0}")
    a(f"s_add_u32 s{S_FB2}, s{S_FB2}, {108*20}")
    a(f"s_lshl_b32 s{S_FB2}, s{S_FB2}, 10")
    a(f"s_mul_i32 s{S_M5}, s{S_WAVE}, 10240")
    if F:
        ld_a(0)
        for m in range(5): ld_b(m)
    att_dma(1)
    make_srd(a, S_SRDY, P_WS, G_OFF, G_SIZE)
    a(f"v_lshlrev_b32 v{T+2}, 2, v{T}")
    a(f"s_lshl_b32 s{S_T0}, s{S_RB}, 7")
    a(f"buffer_load_dword v{V_G}, v{T+2}, s[{S_SRDY}:{S_SRDY+3}], s{S_T0} offen")
    vm.add('g')
    dq = []
    if F:
        dq = [lambda: ld_a(1)] + [(lambda m: lambda: ld_b(m))(m) for m in range(5, 10)] + [lambda: ld_a(2)] + [(lambda m: lambda: ld_b(m))(m) for m in range(10, NB)]
    dq += [(lambda c, i: lambda: att_dma1(c, i))(c, i) for c in (2, 3) for i in range(5)]
    for r in (V_Q2 + 1, V_Q2 + 2, V_Q2 + 3, V_K + 6, V_K + 7, V_K + 14, V_K + 15):
        a(f"v_mov_b32 v{r}, 0")
    a("v_cmp_gt_u32 vcc, 32, v1")
    a(f"v_mov_b32 v{T+2}, 0x3f80")
    a("s_nop 1")
    a(f"v_cndmask_b32 v{V_K+5}, 0, v{T+2}, vcc")
    a(f"v_cndmask_b32 v{V_K+13}, 0, v{T+2}, vcc")
    a(f"v_cmp_eq_u32 vcc, 20, v{T}")
    a(f"v_cmp_eq_u32 s[{S_EX0}:{S_EX0+1}], 24, v{T}")
    a(f"s_or_b64 vcc, vcc, s[{S_EX0}:{S_EX0+1}]")
    a(f"v_mov_b32 v{T+2}, 0x3f803f80")
    a("s_nop 1")
    a(f"v_cndmask_b32 v{T+2}, 0, v{T+2}, vcc")
    for r in range(16):
        a(f"v_mov_b32 v{V_V + r}, v{T+2}")
    a(f"s_mov_b32 s{S_VMASK}, 0x000fffff")
    a(f"s_mov_b32 s{S_VMASK+1}, 0x000fffff")
    a(f"s_waitcnt vmcnt({vm.need('q', 'c00' if NPF else ('c', 0))})")
    a("s_barrier")
    stamp(a, 1)
    read_k(0)
    read_k(1)
    read_v(0)
    a("s_waitcnt lgkmcnt(4)")
    qk(0, 0)
    qk(0, 1)
    a("s_nop 15")
    a("s_nop 3")
    S0 = V_S
    a(f"v_max3_f32 v{T}, v{S0}, v{S0+1}, v{S0+2}")
    for i in range(3, 15, 2):
        a(f"v_max3_f32 v{T}, v{T}, v{S0+i}, v{S0+i+1}")
    a(f"v_max_f32 v{T}, v{T}, v{S0+15}")
    a(f"v_mov_b32 v{T+1}, v{T}")
    a("s_nop 1")
    a(f"v_permlane32_swap_b32 v{T}, v{T+1}")
    a("s_nop 1")
    a(f"v_max_f32 v{T}, v{T}, v{T+1}")
    a(f"v_sub_f32 v{T}, 0, v{T}")
    a(f"v_cvt_pk_bf16_f32 v{V_Q2+1}, v{T}, 0")
    a("s_nop 1")
    qk(0, 0)
    qk(0, 1)
    a("s_nop 7")
    NT = 64
    NM = NSTEP * 5 if F else 0
    T0, T1 = 2, 63
    cnt = lambda t: min(NM, max(0, ((t - T0) * NM + (T1 - T0) - 1) // (T1 - T0)))
    for t in range(NT):
        S = V_S + 16 * (t % 2)
        e = lambda i: a(f"v_exp_f32 v{S+i}, v{S+i}")
        cv = lambda i: a(f"v_cvt_pk_bf16_f32 v{V_P+i}, v{S+2*i}, v{S+2*i+1}")
        fl = list(range(cnt(t), cnt(t + 1)))
        assert len(fl) <= 3
        if t + 1 < NT:
            a("s_waitcnt lgkmcnt(2)")
            qk(t + 1, 0)
        for i in range(4):
            e(i)
        if t > 0:
            pv(t - 1, 1)
        nout = 0
        if t == TB:
            a(f"s_waitcnt vmcnt({vm.need(('c', 0))})")
            a("s_barrier")
        if t in (14, 30, 46):
            a(f"s_waitcnt vmcnt({vm.need(('c', (t + 2) // 16))})")
            a("s_barrier")
            if t >= 30 and F:
                dq += [(lambda i: lambda: wo_stage(i))(i) for i in (range(10) if t == 30 else range(10, 13))]
            if t == 30 and not F:
                dq += [(lambda i: lambda: wo_reg(176 + 4 * i))(i) for i in range(20)]
        if t + 2 < NT:
            read_k(t + 2)
            nout += 2
        if t + 1 < NT:
            read_v(t + 1)
            nout += 2
        e(4)
        e(5)
        if len(fl) == 3: ffn(fl.pop(0))
        e(6)
        e(7)
        if t + 1 < NT:
            qk(t + 1, 1)
        for i in range(4):
            cv(i)
        for _ in range(3 if t < 8 else 1):
            if dq: dq.pop(0)()
        e(8)
        e(9)
        a(f"s_waitcnt lgkmcnt({nout})")
        pv(t, 0)
        for i in range(10, 14):
            e(i)
        if fl: ffn(fl.pop(0))
        e(14)
        e(15)
        for i in range(4, 8):
            cv(i)
        if fl: ffn(fl.pop(0))
    assert not dq and len(ring_free) == (17 if F else 20), len(ring_free)
    a("s_nop 1")
    pv(NT - 1, 1)
    a("s_nop 15")
    a("s_nop 3")
    stamp(a, 2)
    a("v_cmp_gt_u32 vcc, 32, v1")
    a(f"s_mov_b32 s{S_T0}, 0x5f800000")
    a(f"s_movk_i32 s{S_T1}, 0x207")
    a(f"v_cndmask_b32 v{T}, v{V_O+8}, v{V_O+12}, vcc")
    a(f"v_cmp_nlt_f32 vcc, v{T}, s{S_T0}")
    a(f"s_mov_b32 s{S_T0}, 0x1f800000")
    a(f"v_cmp_ngt_f32 s[{S_EX0}:{S_EX0+1}], v{T}, s{S_T0}")
    a(f"s_or_b64 vcc, vcc, s[{S_EX0}:{S_EX0+1}]")
    for r in range(16):
        a(f"v_cmp_class_f32 s[{S_EX0}:{S_EX0+1}], v{V_O+r}, s{S_T1}")
        a(f"s_or_b64 vcc, vcc, s[{S_EX0}:{S_EX0+1}]")
    if 'forcefb' not in DBG:
        a("s_cbranch_vccz " + L("k2_norm"))
    M = T + 2
    a(f"v_mov_b32 v{M}, 0xff800000")
    a(f"v_mov_b32 v{V_Q2+1}, 0")
    a(f"v_subrev_u32 v{V_KE}, {2*WIN*2560}, v{V_KE}")
    a(f"v_subrev_u32 v{V_VV}, {2*WIN*2560}, v{V_VV}")
    for r in range(16):
        a(f"v_mov_b32 v{V_O+r}, 0")
    a(f"s_mul_i32 s{S_T0}, s{S_HEAD}, {64*2560}")
    a(f"s_mov_b32 s{S_T1}, 64")
    a.label(L("k2_slow"))
    a(f"buffer_load_dwordx4 {vr(V_K,4)}, v{V_DMA}, s[{S_SRDA}:{S_SRDA+3}], s{S_T0} offen")
    a(f"buffer_load_dword v{V_K+4}, v{V_KE}, s[{S_SRDA}:{S_SRDA+3}], s{S_T0} offen")
    a(f"s_mov_b64 exec, s[{S_VMASK}:{S_VMASK+1}]")
    a(f"buffer_load_dwordx4 {vr(V_V,4)}, v{V_VV}, s[{S_SRDA}:{S_SRDA+3}], s{S_T0} offen")
    a(f"buffer_load_dwordx4 {vr(V_V+4,4)}, v{V_VV}, s[{S_SRDA}:{S_SRDA+3}], s{S_T0} offen offset:640")
    a("s_mov_b64 exec, -1")
    a("s_waitcnt vmcnt(0)")
    a(f"v_mfma_f32_32x32x16_bf16 {vr(V_S,16)}, {vr(V_K,4)}, {vr(V_Q1,4)}, 0")
    a(f"v_mfma_f32_32x32x16_bf16 {vr(V_S,16)}, {vr(V_K+4,4)}, {vr(V_Q2,4)}, {vr(V_S,16)}")
    a("s_nop 15")
    a("s_nop 3")
    a(f"v_max3_f32 v{T}, v{S0}, v{S0+1}, v{S0+2}")
    for i in range(3, 15, 2):
        a(f"v_max3_f32 v{T}, v{T}, v{S0+i}, v{S0+i+1}")
    a(f"v_max_f32 v{T}, v{T}, v{S0+15}")
    a(f"v_mov_b32 v{T+1}, v{T}")
    a("s_nop 1")
    a(f"v_permlane32_swap_b32 v{T}, v{T+1}")
    a("s_nop 1")
    a(f"v_max3_f32 v{T}, v{T}, v{T+1}, v{M}")
    a(f"v_sub_f32 v{T+1}, v{M}, v{T}")
    a(f"v_exp_f32 v{T+1}, v{T+1}")
    a(f"v_mov_b32 v{M}, v{T}")
    for r in range(16):
        a(f"v_sub_f32 v{S0+r}, v{S0+r}, v{T}")
        a(f"v_exp_f32 v{S0+r}, v{S0+r}")
    for r in range(16):
        a(f"v_mul_f32 v{V_O+r}, v{V_O+r}, v{T+1}")
    for i in range(8):
        a(f"v_cvt_pk_bf16_f32 v{V_P+i}, v{S0+2*i}, v{S0+2*i+1}")
    a("s_nop 3")
    a(f"v_mfma_f32_32x32x16_bf16 {vr(V_O,16)}, {vr(V_V,4)}, {vr(V_P,4)}, {vr(V_O,16)}")
    a(f"v_mfma_f32_32x32x16_bf16 {vr(V_O,16)}, {vr(V_V+4,4)}, {vr(V_P+4,4)}, {vr(V_O,16)}")
    a("s_nop 15")
    a("s_nop 3")
    a(f"s_add_u32 s{S_T0}, s{S_T0}, 2560")
    a(f"s_sub_u32 s{S_T1}, s{S_T1}, 1")
    a(f"s_cmp_lg_u32 s{S_T1}, 0")
    a("s_cbranch_scc1 " + L("k2_slow"))
    a.label(L("k2_norm"))
    stamp(a, 3)
    a("v_cmp_gt_u32 vcc, 32, v1")
    a("s_nop 1")
    a(f"v_cndmask_b32 v{T}, v{V_O+8}, v{V_O+12}, vcc")
    a(f"v_rcp_f32 v{T+1}, v{T}")
    a(f"v_lshrrev_b32 v{T+2}, 5, v1")
    a(f"s_mul_i32 s{S_T1}, s{S_HEAD}, 5")
    a(f"v_add_u32 v{T+2}, s{S_T1}, v{T+2}")
    a(f"v_and_b32 v{T+3}, 31, v1")
    a(f"v_lshlrev_b32 v{T+3}, 4, v{T+3}")
    for r in range(12):
        a(f"v_mul_f32 v{V_O+r}, v{V_O+r}, v{T+1}")
    for r in range(6):
        a(f"v_cvt_pk_bf16_f32 v{V_P+r}, v{V_O+2*r}, v{V_O+2*r+1}")
    for r in range(6):
        a(f"v_min_u32 v{V_P+r}, -2, v{V_P+r}")
    AD = V_S
    for p in range(3):
        k4, x = AD + 4 * p, AD + 4 * p + 1
        a(f"v_add_u32 v{k4}, {2*p}, v{T+2}")
        a(f"v_lshrrev_b32 v{x}, 2, v{k4}")
        a(f"v_lshl_add_u32 v{x}, v{x}, 10, v{T+3}")
        a(f"v_and_b32 v{x+1}, 1, v{k4}")
        a(f"v_lshl_add_u32 v{x}, v{x+1}, 9, v{x}")
        a(f"v_bfe_u32 v{x+1}, v{k4}, 1, 1")
        a(f"v_lshl_add_u32 v{x}, v{x+1}, 3, v{x}")
    a(f"s_mul_i32 s{S_T0}, s{S_QT}, 40960")
    a(f"buffer_store_dwordx2 v[{V_P}:{V_P+1}], v{AD+1}, s[{S_SRDO}:{S_SRDO+3}], s{S_T0} offen sc1")
    a(f"buffer_store_dwordx2 v[{V_P+2}:{V_P+3}], v{AD+5}, s[{S_SRDO}:{S_SRDO+3}], s{S_T0} offen sc1")
    a("s_mov_b64 exec, vcc")
    a(f"buffer_store_dwordx2 v[{V_P+4}:{V_P+5}], v{AD+9}, s[{S_SRDO}:{S_SRDO+3}], s{S_T0} offen sc1")
    a("s_mov_b64 exec, -1")
    stamp(a, 4)
    a(f"s_mul_i32 s{S_FA}, s{S_RB}, 40")
    a(f"s_mul_i32 s{S_T0}, s{S_KQ}, 10")
    a(f"s_add_u32 s{S_FA}, s{S_FA}, s{S_T0}")
    a(f"s_lshl_b32 s{S_FA}, s{S_FA}, 10")
    a(f"s_add_u32 s{S_FB}, s{S_FA}, 4096")
    a(f"s_add_u32 s{S_FB2}, s{S_FA}, 8192")

    def a_load(sl):
        a(f"buffer_load_dwordx4 {vr(AQ[sl], 4)}, v{V_DMA}, s[{S_SRDO}:{S_SRDO+3}], s{(S_FA, S_FB, S_FB2)[sl // 4]} offen offset:{(sl%4)*1024} sc1")
    EARLY = 'aearly' in DBG
    AMID = not (EARLY or 'a5' in DBG or 'alate' in DBG)
    if EARLY:
        for sl in range(10): a_load(sl)
    a(f"v_add_u32 v{V_KE}, s{S_M5}, v{V_DMA}")
    a(f"s_mul_i32 s{S_T0}, s{S_WAVE}, 20480")
    a(f"v_add_u32 v{V_KM}, s{S_T0}, v{V_DMA}")
    make_srd(a, S_SRDB, P_OUT, 0, O_SIZE)
    if F:
        a(f"s_waitcnt vmcnt({vm.need(('ws', NSTG - 1)) + (13 if EARLY else 3)})")
        for i in range(NSTG):
            a(f"ds_read_b128 {vr(BQ[WL[i]], 4)}, v{V_KE} offset:{stg_off(i)}")
    a("s_waitcnt lgkmcnt(0)")
    a("s_barrier")
    stamp(a, 5)
    if 'a5' in DBG:
        for sl in range(10): a_load(sl)
    V_BF = 156
    V_AC = 108
    ASTR = 12288 if F else 8192
    S_DONE = S_M5

    if True:
        for j in range(5 if F else 0):
            for q in range(4):
                a(f"ds_write_b128 v{V_KM}, {vr(V_ACC + 16*j + 4*q, 4)} offset:{(j*4+q)*1024}")
        a(f"s_lshl_b32 s{S_T0}, s{S_KQ}, 10")
        a(f"s_add_u32 s{S_T0}, s{S_T0}, {j0*4096}")
        a(f"v_add_u32 v{T}, s{S_T0}, v{V_DMA}")
        a(f"v_add_u32 v{T+1}, {3*20480}, v{T}")
        a("s_waitcnt lgkmcnt(0)")
        a("s_barrier")
        stamp(a, 6)
        for jj in range(nt):
            for w in range(4):
                a(f"ds_read_b128 {vr(V_AC + 16*jj + 4*w, 4)}, v{T + w//3} offset:{(w%3)*20480 + jj*4096}")
        if AMID:
            for sl in range(10): a_load(sl)
        a(f"v_and_b32 v{T+2}, 31, v1")
        a(f"v_mul_u32_u24 v{T+2}, 1280, v{T+2}")
        a(f"v_lshrrev_b32 v{T+3}, 5, v1")
        a(f"v_lshl_add_u32 v{T+2}, v{T+3}, 3, v{T+2}")
        a(f"s_mul_i32 s{S_T1}, s{S_RB}, 40960")
        a(f"s_mul_i32 s{S_T0}, s{S_CB}, 320")
        a(f"s_add_u32 s{S_T1}, s{S_T1}, s{S_T0}")
        a(f"s_lshl_b32 s{S_T0}, s{S_KQ}, 4")
        a(f"s_add_u32 s{S_T1}, s{S_T1}, s{S_T0}")
        a(f"v_sub_f32 v{T+3}, 1.0, v{V_G}")
        a(f"v_cvt_pk_bf16_f32 v{T+3}, v{T+3}, v{T+3}")
        a(f"v_lshlrev_b32 v{T+3}, 16, v{T+3}")
        a(f"s_mov_b32 s{S_T2}, 0xffff0000")
        a(f"s_mov_b32 s{S_DONE}, 0")
        X = V_BF + 6
        for jj in range(nt):
            tb = V_AC + 16 * jj
            a(f"s_waitcnt lgkmcnt({4*(nt-1-jj)})")
            for i in range(4):
                a(f"v_add_f32 v{tb+i}, v{tb+i}, v{tb+4+i}")
                a(f"v_add_f32 v{tb+8+i}, v{tb+8+i}, v{tb+12+i}")
            for i in range(4):
                a(f"v_add_f32 v{tb+i}, v{tb+i}, v{tb+8+i}")
            a(f"v_cvt_pk_bf16_f32 v{V_BF+2*jj}, v{tb}, v{tb+1}")
            a(f"v_cvt_pk_bf16_f32 v{V_BF+2*jj+1}, v{tb+2}, v{tb+3}")
            for i in range(16):
                a(f"v_mov_b32 v{tb+i}, 0")
        stamp(a, 7)
        if not EARLY and not AMID and 'a5' not in DBG:
            for sl in range(10): a_load(sl)
        a(f"s_mul_i32 s{S_T0}, s{S_KQ}, {ASTR}")
        a(f"s_add_u32 s{S_T0}, s{S_T0}, {81920 + tg*49152}")
        a(f"v_add_u32 v{T}, s{S_T0}, v{V_DMA}")
        a(f"s_lshl_b32 s{S_T0}, s{S_KQ}, 10")
        a(f"s_add_u32 s{S_T0}, s{S_T0}, {81920 + tg*49152}")
        a(f"v_add_u32 v{T+1}, s{S_T0}, v{V_DMA}")
        a.label(f"k2_poll{tg}")
        for sl in range(10):
            q = AQ[sl]
            a(f"s_bitcmp1_b32 s{S_DONE}, {sl}")
            a(f"s_cbranch_scc1 k2_pn{tg}_{sl}")
            a(f"s_waitcnt vmcnt({9 - sl})")
            a(f"v_max3_u32 v{X}, v{q}, v{q+1}, v{q+2}")
            a(f"v_max_u32 v{X}, v{X}, v{q+3}")
            a(f"v_cmp_eq_u32 vcc, -1, v{X}")
            a(f"s_cbranch_vccnz k2_pn{tg}_{sl}")
            for jj in range(nt):
                acc = vr(V_AC + 16 * jj, 16)
                a(f"v_mfma_f32_32x32x16_bf16 {acc}, {vr(BQ[(sl, jj)], 4)}, {vr(q, 4)}, {acc}")
            a(f"s_bitset1_b32 s{S_DONE}, {sl}")
            a.label(f"k2_pn{tg}_{sl}")
        a(f"s_cmpk_eq_u32 s{S_DONE}, 0x3ff")
        a(f"s_cbranch_scc1 k2_pdone{tg}")
        if 'nosleep' not in DBG: a(f"s_sleep {2 if 'sleep2' in DBG else (8 if 'sleep8' in DBG else 4)}")
        for sl in range(10):
            a(f"s_bitcmp1_b32 s{S_DONE}, {sl}")
            a(f"s_cbranch_scc1 k2_pl{tg}_{sl}")
            a_load(sl)
            a.label(f"k2_pl{tg}_{sl}")
        a("s_waitcnt vmcnt(0)")
        a(f"s_branch k2_poll{tg}")
        a.label(f"k2_pdone{tg}")
        stamp(a, 8)
        for r in range(2 * nt):
            a(f"v_lshlrev_b32 v{X}, 16, v{V_BF+r}")
            a(f"v_and_b32 v{X+1}, s{S_T2}, v{V_BF+r}")
            a(f"v_mul_f32 v{X}, v{X}, v{T+3}")
            a(f"v_mul_f32 v{X+1}, v{X+1}, v{T+3}")
            a(f"v_cvt_pk_bf16_f32 v{V_BF+r}, v{X}, v{X+1}")
        for jj in range(nt):
            for q in range(4):
                a(f"ds_write_b128 v{T}, {vr(V_AC + 16*jj + 4*q, 4)} offset:{(jj*4+q)*1024}")
        a("s_waitcnt lgkmcnt(0)")
        a("s_barrier")
        stamp(a, 9)
        RD = 12
        for jj in range(nt):
            for k in range(4):
                a(f"ds_read_b128 {vr(RD + 16*jj + 4*k, 4)}, v{T+1} offset:{k*ASTR + jj*4096}")
        for jj in range(nt):
            r = RD + 16 * jj
            a(f"s_waitcnt lgkmcnt({4*(nt-1-jj)})")
            for i in range(4):
                a(f"v_add_f32 v{r+i}, v{r+i}, v{r+4+i}")
                a(f"v_add_f32 v{r+8+i}, v{r+8+i}, v{r+12+i}")
            for i in range(4):
                a(f"v_add_f32 v{r+i}, v{r+i}, v{r+8+i}")
            for p in range(2):
                x0, x1 = r + 2 * p, r + 2 * p + 1
                bb = V_BF + 2 * jj + p
                y = r + 4
                a(f"v_cvt_pk_bf16_f32 v{y}, v{x0}, v{x1}")
                a(f"v_lshlrev_b32 v{x0}, 16, v{y}")
                a(f"v_and_b32 v{x1}, s{S_T2}, v{y}")
                a(f"v_mul_f32 v{x0}, v{x0}, v{V_G}")
                a(f"v_mul_f32 v{x1}, v{x1}, v{V_G}")
                a(f"v_cvt_pk_bf16_f32 v{y}, v{x0}, v{x1}")
                a(f"v_lshlrev_b32 v{x0}, 16, v{y}")
                a(f"v_and_b32 v{x1}, s{S_T2}, v{y}")
                a(f"v_lshlrev_b32 v{y}, 16, v{bb}")
                a(f"v_and_b32 v{y+1}, s{S_T2}, v{bb}")
                a(f"v_add_f32 v{x0}, v{x0}, v{y}")
                a(f"v_add_f32 v{x1}, v{x1}, v{y+1}")
                a(f"v_cvt_pk_bf16_f32 v{r+8+p}, v{x0}, v{x1}")
            a(f"buffer_store_dwordx2 v[{r+8}:{r+9}], v{T+2}, s[{S_SRDB}:{S_SRDB+3}], s{S_T1} offen offset:{(j0+jj)*64}")
        stamp_out(a, 11, T)
        tl_end(a, 1)
        a("s_endpgm")


def gen_k2(a):
    T = V_TMP
    a.label("k2_kernel")
    tl_start(a)
    stamp(a, 0)
    a(f"s_cmp_ge_u32 s2, {K2_WGS}")
    a("s_cbranch_scc1 k2_end")
    load_ptrs(a)
    a("v_lshrrev_b32 v1, 6, v0")
    a("s_nop 0")
    a(f"v_readfirstlane_b32 s{S_WAVE}, v1")
    a(f"s_and_b32 s{S_T0}, s2, 7")
    a(f"s_lshl_b32 s{S_T0}, s{S_T0}, 2")
    a(f"s_lshr_b32 s{S_T1}, s2, 3")
    a(f"s_and_b32 s{S_T1}, s{S_T1}, 3")
    a(f"s_add_u32 s{S_HEAD}, s{S_T0}, s{S_T1}")
    a(f"s_lshr_b32 s{S_T0}, s2, 5")
    a(f"s_lshl_b32 s{S_T0}, s{S_T0}, 3")
    a(f"s_add_u32 s{S_QT}, s{S_T0}, s{S_WAVE}")
    a(f"s_and_b32 s{S_T0}, s2, 7")
    a(f"s_lshl_b32 s{S_T0}, s{S_T0}, 3")
    a(f"s_bfe_u32 s{S_T1}, s2, 0x30003")
    a(f"s_add_u32 s{S_RB}, s{S_T0}, s{S_T1}")
    a(f"s_lshr_b32 s{S_CB}, s2, 6")
    a(f"s_mul_i32 s{S_FA}, s{S_RB}, 108")
    a(f"s_add_u32 s{S_FA}, s{S_FA}, s{S_WAVE}")
    a(f"s_lshl_b32 s{S_FA}, s{S_FA}, 10")
    a(f"s_mul_i32 s{S_FB}, s{S_WAVE}, 20")
    a(f"s_mul_i32 s{S_T0}, s{S_CB}, 5")
    a(f"s_add_u32 s{S_FB}, s{S_FB}, s{S_T0}")
    a(f"s_lshl_b32 s{S_FB}, s{S_FB}, 10")
    a("v_and_b32 v1, 63, v0")
    a(f"v_lshlrev_b32 v{V_DMA}, 4, v1")
    a(f"v_mov_b32 v{V_KM}, v{V_DMA}")
    a(f"v_and_b32 v{T}, 31, v1")
    a(f"v_lshrrev_b32 v{T+1}, 5, v1")
    a(f"v_lshlrev_b32 v{V_KE}, 3, v{T}")
    a(f"v_lshl_add_u32 v{V_KE}, v{T+1}, 2, v{V_KE}")
    a(f"v_add_u32 v{V_KE}, 0x400, v{V_KE}")
    a(f"v_mul_u32_u24 v{V_VV}, 320, v{T+1}")
    a(f"v_lshl_add_u32 v{V_VV}, v{T}, 4, v{V_VV}")
    a(f"v_add_u32 v{V_VV}, 1280, v{V_VV}")
    a("s_waitcnt lgkmcnt(0)")
    make_srd(a, S_SRDA, P_WS, KV_OFF, KV_SIZE)
    make_srd(a, S_SRDB, P_WS, QF_OFF, QF_SIZE)
    a(f"s_lshl_b32 s{S_T0}, s{S_HEAD}, 6")
    a(f"s_add_u32 s{S_T0}, s{S_T0}, s{S_QT}")
    a(f"s_mul_i32 s{S_T0}, s{S_T0}, 1280")
    a(f"buffer_load_dwordx4 {vr(V_Q1,4)}, v{V_DMA}, s[{S_SRDB}:{S_SRDB+3}], s{S_T0} offen")
    a(f"buffer_load_dword v{V_Q2}, v{V_KE}, s[{S_SRDB}:{S_SRDB+3}], s{S_T0} offen")
    a(f"s_lshl_b32 s{S_MW}, s{S_WAVE}, 10")
    a(f"s_mul_i32 s{S_AW}, s{S_HEAD}, {64*2560}")
    a(f"s_add_u32 s{S_AW}, s{S_AW}, s{S_MW}")
    a(f"s_cmp_ge_u32 s{S_WAVE}, 4")
    a("s_cbranch_scc1 k2_role1")
    role(a, 0)
    a.label("k2_role1")
    role(a, 1)
    a.label("k2_end")
    a("s_endpgm")
    return dict(name="k2_kernel", vgpr=256, sgpr=100, grid=K2_WGS, block=512, lds=163840)


KERNELS = [gen_k2]
```

```python
import sys, math, struct

S_TOK = 2048
D = 640
DFF = 1728
NH = 32
DH = 20

import os
WSB = int(os.environ.get('WSB', '0'), 0)
QF_OFF = WSB + 0x0
KV_OFF = WSB + 0x280000
H_OFF = WSB + 0x780000
O_OFF = WSB + 0xE40000
B_OFF = WSB + 0x10C0000
G_OFF = WSB + 0x1340000
FL_OFF = WSB + 0x1350000
FL_SIZE = 4096
WF_OFF = WSB + 0x1400000
WF_SIZE = 148 * 20 * 1024
QF_SIZE = 32 * 64 * 1280
KV_SIZE = 32 * 64 * 2560
H_SIZE = 2048 * 3456
O_SIZE = 2048 * 1280
G_SIZE = 8192

QSCALE = math.log2(math.e) / math.sqrt(20.0)


def f32bits(x):
    return struct.unpack("<I", struct.pack("<f", x))[0]


import os
DBG = set(os.environ.get('GDBG','').split(','))

class Asm:
    def __init__(self):
        self.lines = []

    def __call__(self, s):
        self.lines.append("    " + s)

    def label(self, l):
        self.lines.append(l + ":")

    def raw(self, s):
        self.lines.append(s)

    def text(self):
        return "\n".join(self.lines) + "\n"


class VM:
    def __init__(self):
        self.l = []

    def add(self, tag):
        self.l.append(tag)

    def need(self, *tags):
        last = max(max(i for i, x in enumerate(self.l) if x == t) for t in tags)
        n = len(self.l) - 1 - last
        return min(n, 60)


def vr(base, n):
    return f"v[{base}:{base + n - 1}]" if n > 1 else f"v{base}"


def sr(base, n):
    return f"s[{base}:{base + n - 1}]" if n > 1 else f"s{base}"


S_SRDA = 4
S_SRDB = 8
S_SRDO = 12
S_PTR = 16
P_X, P_WQKV, P_WO, P_BX, P_W1, P_W2, P_GW, P_OUT, P_DBG, P_WS = [16 + 2 * i for i in range(10)]
S_WAVE = 36
S_WM = 37
S_WN = 38
S_AW = 39
S_BW = 40
S_MW = 41
S_T0 = 42
S_T1 = 43
S_T2 = 44
S_RT = 45
S_CT = 46
S_T3 = 47
S_SRDX = 48
S_SRDY = 52
S_T4 = 56
S_T5 = 57
S_EX0 = 58
S_EX1 = 60


def tl_start(a):
    if 'tl' in DBG:
        a("s_memrealtime s[96:97]")


def tl_end(a, k):
    if 'tl' not in DBG: return
    a("s_waitcnt vmcnt(0) lgkmcnt(0)")
    a("s_memrealtime s[98:99]")
    a(f"s_add_u32 s88, s{P_WS}, {0x3000000 + k * 0x10000}")
    a(f"s_addc_u32 s89, s{P_WS+1}, 0")
    a("s_mov_b32 s90, 0x10000")
    a("s_mov_b32 s91, 0x00020000")
    a("s_lshl_b32 s92, s2, 3")
    a(f"s_add_u32 s92, s92, s{S_WAVE}")
    a("s_lshl_b32 s92, s92, 3")
    a("s_waitcnt lgkmcnt(0)")
    a("v_mov_b32 v2, s92")
    a("v_mov_b32 v4, s96")
    a("v_mov_b32 v5, s98")
    a("s_mov_b64 exec, 1")
    a("buffer_store_dwordx2 v[4:5], v2, s[88:91], 0 offen")


def load_ptrs(a):
    a(f"s_load_dwordx16 s[16:31], s[0:1], 0")
    a(f"s_load_dwordx4 s[32:35], s[0:1], 64")


def make_srd(a, dst, ptr, off, size):
    if off:
        a(f"s_add_u32 s{dst}, s{ptr}, {off}")
        a(f"s_addc_u32 s{dst + 1}, s{ptr + 1}, 0")
    else:
        a(f"s_mov_b32 s{dst}, s{ptr}")
        a(f"s_mov_b32 s{dst + 1}, s{ptr + 1}")
    a(f"s_mov_b32 s{dst + 2}, {size}")
    a(f"s_mov_b32 s{dst + 3}, 0x00020000")


class GemmCfg:
    def __init__(self, WM, WN, TM, TN, S, KSTEPS, lda, ldb):
        self.WM, self.WN, self.TM, self.TN, self.S, self.KSTEPS = WM, WN, TM, TN, S, KSTEPS
        self.lda, self.ldb = lda, ldb
        self.NW = WM * WN
        self.BM = WM * TM * 32
        self.BN = WN * TN * 32
        self.ASZ = self.BM * 128
        self.BSZ = self.BN * 128
        self.STG = self.ASZ + self.BSZ
        self.nA = self.BM // 8 // self.NW
        self.nB = self.BN // 8 // self.NW
        assert self.nA * 8 * self.NW == self.BM and self.nB * 8 * self.NW == self.BN
        self.RB = 512 // self.BN
        self.V_DA = 2
        self.V_DB = 3
        self.V_AA = 4
        self.V_BA = 8
        self.V_T = 12
        self.V_FR = 24
        self.FRSZ = (TM + TN) * 4
        self.V_ACC = self.V_FR + 2 * self.FRSZ
        self.V_END = self.V_ACC + TM * TN * 16

    def acc(self, tm, tn):
        return self.V_ACC + (tm * self.TN + tn) * 16


def gemm_setup_lane(a, c):
    T = c.V_T
    a("v_and_b32 v1, 63, v0")
    a(f"v_lshrrev_b32 v{T}, 3, v1")
    a(f"v_lshrrev_b32 v{T+1}, 4, v1")
    a(f"s_and_b32 s{S_T0}, s{S_WAVE}, 1")
    a(f"s_lshl_b32 s{S_T0}, s{S_T0}, 2")
    a(f"v_add_u32 v{T+1}, s{S_T0}, v{T+1}")
    a(f"v_and_b32 v{T+2}, 7, v1")
    a(f"v_xor_b32 v{T+2}, v{T+2}, v{T+1}")
    a(f"v_lshlrev_b32 v{T+2}, 4, v{T+2}")
    a(f"s_mov_b32 s{S_T0}, {c.lda}")
    a(f"v_mad_u32_u24 v{c.V_DA}, v{T}, s{S_T0}, v{T+2}")
    if c.BN == 64:
        a(f"v_lshrrev_b32 v{T}, 3, v1")
        a(f"v_and_b32 v{T+2}, 7, v1")
        a(f"v_lshrrev_b32 v{T+1}, 4, v1")
        a(f"v_and_b32 v{T+1}, 1, v{T+1}")
        a(f"v_lshlrev_b32 v{T+1}, 2, v{T+1}")
    elif c.BN == 128:
        a(f"v_lshrrev_b32 v{T}, 4, v1")
        a(f"v_and_b32 v{T+2}, 15, v1")
        a(f"v_lshlrev_b32 v{T+1}, 2, v{T}")
    else:
        raise NotImplementedError
    a(f"v_xor_b32 v{T+2}, v{T+2}, v{T+1}")
    a(f"v_lshlrev_b32 v{T+2}, 4, v{T+2}")
    a(f"s_mov_b32 s{S_T0}, {c.ldb}")
    a(f"v_mad_u32_u24 v{c.V_DB}, v{T}, s{S_T0}, v{T+2}")
    a(f"v_and_b32 v{T}, 31, v1")
    a(f"v_lshrrev_b32 v{T+1}, 5, v1")
    a(f"v_bfe_u32 v{T+2}, v1, 1, 3")
    a(f"s_mul_i32 s{S_T0}, s{S_WM}, {c.TM * 32 * 128}")
    a(f"v_lshlrev_b32 v{T+3}, 7, v{T}")
    a(f"v_add_u32 v{T+3}, s{S_T0}, v{T+3}")
    for ks in range(4):
        a(f"v_add_u32 v{T+4}, {2*ks}, v{T+1}")
        a(f"v_xor_b32 v{T+4}, v{T+4}, v{T+2}")
        a(f"v_lshlrev_b32 v{T+4}, 4, v{T+4}")
        a(f"v_add_u32 v{c.V_AA+ks}, v{T+3}, v{T+4}")
    rowb = c.BN * 2
    a(f"v_bfe_u32 v{T}, v1, 2, 2")
    a(f"v_and_b32 v{T+2}, 3, v1")
    a(f"v_bfe_u32 v{T+3}, v1, 4, 1")
    a(f"v_lshl_add_u32 v{T+4}, v{T+1}, 3, v{T}")
    a(f"v_mul_u32_u24 v{T+4}, {rowb}, v{T+4}")
    a(f"v_lshrrev_b32 v{T+5}, 1, v{T+2}")
    a(f"v_lshl_add_u32 v{T+5}, v{T+3}, 1, v{T+5}")
    a(f"v_lshlrev_b32 v{T+5}, 4, v{T+5}")
    a(f"v_and_b32 v{T+6}, 1, v{T+2}")
    a(f"v_lshl_add_u32 v{T+5}, v{T+6}, 3, v{T+5}")
    a(f"v_add_u32 v{T+4}, v{T+4}, v{T+5}")
    a(f"v_add_u32 v{T+4}, {c.ASZ}, v{T+4}")
    if c.BN == 64:
        a(f"v_lshrrev_b32 v{T+5}, 1, v{T}")
    else:
        a(f"v_mov_b32 v{T+5}, v{T}")
    for tn in range(c.TN):
        a(f"s_mul_i32 s{S_T0}, s{S_WN}, {c.TN}")
        a(f"s_add_u32 s{S_T0}, s{S_T0}, {tn}")
        a(f"v_xor_b32 v{T+6}, s{S_T0}, v{T+5}")
        a(f"v_lshlrev_b32 v{T+6}, 6, v{T+6}")
        a(f"v_add_u32 v{c.V_BA+tn}, v{T+4}, v{T+6}")
    a(f"s_lshl_b32 s{S_MW}, s{S_WAVE}, 10")


def gemm_dma(a, c, t):
    st = t % c.S
    if 'nodma' in DBG: return
    for i in range(c.nA):
        a(f"s_add_u32 m0, s{S_MW}, {st * c.STG + i * c.NW * 1024}")
        a(f"s_add_u32 s{S_T0}, s{S_AW}, {i * c.NW * 8 * c.lda + t * 128}")
        a(f"buffer_load_dwordx4 v{c.V_DA}, s[{S_SRDA}:{S_SRDA+3}], s{S_T0} offen lds")
    for i in range(c.nB):
        a(f"s_add_u32 m0, s{S_MW}, {st * c.STG + c.ASZ + i * c.NW * 1024}")
        a(f"s_add_u32 s{S_T0}, s{S_BW}, {(t * 64 + i * c.NW * c.RB) * c.ldb}")
        a(f"buffer_load_dwordx4 v{c.V_DB}, s[{S_SRDB}:{S_SRDB+3}], s{S_T0} offen lds")


def gemm_reads(a, c, t, ks, fset):
    st = t % c.S
    if 'noreads' in DBG: return
    fb = c.V_FR + fset * c.FRSZ
    rowb = c.BN * 2
    for tm in range(c.TM):
        a(f"ds_read_b128 {vr(fb + tm*4, 4)}, v{c.V_AA+ks} offset:{st*c.STG + tm*4096}")
    for tn in range(c.TN):
        for w in range(2):
            a(f"ds_read_b64_tr_b16 {vr(fb + c.TM*4 + tn*4 + w*2, 2)}, v{c.V_BA+tn} offset:{st*c.STG + (ks*16 + 4*w)*rowb}")


def gemm_mfmas(a, c, fset, swap, first):
    fb = c.V_FR + fset * c.FRSZ
    if 'nomfma' in DBG and not first: return
    for tm in range(c.TM):
        for tn in range(c.TN):
            A = vr(fb + tm * 4, 4)
            B = vr(fb + c.TM * 4 + tn * 4, 4)
            acc = vr(c.acc(tm, tn), 16)
            cin = "0" if first else acc
            if swap:
                a(f"v_mfma_f32_32x32x16_bf16 {acc}, {A}, {B}, {cin}")
            else:
                a(f"v_mfma_f32_32x32x16_bf16 {acc}, {B}, {A}, {cin}")


def gemm_main(a, c, swap, pre=True):
    per = c.nA + c.nB
    nr = c.TM + 2 * c.TN
    if pre:
        for t in range(min(c.S - 1, c.KSTEPS)):
            gemm_dma(a, c, t)
    for t in range(c.KSTEPS):
        inflight_after = min(c.S - 2, c.KSTEPS - 1 - t)
        a(f"s_waitcnt vmcnt({inflight_after * per}) lgkmcnt(0)")
        a("s_barrier")
        if 'fstamp' in DBG and c.KSTEPS == 10 and c.NW == 8 and t in (0, 1, 2, 5):
            i = {0: 4, 1: 5, 2: 6, 5: 7}[t]
            a(f"s_memrealtime s[{64+2*i}:{64+2*i+1}]")
        gemm_reads(a, c, t, 0, 0)
        if t + c.S - 1 < c.KSTEPS:
            gemm_dma(a, c, t + c.S - 1)
        if t > 0:
            gemm_mfmas(a, c, 1, swap, False)
        gemm_reads(a, c, t, 1, 1)
        a(f"s_waitcnt lgkmcnt({nr})")
        gemm_mfmas(a, c, 0, swap, t == 0)
        gemm_reads(a, c, t, 2, 0)
        a(f"s_waitcnt lgkmcnt({nr})")
        gemm_mfmas(a, c, 1, swap, False)
        gemm_reads(a, c, t, 3, 1)
        a(f"s_waitcnt lgkmcnt({nr})")
        gemm_mfmas(a, c, 0, swap, False)
    a(f"s_waitcnt lgkmcnt(0)")
    gemm_mfmas(a, c, 1, swap, False)
    a("s_nop 15")
    a("s_nop 3")
    if 'noepi' in DBG: a("s_endpgm")


def gemm_dma_list(c, t):
    st = t % c.S
    out = []
    if 'nodma' in DBG: return out
    for i in range(c.nA):
        out.append([f"s_add_u32 m0, s{S_MW}, {st * c.STG + i * c.NW * 1024}",
                    f"s_add_u32 s{S_T0}, s{S_AW}, {i * c.NW * 8 * c.lda + t * 128}",
                    f"buffer_load_dwordx4 v{c.V_DA}, s[{S_SRDA}:{S_SRDA+3}], s{S_T0} offen lds"])
    for i in range(c.nB):
        out.append([f"s_add_u32 m0, s{S_MW}, {st * c.STG + c.ASZ + i * c.NW * 1024}",
                    f"s_add_u32 s{S_T0}, s{S_BW}, {(t * 64 + i * c.NW * c.RB) * c.ldb}",
                    f"buffer_load_dwordx4 v{c.V_DB}, s[{S_SRDB}:{S_SRDB+3}], s{S_T0} offen lds"])
    return out


def gemm_rd(c, t, ks, kind, idx):
    st = t % c.S
    fb = c.V_FR + (ks % 2) * c.FRSZ
    rowb = c.BN * 2
    if kind == 'A':
        return [f"ds_read_b128 {vr(fb + idx*4, 4)}, v{c.V_AA+ks} offset:{st*c.STG + idx*4096}"]
    return [f"ds_read_b64_tr_b16 {vr(fb + c.TM*4 + idx*4 + w*2, 2)}, v{c.V_BA+idx} offset:{st*c.STG + (ks*16 + 4*w)*rowb}" for w in range(2)]


def gemm_main2(a, c, swap, mid_hook=None, post_hook=None):
    nr = c.TM + 2 * c.TN
    K = c.KSTEPS
    issued = []

    def emit(g, t):
        for l in g: a(l)
        issued.append(t)

    def need(t):
        if 'nodma' in DBG: return 0
        last = max(i for i, x in enumerate(issued) if x == t)
        return len(issued) - 1 - last
    if mid_hook:
        for t in range(c.S):
            for g in gemm_dma_list(c, t)[c.nA:]: emit(g, t)
        mid_hook()
        for t in range(c.S):
            for g in gemm_dma_list(c, t)[:c.nA]: emit(g, t)
    else:
        for t in range(c.S):
            for g in gemm_dma_list(c, t): emit(g, t)
    if post_hook:
        post_hook(len(issued))
    a(f"s_waitcnt vmcnt({need(0)})")
    a("s_barrier")
    for ks in range(2):
        for i in range(c.TM):
            for l in gemm_rd(c, 0, ks, 'A', i): a(l)
        for i in range(c.TN):
            for l in gemm_rd(c, 0, ks, 'B', i): a(l)
    nm = c.TM * c.TN
    for t in range(K):
        dma = gemm_dma_list(c, t + c.S) if t + c.S < K else []
        slots = 2 * nm - (1 if nm > 1 else 0)
        perslot = (len(dma) + slots - 1) // slots if dma else 0
        for ks in range(4):
            nt, nks = (t, ks + 2) if ks < 2 else (t + 1, ks - 2)
            has = nt < K
            last = (t == K - 1 and ks == 3)
            a(f"s_waitcnt lgkmcnt({0 if last else nr})")
            pend = []
            fb = c.V_FR + (ks % 2) * c.FRSZ
            j = 0
            for tm in range(c.TM):
                for tn in range(c.TN):
                    A = vr(fb + tm * 4, 4)
                    B = vr(fb + c.TM * 4 + tn * 4, 4)
                    acc = vr(c.acc(tm, tn), 16)
                    cin = "0" if (t == 0 and ks == 0) else acc
                    a(f"v_mfma_f32_32x32x16_bf16 {acc}, {A}, {B}, {cin}" if swap else f"v_mfma_f32_32x32x16_bf16 {acc}, {B}, {A}, {cin}")
                    if has:
                        if tm == c.TM - 1:
                            pend += gemm_rd(c, nt, nks, 'B', tn)
                        if tn == c.TN - 1:
                            pend += gemm_rd(c, nt, nks, 'A', tm)
                    bar_at = 1 if nm > 1 else 0
                    if ks == 2 and has and j < bar_at:
                        j += 1
                        continue
                    if ks == 2 and has and j == bar_at:
                        a(f"s_waitcnt vmcnt({need(t + 1)}) lgkmcnt(0)")
                        a("s_barrier")
                    for l in pend: a(l)
                    pend = []
                    if ks >= 2:
                        for _ in range(perslot):
                            if dma:
                                emit(dma.pop(0), t + c.S)
                    j += 1
        assert not dma, (t, len(dma))
    a("s_nop 15")
    a("s_nop 3")
    if 'noepi' in DBG: a("s_endpgm")


def wave_ids(a, c):
    a("v_lshrrev_b32 v1, 6, v0")
    a("s_nop 0")
    a(f"v_readfirstlane_b32 s{S_WAVE}, v1")
    a("s_nop 3")
    lg = int(math.log2(c.WN))
    a(f"s_lshr_b32 s{S_WM}, s{S_WAVE}, {lg}")
    a(f"s_and_b32 s{S_WN}, s{S_WAVE}, {c.WN - 1}")


HEADER = """; generated by dev/gen.py
{launch}
.amdgcn_target "amdgcn-amd-amdhsa--gfx950"
.text
"""


def kd(k):
    v = (k["vgpr"] + 3) // 4 * 4
    return f""".p2align 6
.amdhsa_kernel {k['name']}
  .amdhsa_next_free_vgpr {v}
  .amdhsa_next_free_sgpr {100 if 'tl' in DBG else k['sgpr']}
  .amdhsa_accum_offset {v}
  .amdhsa_group_segment_fixed_size 0
  .amdhsa_kernarg_size 80
  .amdhsa_user_sgpr_count 2
  .amdhsa_user_sgpr_kernarg_segment_ptr 1
  .amdhsa_system_sgpr_workgroup_id_x 1
.end_amdhsa_kernel
"""


def main(out):
    import gen_k2 as gen_attn, gen_k1
    kernels = []
    body = ""
    for fn in [gen_k1.gen_k1] + gen_attn.KERNELS:
        a = Asm()
        k = fn(a)
        kernels.append(k)
        body += f".globl {k['name']}\n.p2align 8\n.type {k['name']},@function\n" + a.text()
    launch = "\n".join(f"; @launch kernel={k['name']} grid=({k['grid']},1,1) block=({k['block']},1,1) lds={k['lds']}" for k in kernels)
    src = HEADER.format(launch=launch) + body + '.section .rodata,"a"\n' + "".join(kd(k) for k in kernels)
    open(out, "w").write(src)


if __name__ == "__main__":
    sys.path.insert(0, "dev")
    main(sys.argv[1] if len(sys.argv) > 1 else "gated_mix__mha_block__dense_activation_relu__prompt.s")
```

```python
import math
from gen import *

K1_WGS = 256
K1_S = 3
K1_P = 3 if 'p3' in DBG else 2
ASZ = 128 * 128
STG = 49152
QOFF = ASZ
V_DA = 2
V_DB = 3
V_DP = 8
V_AA = 9
V_BQ = 21
V_BP = 24
V_T = 30
V_FR = 44
V_ACC = 116
KST = 10
S_PW = 62
S_ROLE = 63
S_SRDP = 64
S_ST = 68


def stamp(a, i):
    if 'kstamp' in DBG:
        a(f"{'s_memtime' if 'cyc' in DBG else 's_memrealtime'} s[{S_ST+2*i}:{S_ST+2*i+1}]")


def sentinel(a):
    T = V_T
    make_srd(a, S_SRDX, P_WS, O_OFF, O_SIZE)
    a(f"s_mul_i32 s{S_T0}, s2, 10240")
    a(f"s_add_u32 s{S_T0}, s{S_T0}, s{S_MW}")
    a(f"v_lshlrev_b32 v{T+4}, 4, v1")
    a(f"v_add_u32 v{T+4}, s{S_T0}, v{T+4}")
    for i in range(4):
        a(f"v_mov_b32 v{T+6+i}, -1")
    for i in range(3):
        a(f"s_movk_i32 s{S_T0}, {i*4096}")
        a(f"buffer_store_dwordx4 v[{T+6}:{T+9}], v{T+4}, s[{S_SRDX}:{S_SRDX+3}], s{S_T0} offen")


HELP = 'nohelp' not in DBG


def stamp_out(a, n):
    if not HELP: sentinel(a)
    if 'kstamp' not in DBG: return
    T = V_T
    a("s_waitcnt vmcnt(0) lgkmcnt(0)")
    stamp(a, n - 1)
    a("s_waitcnt lgkmcnt(0)")
    make_srd(a, S_SRDY, P_WS, 0x2000000, 0x100000)
    a(f"s_lshl_b32 s{S_T5}, s2, 2")
    a(f"s_add_u32 s{S_T5}, s{S_T5}, s{S_WAVE}")
    a(f"s_lshl_b32 s{S_T5}, s{S_T5}, 6")
    a(f"v_mov_b32 v{T+2}, s{S_T5}")
    a("s_mov_b64 exec, 1")
    for i in range(n):
        a(f"v_mov_b32 v{T+3}, s{S_ST+2*i}")
        a(f"buffer_store_dword v{T+3}, v{T+2}, s[{S_SRDY}:{S_SRDY+3}], 0 offen offset:{4*i}")
    a("s_mov_b64 exec, -1")


class Kind:
    def __init__(self, hasq, npan, swapq):
        self.hasq, self.npan, self.swapq = hasq, npan, swapq
        self.poff = ASZ + (20480 if hasq else 0)
        self.units = [('q', tn) for tn in range(5)] if hasq else []
        self.units += [('p', p, j) for p in range(npan) for j in range(2)]
        self.nu = len(self.units)
        self.per = 4 + (5 if hasq else 0) + 2 * npan
        self.nr = 1 + 2 * self.nu


def dma_list(k, t):
    st = t % K1_S
    out = []
    if 'nodma' in DBG: return out
    for i in range(4):
        out.append([f"s_add_u32 m0, s{S_MW}, {st * STG + i * 4096}",
                    f"s_add_u32 s{S_T0}, s{S_AW}, {i * 32 * 1280 + t * 128}",
                    f"buffer_load_dwordx4 v{V_DA}, s[{S_SRDA}:{S_SRDA+3}], s{S_T0} offen lds"])
    if k.hasq:
        for i in range(5):
            out.append([f"s_add_u32 m0, s{S_MW}, {st * STG + QOFF + i * 4096}",
                        f"s_add_u32 s{S_T0}, s{S_BW}, {t * 64 * 3840}",
                        f"buffer_load_dwordx4 v{V_DB+i}, s[{S_SRDB}:{S_SRDB+3}], s{S_T0} offen lds"])
    for p in range(k.npan):
        for i in range(2):
            out.append([f"s_add_u32 m0, s{S_MW}, {st * STG + k.poff + p * 8192 + i * 4096}",
                        f"s_add_u32 s{S_T0}, s{S_PW}, {(t * 64 + i * 32) * 3456 + p * 128}",
                        f"buffer_load_dwordx4 v{V_DP}, s[{S_SRDP}:{S_SRDP+3}], s{S_T0} offen lds"])
    return out


def rd(k, t, ks, u):
    st = t % K1_S
    if 'noreads' in DBG: return []
    fb = V_FR + (ks % 2) * 36
    if u == 'A':
        return [f"ds_read_b128 {vr(fb, 4)}, v{V_AA + st*4 + ks}"]
    un = k.units[u]
    if un[0] == 'q':
        return [f"ds_read_b64_tr_b16 {vr(fb + 4 + u*4 + w*2, 2)}, v{V_BQ+st} offset:{(ks*16 + 4*w)*320 + un[1]*64}" for w in range(2)]
    return [f"ds_read_b64_tr_b16 {vr(fb + 4 + u*4 + w*2, 2)}, v{V_BP+st*2+un[2]} offset:{k.poff + un[1]*8192 + (ks*16 + 4*w)*128}" for w in range(2)]


def mfma(k, ks, u, first):
    fb = V_FR + (ks % 2) * 36
    A = vr(fb, 4)
    B = vr(fb + 4 + u * 4, 4)
    acc = vr(V_ACC + u * 16, 16)
    cin = "0" if first else acc
    if k.swapq and k.units[u][0] == 'q':
        return f"v_mfma_f32_32x32x16_bf16 {acc}, {A}, {B}, {cin}"
    return f"v_mfma_f32_32x32x16_bf16 {acc}, {B}, {A}, {cin}"


S_PF = 91
PF0 = 3 if 'pf3' in DBG else 2


def prefetch(a, k):
    if 'pf' not in DBG: return []
    T = V_T
    P = T + 11
    out = []
    a(f"v_mov_b32 v{T+5}, 0x7f000000")
    a(f"v_lshrrev_b32 v{T+2}, 3, v1")
    a(f"v_mul_u32_u24 v{T+2}, 1280, v{T+2}")
    a(f"v_and_b32 v{T+3}, 7, v1")
    a(f"v_lshl_add_u32 v{T+2}, v{T+3}, 7, v{T+2}")
    a(f"v_cmp_le_u32 vcc, {PF0 - 2}, v{T+3}")
    a(f"s_and_b32 s{S_T1}, s{S_CT}, 3")
    a(f"s_mul_i32 s{S_T0}, s{S_T1}, {32*1280}")
    a(f"v_cndmask_b32 v{T+2}, v{T+5}, v{T+2}, vcc")
    a(f"s_add_u32 s{S_PF}, s{S_T0}, s{S_AW}")
    out.append([f"buffer_load_dword v{P}, v{T+2}, s[{S_SRDA}:{S_SRDA+3}], s{S_PF} offen offset:256"])
    nr = (640 - PF0 * 64 + 127) // 128
    a(f"s_and_b32 s{S_T0}, s{S_RT}, 7")
    a(f"s_lshl_b32 s{S_T0}, s{S_T0}, 4")
    a(f"s_lshl_b32 s{S_T1}, s{S_T1}, 2")
    a(f"s_add_u32 s{S_T0}, s{S_T0}, s{S_T1}")
    a(f"s_add_u32 s{S_T0}, s{S_T0}, s{S_WAVE}")
    a(f"s_mul_i32 s{S_T0}, s{S_T0}, {nr}")
    a(f"s_add_u32 s{S_T0}, s{S_T0}, {640 - 128*nr}")
    a(f"s_lshr_b32 s{S_T1}, s{S_CT}, 2")
    a(f"v_lshrrev_b32 v{T+7}, 4, v1")
    a(f"v_and_b32 v{T+3}, 15, v1")
    a(f"v_cmp_gt_u32 s[{S_EX0}:{S_EX0+1}], {nr}, v{T+7}")
    if k.hasq:
        a(f"v_mul_u32_u24 v{T+4}, 3840, v{T+7}")
        a(f"v_lshl_add_u32 v{T+4}, v{T+3}, 7, v{T+4}")
        a(f"v_cmp_gt_u32 vcc, 10, v{T+3}")
        a(f"s_mul_i32 s{S_T2}, s{S_T0}, 3840")
        a(f"s_and_b64 vcc, vcc, s[{S_EX0}:{S_EX0+1}]")
        a(f"s_mul_i32 s{S_T3}, s{S_T1}, 1280")
        a(f"v_cndmask_b32 v{T+4}, v{T+5}, v{T+4}, vcc")
        a(f"s_add_u32 s{S_PF+1}, s{S_T2}, s{S_T3}")
        out.append([f"buffer_load_dword v{P+1}, v{T+4}, s[{S_SRDB}:{S_SRDB+3}], s{S_PF+1} offen"])
        a(f"v_subrev_u32 v{T+3}, 10, v{T+3}")
        a(f"v_cmp_gt_u32 vcc, 4, v{T+3}")
        a(f"s_lshl_b32 s{S_T3}, s{S_T1}, 9")
    else:
        a(f"v_cmp_gt_u32 vcc, 15, v{T+3}")
        a(f"s_movk_i32 s{S_T3}, 1536")
    a(f"v_mul_u32_u24 v{T+6}, 3456, v{T+7}")
    a(f"v_lshl_add_u32 v{T+6}, v{T+3}, 7, v{T+6}")
    a(f"s_and_b64 vcc, vcc, s[{S_EX0}:{S_EX0+1}]")
    a(f"s_mul_i32 s{S_T2}, s{S_T0}, 3456")
    a(f"v_cndmask_b32 v{T+6}, v{T+5}, v{T+6}, vcc")
    a(f"s_add_u32 s{S_PF+2}, s{S_T2}, s{S_T3}")
    out.append([f"buffer_load_dword v{P+2}, v{T+6}, s[{S_SRDP}:{S_SRDP+3}], s{S_PF+2} offen"])
    return out


def k1_main(a, k):
    if 'pf' in DBG:
        make_srd(a, S_SRDA, P_X, 0, 2048 * 1280)
        make_srd(a, S_SRDB, P_WQKV, 0, 640 * 3840)
        make_srd(a, S_SRDP, P_W1, 0, 640 * 3456)
        for g in prefetch(a, k):
            for l in g: a(l)
    a("s_barrier")
    stamp(a, 1)
    for ks in range(2):
        for w in ['A'] + list(range(k.nu)):
            for l in rd(k, 0, ks, w): a(l)
    for t in range(KST):
        for ks in range(4):
            nt, nks = (t, ks + 2) if ks < 2 else (t + 1, ks - 2)
            has = nt < KST
            last = (t == KST - 1 and ks == 3)
            a(f"s_waitcnt lgkmcnt({0 if last else min(k.nr, 15)})")
            pend = []
            for u in range(k.nu):
                if 'nomfma' not in DBG or t == 0: a(mfma(k, ks, u, t == 0 and ks == 0))
                if has:
                    pend += rd(k, nt, nks, u)
                if ks == 2 and has and u == 0:
                    continue
                if ks == 2 and has and u == 1:
                    a(f"s_waitcnt lgkmcnt(0)")
                    a("s_barrier")
                    if t in (0, 4): stamp(a, {0: 2, 4: 3}[t])
                for l in pend: a(l)
                pend = []
            if has:
                for l in rd(k, nt, nks, 'A'): a(l)
    a("s_nop 15")
    a("s_nop 3")
    stamp(a, 4)
    if 'noepi' in DBG: a("s_endpgm")


def k1_loader(a, k, tag):
    S_SD0 = S_T0
    T = V_T
    GW = 44
    GX = 64
    TL = 84
    TR = 100
    SR = S_TSRD
    vm = VM()

    def emit(g, t):
        for l in g: a(l)
        vm.add(t)
    for t in range(K1_P):
        for g in dma_list(k, t): emit(g, t)

    def side_loads():
        a(f"s_lshl_b32 s{S_T0}, s2, 2")
        a(f"s_add_u32 s{S_T0}, s{S_T0}, s{S_WAVE}")
        a(f"s_cmp_lt_u32 s{S_T0}, 740")
        a(f"s_cselect_b32 s{S_TF}, 0, 0x7f000000")
        a(f"s_min_u32 s{S_T0}, s{S_T0}, 739")
        a(f"s_mul_i32 s{S_T1}, s{S_T0}, 205")
        a(f"s_lshr_b32 s{S_T1}, s{S_T1}, 10")
        a(f"s_mul_i32 s{S_T2}, s{S_T1}, 5")
        a(f"s_sub_u32 s{S_T2}, s{S_T0}, s{S_T2}")
        a(f"s_mul_i32 s{S_TP}, s{S_T1}, 20")
        a(f"s_lshl_b32 s{S_T0}, s{S_T2}, 2")
        a(f"s_add_u32 s{S_TP}, s{S_TP}, s{S_T0}")
        a(f"s_lshl_b32 s{S_TP}, s{S_TP}, 10")
        a(f"s_sub_u32 s{S_T0}, s{S_T1}, 108")
        a(f"s_mul_i32 s{S_T3}, s{S_T0}, 103")
        a(f"s_lshr_b32 s{S_T3}, s{S_T3}, 10")
        a(f"s_mul_i32 s{S_T4}, s{S_T3}, 10")
        a(f"s_sub_u32 s{S_T0}, s{S_T0}, s{S_T4}")
        a(f"s_mul_i32 s{S_T3}, s{S_T3}, 160")
        a(f"s_mul_i32 s{S_T4}, s{S_T0}, 20")
        a(f"s_mul_i32 s{S_T5}, s{S_T0}, 80")
        a(f"s_sub_u32 s{S_T5}, s{S_T5}, {8*80 - 16}")
        a(f"s_cmp_lt_u32 s{S_T0}, 8")
        a(f"s_cselect_b32 s{S_T4}, s{S_T4}, s{S_T5}")
        a(f"s_movk_i32 s{S_TG}, {20*1280}")
        a(f"s_cselect_b32 s{S_TG}, {4*1280}, s{S_TG}")
        a(f"s_add_u32 s{S_T0}, s{S_T3}, s{S_T4}")
        a(f"s_lshl_b32 s{S_T3}, s{S_T1}, 4")
        a(f"s_cmp_lt_u32 s{S_T1}, 108")
        a(f"s_cselect_b32 s{S_T1}, s{S_T3}, s{S_T0}")
        a(f"s_cselect_b32 s{S_TG}, {4*1280}, s{S_TG}")
        a(f"s_cselect_b32 s{SR}, s{P_W2}, s{P_WO}")
        a(f"s_cselect_b32 s{SR+1}, s{P_W2+1}, s{P_WO+1}")
        a(f"s_mov_b32 s{S_T0}, {640*1280}")
        a(f"s_cselect_b32 s{SR+2}, {1728*1280}, s{S_T0}")
        a(f"s_mov_b32 s{SR+3}, 0x00020000")
        a(f"s_mul_i32 s{S_T1}, s{S_T1}, 1280")
        a(f"s_lshl_b32 s{S_T2}, s{S_T2}, 8")
        a(f"s_add_u32 s{S_T1}, s{S_T1}, s{S_T2}")
        a(f"v_lshlrev_b32 v{T+2}, 2, v1")
        a(f"v_add_u32 v{T+2}, s{S_TF}, v{T+2}")
        for kk in range(16):
            if kk and kk % 4 == 0:
                a(f"s_add_u32 s{S_T1}, s{S_T1}, s{S_TG}")
            a(f"buffer_load_dword v{TL+kk}, v{T+2}, s[{SR}:{SR+3}], s{S_T1} offen offset:{(kk%4)*1280}")
            vm.add('tl')
        make_srd(a, S_SRDY, P_GW, 0, 1280)
        a(f"s_cmp_lt_u32 s{S_WAVE}, 2")
        a(f"s_cselect_b32 s{S_GR}, 0, 0x7f000000")
        a(f"v_and_b32 v{T}, 15, v1")
        a(f"v_lshrrev_b32 v{T+1}, 4, v1")
        a(f"v_lshlrev_b32 v{T}, 4, v{T}")
        a(f"v_add_u32 v{T}, s{S_GR}, v{T}")
        for i in range(5):
            a(f"buffer_load_dwordx4 v[{GW+4*i}:{GW+4*i+3}], v{T}, s[{S_SRDY}:{S_SRDY+3}], 0 offen offset:{i*256}")
            vm.add('tl')
        a(f"v_mul_u32_u24 v{T+1}, 1280, v{T+1}")
        a(f"v_add_u32 v{T}, v{T}, v{T+1}")
        a(f"s_lshl_b32 s{S_T0}, s2, 1")
        a(f"s_and_b32 s{S_T1}, s{S_WAVE}, 1")
        a(f"s_add_u32 s{S_T0}, s{S_T0}, s{S_T1}")
        a(f"s_lshl_b32 s{S_T5}, s{S_T0}, 4")
        a(f"s_mul_i32 s{S_T3}, s{S_T0}, {4*1280}")
        for i in range(5):
            a(f"buffer_load_dwordx4 v[{GX+4*i}:{GX+4*i+3}], v{T}, s[{S_SRDA}:{S_SRDA+3}], s{S_T3} offen offset:{i*256}")
            vm.add('tl')

    def side_sentinel():
        make_srd(a, S_SRDX, P_WS, O_OFF, O_SIZE)
        a(f"s_mul_i32 s{S_T0}, s2, 10240")
        a(f"s_add_u32 s{S_T0}, s{S_T0}, s{S_MW}")
        a(f"v_lshlrev_b32 v{T+4}, 4, v1")
        a(f"v_add_u32 v{T+4}, s{S_T0}, v{T+4}")
        a(f"v_add_u32 v{T+5}, s{S_GR}, v{T+4}")
        for i in range(4):
            a(f"v_mov_b32 v{T+6+i}, -1")
        for i in range(3):
            a(f"s_movk_i32 s{S_T0}, {i*4096}")
            a(f"buffer_store_dwordx4 v[{T+6}:{T+9}], v{T+4+(i==2)}, s[{S_SRDX}:{S_SRDX+3}], s{S_T0} offen{' sc1' if 'ssc1' in DBG else ''}")
            vm.add('st')

    def side_work():
        make_srd(a, S_SRDO, P_WS, WF_OFF, WF_SIZE)
        make_srd(a, S_SRDX, P_WS, G_OFF, G_SIZE)
        a(f"v_lshrrev_b32 v{T+10}, 4, v1")
        a(f"v_lshlrev_b32 v{T+8}, 2, v{T+10}")
        a(f"v_add_u32 v{T+8}, s{S_GR}, v{T+8}")
        a(f"v_lshlrev_b32 v{T+10}, 10, v{T+10}")
        a(f"v_and_b32 v{T+11}, 15, v1")
        a(f"v_lshl_add_u32 v{T+10}, v{T+11}, 5, v{T+10}")
        a(f"v_add_u32 v{T+10}, s{S_TF}, v{T+10}")
        a(f"s_mov_b32 s{S_T0}, 0x05040100")
        a(f"s_mov_b32 s{S_T1}, 0x07060302")
        a(f"v_cmp_eq_u32 s[{S_EX0}:{S_EX0+1}], 0, v{T+11}")
        a(f"s_waitcnt vmcnt({vm.need('tl')})")
        for e in range(2):
            for h in range(2):
                dd = TR + (e * 2 + h) * 4
                for i, ka in enumerate((4 * h, 4 * h + 2, 8 + 4 * h, 8 + 4 * h + 2)):
                    a(f"v_perm_b32 v{dd+i}, v{TL+ka+1}, v{TL+ka}, s{S_T1 if e else S_T0}")
                a(f"buffer_store_dwordx4 {vr(dd, 4)}, v{T+10}, s[{S_SRDO}:{S_SRDO+3}], s{S_TP} offen offset:{e*16 + h*512}{' sc1' if 'wsc1' in DBG else ''}")
                vm.add('st')

    def side_gate():
        a(f"s_waitcnt vmcnt({vm.need('gl')})")
        g = T + 2
        a(f"v_mov_b32 v{g}, 0")
        a(f"v_mov_b32 v{g+1}, 0")
        for i in range(20):
            a(f"v_dot2_f32_bf16 v{g+i%2}, v{GW+i}, v{GX+i}, v{g+i%2}")
        a("s_nop 3")
        a(f"v_add_f32 v{g}, v{g}, v{g+1}")
        for sh in (8, 4, 2, 1):
            a("s_nop 1")
            a(f"v_add_f32_dpp v{g}, v{g}, v{g} row_ror:{sh} row_mask:0xf bank_mask:0xf")
        a("s_nop 1")
        a(f"v_cvt_pk_bf16_f32 v{g}, v{g}, v{g}")
        a(f"v_lshlrev_b32 v{g}, 16, v{g}")
        a(f"v_mul_f32 v{g}, {f32bits(-math.log2(math.e))}, v{g}")
        a(f"v_exp_f32 v{g}, v{g}")
        a("s_nop 0")
        a(f"v_add_f32 v{g}, 1.0, v{g}")
        a(f"v_rcp_f32 v{g}, v{g}")
        a("s_nop 0")
        a(f"v_cvt_pk_bf16_f32 v{g}, v{g}, v{g}")
        a(f"v_lshlrev_b32 v{g}, 16, v{g}")
        a(f"s_mov_b64 exec, s[{S_EX0}:{S_EX0+1}]")
        a(f"buffer_store_dword v{g}, v{T+8}, s[{S_SRDX}:{S_SRDX+3}], s{S_T5} offen")
        a("s_mov_b64 exec, -1")
        vm.add('st')

    real_a, real_vm = a, vm
    cap = []

    class Cap:
        def __call__(self, l): cap.append(l)
    a = Cap()
    vm = VM()
    side_loads()
    a, vm = real_a, real_vm
    groups, cur = [], []
    for l in cap:
        cur.append(l)
        if l.startswith("buffer_load"):
            groups.append(cur); cur = []
    assert not cur and len(groups) == 26
    plan, SW, SG = {1: 8, 2: 8, 4: 5, 5: 5}, 3, 7
    if 'sq1' in DBG: plan, SW, SG = {1: 16, 4: 5, 5: 5}, 2, 7
    if 'sq3' in DBG: plan, SW, SG = {1: 5, 2: 5, 3: 6, 4: 5, 5: 5}, 5, 7
    cnt = [0]

    def side(b):
        for _ in range(plan.get(b, 0)):
            for l in groups.pop(0): a(l)
            vm.add('tl' if cnt[0] < 16 else 'gl')
            cnt[0] += 1
    nd = 'nodma' in DBG
    a(f"s_cmp_lt_u32 s{S_WAVE}, 2")
    a(f"s_cselect_b32 s{S_GR}, 0, 0x7f000000")
    a(f"s_waitcnt vmcnt({0 if nd else vm.need(0)})")
    a("s_barrier")
    side_sentinel()
    side(1)
    for t in range(K1_P, K1_S):
        for g in dma_list(k, t): emit(g, t)
    for t in range(KST - 1):
        a(f"s_waitcnt vmcnt({0 if nd else vm.need(t + 1)})")
        a("s_barrier")
        side(t + 2)
        if t + 2 == SW and 'swearly' in DBG:
            side_work()
        if t + K1_S < KST:
            for g in dma_list(k, t + K1_S): emit(g, t + K1_S)
        if t + 2 == SW and 'swearly' not in DBG:
            side_work()
        if t + 2 == SG:
            side_gate()
    assert not groups
    a("s_endpgm")


def h_epilogue(a, k, lds_base):
    T = V_T
    u0 = 5 if k.hasq else 0
    make_srd(a, S_SRDX, P_WS, H_OFF, H_SIZE)
    a(f"v_lshlrev_b32 v{T}, 4, v1")
    a(f"s_lshl_b32 s{S_T0}, s{S_RT}, 2")
    a(f"s_add_u32 s{S_T0}, s{S_T0}, s{S_WAVE}")
    a(f"s_mul_i32 s{S_T0}, s{S_T0}, {108*1024}")
    a(f"s_lshl_b32 s{S_T1}, s{S_T4}, 6")
    a(f"s_add_u32 s{S_T0}, s{S_T0}, s{S_T1}")
    kk = 0
    for p in range(k.npan):
        if p == 3:
            a(f"s_cmp_ge_u32 s{S_T4}, {DFF - 192}")
            a("s_cbranch_scc1 k1_hdone")
        if p:
            a(f"s_add_u32 s{S_T0}, s{S_T0}, 4096")
        for j in range(2):
            for sg in range(2):
                r = V_ACC + (u0 + p * 2 + j) * 16 + 8 * sg
                dd = V_FR + 4 * (kk % 8)
                kk += 1
                for i in range(4):
                    a(f"v_cvt_pk_bf16_f32 v{dd+i}, v{r+2*i}, v{r+2*i+1}")
                for i in range(4):
                    a(f"v_pk_max_i16 v{dd+i}, v{dd+i}, 0")
                a(f"buffer_store_dwordx4 {vr(dd, 4)}, v{T}, s[{S_SRDX}:{S_SRDX+3}], s{S_T0} offen offset:{(j*2+sg)*1024}{SC1}")
    if k.npan == 4:
        a.label("k1_hdone")


S_TSRD = 84
S_TP = 88
S_TF = 89
S_GR = 90
S_TG = 94
SC1 = ' sc1' if 'sc1' in DBG else (' nt' if 'nt' in DBG else (' sc0' if 'sc0' in DBG else (' sc1 nt' if 'sc1nt' in DBG else '')))
V_TL = V_ACC
V_TR = V_ACC + 16


def tr_loads(a, tag):
    T = V_T
    a(f"s_mov_b32 s{S_TP}, 0x40000000")
    a(f"s_lshl_b32 s{S_T0}, s{S_CT}, 4")
    a(f"s_add_u32 s{S_T0}, s{S_T0}, s{S_RT}")
    a(f"s_lshl_b32 s{S_T0}, s{S_T0}, 2")
    a(f"s_add_u32 s{S_T0}, s{S_T0}, s{S_WAVE}")
    a(f"s_cmp_lt_u32 s{S_T0}, 740")
    a(f"s_cselect_b32 s{S_TF}, 1, 0")
    a(f"s_cbranch_scc0 k1_ntl{tag}")
    a(f"s_mul_i32 s{S_T1}, s{S_T0}, 205")
    a(f"s_lshr_b32 s{S_T1}, s{S_T1}, 10")
    a(f"s_mul_i32 s{S_T2}, s{S_T1}, 5")
    a(f"s_sub_u32 s{S_T2}, s{S_T0}, s{S_T2}")
    a(f"s_mul_i32 s{S_TP}, s{S_T1}, 20")
    a(f"s_lshl_b32 s{S_T0}, s{S_T2}, 2")
    a(f"s_add_u32 s{S_TP}, s{S_TP}, s{S_T0}")
    a(f"s_lshl_b32 s{S_TP}, s{S_TP}, 10")
    a(f"s_sub_u32 s{S_T0}, s{S_T1}, 108")
    a(f"s_cmp_lt_u32 s{S_T1}, 108")
    a(f"s_cselect_b32 s{S_T1}, s{S_T1}, s{S_T0}")
    a(f"s_cselect_b32 s{S_TSRD}, s{P_W2}, s{P_WO}")
    a(f"s_cselect_b32 s{S_TSRD+1}, s{P_W2+1}, s{P_WO+1}")
    a(f"s_mov_b32 s{S_T0}, {640*1280}")
    a(f"s_cselect_b32 s{S_TSRD+2}, {1728*1280}, s{S_T0}")
    a(f"s_mov_b32 s{S_TSRD+3}, 0x00020000")
    a(f"s_mul_i32 s{S_T1}, s{S_T1}, {16*1280}")
    a(f"s_lshl_b32 s{S_T2}, s{S_T2}, 8")
    a(f"s_add_u32 s{S_T1}, s{S_T1}, s{S_T2}")
    a(f"v_lshlrev_b32 v{T}, 2, v1")
    for kk in range(16):
        if kk and kk % 3 == 0:
            a(f"s_add_u32 s{S_T1}, s{S_T1}, {3*1280}")
        a(f"buffer_load_dword v{V_TL+kk}, v{T}, s[{S_TSRD}:{S_TSRD+3}], s{S_T1} offen offset:{(kk%3)*1280}")
    a.label(f"k1_ntl{tag}")


def tr_stores(a, tag, nafter):
    T = V_T
    make_srd(a, S_SRDY, P_WS, WF_OFF, WF_SIZE)
    a(f"v_lshrrev_b32 v{T}, 4, v1")
    a(f"v_lshlrev_b32 v{T}, 10, v{T}")
    a(f"v_and_b32 v{T+1}, 15, v1")
    a(f"v_lshl_add_u32 v{T}, v{T+1}, 5, v{T}")
    a(f"s_mov_b32 s{S_T0}, 0x05040100")
    a(f"s_mov_b32 s{S_T1}, 0x07060302")
    a(f"s_waitcnt vmcnt({nafter})")
    for e in range(2):
        for h in range(2):
            dd = V_TR + (e * 2 + h) * 4
            for i, ka in enumerate((4 * h, 4 * h + 2, 8 + 4 * h, 8 + 4 * h + 2)):
                a(f"v_perm_b32 v{dd+i}, v{V_TL+ka+1}, v{V_TL+ka}, s{S_T1 if e else S_T0}")
            a(f"buffer_store_dwordx4 {vr(dd, 4)}, v{T}, s[{S_SRDY}:{S_SRDY+3}], s{S_TP} offen offset:{e*16 + h*512}")


def gen_k1(a):
    T = V_T
    kqk, kv, kh = Kind(True, 1, False), Kind(True, 1, True), Kind(False, 4, False)
    a.label("k1_kernel")
    tl_start(a)
    stamp(a, 0)
    a(f"s_cmp_ge_u32 s2, {K1_WGS}")
    a("s_cbranch_scc1 k1_end")
    load_ptrs(a)
    a("v_lshrrev_b32 v1, 6, v0")
    a("s_nop 0")
    a(f"v_readfirstlane_b32 s{S_ROLE}, v1")
    a("v_and_b32 v1, 63, v0")
    a("s_nop 1")
    a(f"s_and_b32 s{S_WAVE}, s{S_ROLE}, 3")
    a(f"s_and_b32 s{S_T0}, s2, 1")
    a(f"s_lshl_b32 s{S_T0}, s{S_T0}, 3")
    a(f"s_bfe_u32 s{S_T1}, s2, 0x30003")
    a(f"s_add_u32 s{S_RT}, s{S_T0}, s{S_T1}")
    a(f"s_bfe_u32 s{S_T0}, s2, 0x20001")
    a(f"s_lshl_b32 s{S_T0}, s{S_T0}, 2")
    a(f"s_lshr_b32 s{S_T1}, s2, 6")
    a(f"s_add_u32 s{S_CT}, s{S_T0}, s{S_T1}")
    if 'm1' in DBG:
        a(f"s_and_b32 s{S_RT}, s2, 15")
        a(f"s_lshr_b32 s{S_CT}, s2, 4")
    if 'm2' in DBG:
        a(f"s_and_b32 s{S_CT}, s2, 15")
        a(f"s_lshr_b32 s{S_RT}, s2, 4")
    a(f"s_lshl_b32 s{S_T0}, s{S_RT}, 7")
    a(f"s_lshl_b32 s{S_T1}, s{S_WAVE}, 3")
    a(f"s_add_u32 s{S_T0}, s{S_T0}, s{S_T1}")
    a(f"s_mul_i32 s{S_AW}, s{S_T0}, 1280")
    a(f"s_mul_i32 s{S_BW}, s{S_CT}, 320")
    a(f"s_lshl_b32 s{S_MW}, s{S_WAVE}, 10")
    a(f"s_lshl_b32 s{S_T0}, s{S_CT}, 6")
    a(f"s_lshl_b32 s{S_T1}, s{S_CT}, 8")
    a(f"s_sub_u32 s{S_T1}, s{S_T1}, {12*256 - 768}")
    a(f"s_cmp_lt_u32 s{S_CT}, 12")
    a(f"s_cselect_b32 s{S_T4}, s{S_T0}, s{S_T1}")
    a(f"s_lshl_b32 s{S_T0}, s{S_T4}, 1")
    a(f"s_mul_i32 s{S_T1}, s{S_WAVE}, {8*3456}")
    a(f"s_add_u32 s{S_PW}, s{S_T0}, s{S_T1}")
    a(f"s_cmp_lt_u32 s{S_ROLE}, 4")
    a("s_cbranch_scc1 k1_cons")
    a(f"v_lshrrev_b32 v{T}, 3, v1")
    a(f"v_lshrrev_b32 v{T+1}, 4, v1")
    a(f"s_and_b32 s{S_T0}, s{S_WAVE}, 1")
    a(f"s_lshl_b32 s{S_T0}, s{S_T0}, 2")
    a(f"v_add_u32 v{T+3}, s{S_T0}, v{T+1}")
    a(f"v_and_b32 v{T+2}, 7, v1")
    a(f"v_xor_b32 v{T+3}, v{T+2}, v{T+3}")
    a(f"v_lshlrev_b32 v{T+3}, 4, v{T+3}")
    a(f"s_movk_i32 s{S_T0}, 1280")
    a(f"v_mad_u32_u24 v{V_DA}, v{T}, s{S_T0}, v{T+3}")
    a(f"v_and_b32 v{T+1}, 1, v{T+1}")
    a(f"v_lshlrev_b32 v{T+1}, 2, v{T+1}")
    a(f"v_xor_b32 v{T+3}, v{T+2}, v{T+1}")
    a(f"v_lshlrev_b32 v{T+3}, 4, v{T+3}")
    a(f"s_movk_i32 s{S_T0}, 3456")
    a(f"v_mad_u32_u24 v{V_DP}, v{T}, s{S_T0}, v{T+3}")
    a(f"v_lshlrev_b32 v{T}, 4, v1")
    a(f"v_add_u32 v{T}, s{S_MW}, v{T}")
    a(f"s_movk_i32 s{S_T0}, 205")
    a(f"s_movk_i32 s{S_T1}, {3840 - 320}")
    for i in range(5):
        a(f"v_add_u32 v{T+1}, {i*4096}, v{T}")
        a(f"v_lshrrev_b32 v{T+2}, 6, v{T+1}")
        a(f"v_mul_u32_u24 v{T+2}, s{S_T0}, v{T+2}")
        a(f"v_lshrrev_b32 v{T+2}, 10, v{T+2}")
        a(f"v_mad_u32_u24 v{V_DB+i}, v{T+2}, s{S_T1}, v{T+1}")
    a("s_waitcnt lgkmcnt(0)")
    make_srd(a, S_SRDA, P_X, 0, 2048 * 1280)
    make_srd(a, S_SRDB, P_WQKV, 0, 640 * 3840)
    make_srd(a, S_SRDP, P_W1, 0, 640 * 3456)
    a(f"s_cmp_ge_u32 s{S_CT}, 12")
    a("s_cbranch_scc1 k1_lh")
    k1_loader(a, kqk, 'q')
    a.label("k1_lh")
    k1_loader(a, kh, 'h')
    a.label("k1_cons")
    a(f"v_and_b32 v{T}, 31, v1")
    a(f"v_lshrrev_b32 v{T+1}, 5, v1")
    a(f"v_bfe_u32 v{T+2}, v1, 1, 3")
    a(f"s_lshl_b32 s{S_T0}, s{S_WAVE}, 12")
    a(f"v_lshlrev_b32 v{T+3}, 7, v{T}")
    a(f"v_add_u32 v{T+3}, s{S_T0}, v{T+3}")
    for ks in range(4):
        a(f"v_add_u32 v{T+4}, {2*ks}, v{T+1}")
        a(f"v_xor_b32 v{T+4}, v{T+4}, v{T+2}")
        a(f"v_lshlrev_b32 v{T+4}, 4, v{T+4}")
        a(f"v_add_u32 v{V_AA+ks}, v{T+3}, v{T+4}")
    a(f"s_mov_b32 s{S_T0}, {STG}")
    a(f"s_mov_b32 s{S_T1}, {2*STG}")
    for ks in range(4):
        a(f"v_add_u32 v{V_AA+4+ks}, s{S_T0}, v{V_AA+ks}")
        a(f"v_add_u32 v{V_AA+8+ks}, s{S_T1}, v{V_AA+ks}")
    a(f"v_bfe_u32 v{T}, v1, 2, 2")
    a(f"v_and_b32 v{T+2}, 3, v1")
    a(f"v_bfe_u32 v{T+3}, v1, 4, 1")
    a(f"v_lshl_add_u32 v{T+4}, v{T+1}, 3, v{T}")
    a(f"v_lshlrev_b32 v{T+5}, 3, v{T+2}")
    a(f"v_lshl_add_u32 v{T+5}, v{T+3}, 5, v{T+5}")
    a(f"v_mul_u32_u24 v{T+6}, 320, v{T+4}")
    a(f"v_add_u32 v{T+6}, v{T+6}, v{T+5}")
    a(f"v_add_u32 v{V_BQ}, {QOFF}, v{T+6}")
    a(f"v_add_u32 v{V_BQ+1}, s{S_T0}, v{V_BQ}")
    a(f"v_add_u32 v{V_BQ+2}, s{S_T1}, v{V_BQ}")
    a(f"v_lshl_add_u32 v{T+6}, v{T+4}, 7, v{T+5}")
    a(f"v_lshrrev_b32 v{T+7}, 1, v{T}")
    for j in range(2):
        a(f"v_xor_b32 v{T+8}, {j}, v{T+7}")
        a(f"v_lshl_add_u32 v{V_BP+j}, v{T+8}, 6, v{T+6}")
        a(f"v_add_u32 v{V_BP+2+j}, s{S_T0}, v{V_BP+j}")
        a(f"v_add_u32 v{V_BP+4+j}, s{S_T1}, v{V_BP+j}")
    a("s_waitcnt lgkmcnt(0)")
    a(f"s_cmp_ge_u32 s{S_CT}, 12")
    a("s_cbranch_scc1 k1_h")
    a(f"s_cmp_ge_u32 s{S_CT}, 8")
    a("s_cbranch_scc1 k1_v")
    k1_main(a, kqk)
    EB = STG
    h_epilogue(a, kqk, EB + 40960)
    a(f"s_mov_b32 s{S_T0}, {f32bits(QSCALE)}")
    a(f"s_cmp_lt_u32 s{S_CT}, 4")
    a(f"s_cselect_b32 s{S_T4}, s{S_T0}, 1.0")
    a(f"s_mov_b32 s{S_T5}, s{S_T4}")
    a(f"s_movk_i32 s{S_T3}, 2560")
    a(f"s_cselect_b32 s{S_T3}, 1280, s{S_T3}")
    a(f"s_mov_b32 s{S_T0}, {KV_OFF}")
    a(f"s_cselect_b32 s{S_T0}, {QF_OFF}, s{S_T0}")
    a(f"s_mov_b32 s{S_T1}, {KV_SIZE}")
    a(f"s_cselect_b32 s{S_T1}, {QF_SIZE}, s{S_T1}")
    a(f"s_add_u32 s{S_SRDO}, s{P_WS}, s{S_T0}")
    a(f"s_addc_u32 s{S_SRDO+1}, s{P_WS+1}, 0")
    a(f"s_mov_b32 s{S_SRDO+2}, s{S_T1}")
    a(f"s_mov_b32 s{S_SRDO+3}, 0x00020000")
    a(f"s_mul_i32 s{S_T0}, s{S_WAVE}, 10240")
    a(f"s_add_u32 s{S_T0}, s{S_T0}, {EB}")
    a(f"v_and_b32 v{T}, 31, v1")
    a(f"v_lshrrev_b32 v{T+1}, 5, v1")
    a(f"v_lshlrev_b32 v{T+2}, 4, v{T}")
    a(f"v_add_u32 v{T+2}, s{S_T0}, v{T+2}")
    a(f"v_lshlrev_b32 v{T+3}, 3, v{T}")
    a(f"v_add_u32 v{T+3}, s{S_T0}, v{T+3}")
    a("v_cmp_gt_u32 vcc, 32, v1")

    def off(n):
        hd, d = n // 20, n % 20
        if d < 16:
            return hd * 1280 + (d >> 3) * 512 + ((d >> 2) & 1) * 8, False
        return hd * 1280 + 1024, True
    kk = 0
    for tn in range(5):
        for g in range(4):
            r = V_ACC + tn * 16 + 4 * g
            n0 = tn * 32 + 8 * g
            (c0, e0), (c1, e1) = off(n0), off(n0 + 4)
            ad = T + 4 + (kk % 2)
            dd = T + 6 + 2 * (kk % 2)
            kk += 1
            b0 = T + 3 if e0 else T + 2
            b1 = T + 3 if e1 else T + 2
            if e0 == e1:
                a(f"v_mad_u32_u24 v{ad}, v{T+1}, {c1 - c0}, v{b0}" if c1 - c0 <= 64 else f"v_mov_b32 v{ad}, {c1-c0}")
                if c1 - c0 > 64:
                    a(f"v_mad_u32_u24 v{ad}, v{T+1}, v{ad}, v{b0}")
            else:
                a(f"v_add_u32 v{ad}, {c1 - c0}, v{b1}")
                a(f"v_cndmask_b32 v{ad}, v{ad}, v{b0}, vcc")
            a(f"v_pk_mul_f32 v[{r}:{r+1}], v[{r}:{r+1}], s[{S_T4}:{S_T5}]")
            a(f"v_pk_mul_f32 v[{r+2}:{r+3}], v[{r+2}:{r+3}], s[{S_T4}:{S_T5}]")
            a(f"v_cvt_pk_bf16_f32 v{dd}, v{r}, v{r+1}")
            a(f"v_cvt_pk_bf16_f32 v{dd+1}, v{r+2}, v{r+3}")
            a(f"ds_write_b64 v{ad}, v[{dd}:{dd+1}] offset:{c0}")
    a(f"v_lshlrev_b32 v{T}, 4, v1")
    a(f"v_add_u32 v{T+1}, s{S_T0}, v{T}")
    a(f"v_lshrrev_b32 v{T+2}, 4, v1")
    a(f"s_and_b32 s{S_T0}, s{S_CT}, 3")
    a(f"s_lshl_b32 s{S_T0}, s{S_T0}, 9")
    a(f"s_lshl_b32 s{S_T1}, s{S_RT}, 2")
    a(f"s_add_u32 s{S_T0}, s{S_T0}, s{S_T1}")
    a(f"s_add_u32 s{S_T0}, s{S_T0}, s{S_WAVE}")
    a(f"s_mul_i32 s{S_T0}, s{S_T0}, s{S_T3}")
    a(f"s_lshl_b32 s{S_T1}, s{S_T3}, 6")
    a(f"s_sub_u32 s{S_T1}, s{S_T1}, 1280")
    a(f"s_movk_i32 s{S_T2}, 205")
    a("s_waitcnt lgkmcnt(0)")
    QD = V_FR + 16
    for i in range(10):
        a(f"ds_read_b128 {vr(QD + 4*i, 4)}, v{T+1} offset:{i*1024}")
    for i in range(10):
        ad = V_ACC + i
        a(f"v_add_u32 v{ad}, {4*i}, v{T+2}")
        a(f"v_mul_u32_u24 v{ad}, s{S_T2}, v{ad}")
        a(f"v_lshrrev_b32 v{ad}, 10, v{ad}")
        a(f"v_mul_lo_u32 v{ad}, v{ad}, s{S_T1}")
        a(f"v_add_u32 v{ad}, v{ad}, v{T}")
        if i:
            a(f"v_add_u32 v{ad}, {i*1024}, v{ad}")
    for i in range(10):
        a(f"s_waitcnt lgkmcnt({9-i})")
        a(f"buffer_store_dwordx4 {vr(QD + 4*i, 4)}, v{V_ACC+i}, s[{S_SRDO}:{S_SRDO+3}], s{S_T0} offen{SC1}")
    stamp_out(a, 6)
    tl_end(a, 0)
    a("s_endpgm")
    a.label("k1_v")
    k1_main(a, kv)
    h_epilogue(a, kv, EB)
    make_srd(a, S_SRDO, P_WS, KV_OFF, KV_SIZE)
    a(f"v_and_b32 v{T}, 31, v1")
    a(f"v_lshrrev_b32 v{T+1}, 5, v1")
    a(f"v_mul_u32_u24 v{T+1}, 320, v{T+1}")
    a(f"v_add_u32 v{T+1}, 1280, v{T+1}")
    a(f"s_sub_u32 s{S_T0}, s{S_CT}, 8")
    a(f"s_lshl_b32 s{S_T0}, s{S_T0}, 9")
    a(f"s_lshl_b32 s{S_T1}, s{S_RT}, 2")
    a(f"s_add_u32 s{S_T0}, s{S_T0}, s{S_T1}")
    a(f"s_add_u32 s{S_T0}, s{S_T0}, s{S_WAVE}")
    a(f"s_mul_i32 s{S_T0}, s{S_T0}, 2560")
    a(f"s_movk_i32 s{S_T3}, 3277")
    a(f"s_mov_b32 s{S_T2}, {64*2560}")
    VD = V_FR + 16
    for tn in range(5):
        a(f"v_add_u32 v{T+2}, {tn*32}, v{T}")
        a(f"v_mul_u32_u24 v{T+3}, s{S_T3}, v{T+2}")
        a(f"v_lshrrev_b32 v{T+3}, 16, v{T+3}")
        a(f"v_mul_u32_u24 v{T+4}, 20, v{T+3}")
        a(f"v_sub_u32 v{T+4}, v{T+2}, v{T+4}")
        a(f"v_mul_lo_u32 v{T+3}, v{T+3}, s{S_T2}")
        a(f"v_lshl_add_u32 v{T+5}, v{T+4}, 4, v{T+1}")
        a(f"v_add_u32 v{VD+40+tn}, v{T+5}, v{T+3}")
        for m in range(2):
            r = V_ACC + tn * 16 + 8 * m
            dd = VD + (tn * 2 + m) * 4
            for i in range(4):
                a(f"v_cvt_pk_bf16_f32 v{dd+i}, v{r+2*i}, v{r+2*i+1}")
            a(f"buffer_store_dwordx4 v[{dd}:{dd+3}], v{VD+40+tn}, s[{S_SRDO}:{S_SRDO+3}], s{S_T0} offen offset:{m*640}{SC1}")
    stamp_out(a, 6)
    tl_end(a, 0)
    a("s_endpgm")
    a.label("k1_h")
    k1_main(a, kh)
    h_epilogue(a, kh, EB)
    stamp_out(a, 6)
    tl_end(a, 0)
    a.label("k1_end")
    a("s_endpgm")
    return dict(name="k1_kernel", vgpr=V_ACC + 128, sgpr=96, grid=K1_WGS, block=512, lds=K1_S * STG)


def gen_gate(a, s_idx, wave8=True):
    make_srd(a, S_SRDA, P_X, 0, 2048 * 1280)
    make_srd(a, S_SRDB, P_GW, 0, 1280)
    make_srd(a, S_SRDO, P_WS, G_OFF, G_SIZE)
    a("v_and_b32 v2, 15, v1")
    a("v_lshrrev_b32 v3, 4, v1")
    a("v_lshlrev_b32 v4, 4, v2")
    for i in range(5):
        a(f"buffer_load_dwordx4 v[{24+4*i}:{27+4*i}], v4, s[{S_SRDB}:{S_SRDB+3}], 0 offen offset:{i*256}")
    a(f"s_lshl_b32 s{S_T0}, s{s_idx}, 8")
    a(f"s_lshl_b32 s{S_T1}, s{S_WAVE}, 5")
    a(f"s_add_u32 s{S_T0}, s{S_T0}, s{S_T1}")
    a(f"v_add_u32 v5, s{S_T0}, v3")
    a(f"v_mul_u32_u24 v6, 1280, v5")
    a(f"v_add_u32 v6, v6, v4")
    a(f"v_lshlrev_b32 v7, 2, v5")
    a("v_cmp_eq_u32 vcc, 0, v2")
    a(f"s_mov_b64 s[{S_EX0}:{S_EX0+1}], vcc")
    for p in range(8):
        for i in range(5):
            a(f"s_mov_b32 s{S_T0}, {p*4*1280}")
            a(f"buffer_load_dwordx4 v[{48+4*i}:{51+4*i}], v6, s[{S_SRDA}:{S_SRDA+3}], s{S_T0} offen offset:{i*256}")
        a("s_waitcnt vmcnt(0)")
        a("v_mov_b32 v8, 0")
        for i in range(20):
            a(f"v_dot2_f32_bf16 v8, v{24+i}, v{48+i}, v8")
        a("s_nop 3")
        for sh in (8, 4, 2, 1):
            a("s_nop 1")
            a(f"v_add_f32_dpp v8, v8, v8 row_ror:{sh} row_mask:0xf bank_mask:0xf")
        a("s_nop 1")
        a("v_cvt_pk_bf16_f32 v8, v8, v8")
        a("v_lshlrev_b32 v8, 16, v8")
        a(f"v_mul_f32 v8, {f32bits(-math.log2(math.e))}, v8")
        a("v_exp_f32 v8, v8")
        a("s_nop 0")
        a("v_add_f32 v8, 1.0, v8")
        a("v_rcp_f32 v8, v8")
        a("s_nop 0")
        a("v_cvt_pk_bf16_f32 v8, v8, v8")
        a("v_lshlrev_b32 v8, 16, v8")
        a(f"s_mov_b64 exec, s[{S_EX0}:{S_EX0+1}]")
        a(f"buffer_store_dword v8, v7, s[{S_SRDO}:{S_SRDO+3}], 0 offen offset:{p*16}")
        a("s_mov_b64 exec, -1")
        a("s_nop 1")
    a("s_endpgm")
```

```python
import math
from gen import *

K2_WGS = 256
CHUNK = 40960
WIN = 24

V_DMA = 2
V_KE = 3
V_VV = 4
V_KM = 5
V_D13 = 6
V_G = 7
V_TMP = 8
V_Q1 = 12
V_Q2 = 16
V_K = 20
V_V = 36
V_P = 52
V_S = 60
V_O = 92
V_ACC = 108
V_RA = 188
V_RB = 200
NA, NB = 3, 14
NSTEP = 27
S_HEAD = 37
S_QT = 38
S_RB = 45
S_CB = 46
S_VMASK = 62
S_SRDH = 64
S_SRDW = 68
S_FA = 72
S_FB = 73
S_KQ = 74
S_FB2 = 75
S_M5 = 47
S_ST = 76


def stamp(a, i):
    if 'fstamp' in DBG:
        a(f"{'s_memtime' if 'cyc' in DBG else 's_memrealtime'} s[{S_ST+2*i}:{S_ST+2*i+1}]")


def stamp_out(a, n, T):
    if 'fstamp' not in DBG: return
    a("s_waitcnt vmcnt(0)")
    stamp(a, n - 1)
    a("s_waitcnt lgkmcnt(0)")
    make_srd(a, S_SRDY, P_WS, 0x2000000, 0x100000)
    a(f"s_lshl_b32 s{S_T5}, s2, 3")
    a(f"s_add_u32 s{S_T5}, s{S_T5}, s{S_WAVE}")
    a(f"s_lshl_b32 s{S_T5}, s{S_T5}, 6")
    a(f"v_mov_b32 v{T+2}, s{S_T5}")
    a("s_mov_b64 exec, 1")
    for i in range(n):
        a(f"v_mov_b32 v{T+3}, s{S_ST+2*i}")
        a(f"buffer_store_dword v{T+3}, v{T+2}, s[{S_SRDY}:{S_SRDY+3}], 0 offen offset:{4*i}")
    a("s_mov_b64 exec, -1")


def role(a, tg):
    T = V_TMP
    vm = VM()
    vm.add('q'); vm.add('q')
    F = tg == 0
    nt = 3 if F else 2
    j0 = 3 * tg
    L = lambda x: f'{x}_{tg}'
    NPF = 0 if 'nosplit' in DBG else (2 if 'split2' in DBG else 1)
    FIRST = [(0, i) for i in range(NPF)]
    TB = (NPF * 8192) // 2560 - 2 if NPF else -1

    def att_dma1(c, i):
        a(f"s_add_u32 m0, s{S_MW}, {c*CHUNK + i*8192}")
        a(f"s_add_u32 s{S_T0}, s{S_AW}, {c*CHUNK + i*8192}")
        a(f"buffer_load_dwordx4 v{V_DMA}, s[{S_SRDA}:{S_SRDA+3}], s{S_T0} offen lds")
        vm.add(('c', c) if (c, i) not in FIRST else 'c00')

    def att_dma(c):
        for i in range(5): att_dma1(c, i)

    WL = [(sl, jj) for sl in range(10) for jj in range(nt)]
    NSTG = 13 if F else 0
    ring_free = []
    BQ = {}
    for i in range(NSTG): BQ[WL[i]] = 12 + 4 * i if i < 10 else 60 + 4 * (i - 10)
    AQ = [72 + 4 * i for i in range(9)] + [52]
    stg_off = lambda i: (i // 10) * CHUNK + (i % 10) * 1024

    def wo_stage(i):
        sl, jj = WL[i]
        a(f"s_add_u32 m0, s{S_M5}, {stg_off(i)}")
        a(f"s_add_u32 s{S_T0}, s{S_FB2}, {sl*20480 + jj*1024}")
        a(f"buffer_load_dwordx4 v{V_DMA}, s[{S_SRDW}:{S_SRDW+3}], s{S_T0} offen lds")
        vm.add(('ws', i))

    def wo_reg(reg):
        i = NSTG + len(ring_free)
        ring_free.append(reg)
        sl, jj = WL[i]
        BQ[WL[i]] = reg
        a(f"s_add_u32 s{S_T0}, s{S_FB2}, {sl*20480 + jj*1024}")
        a(f"buffer_load_dwordx4 {vr(reg, 4)}, v{V_DMA}, s[{S_SRDW}:{S_SRDW+3}], s{S_T0} offen")
        vm.add(('wr', i))

    def read_k(t):
        if 'xlds' in DBG and t > 2: return
        kb = t % 2
        if t and t % WIN == 0:
            a(f"v_add_u32 v{V_KM}, {WIN*2560}, v{V_KM}")
            a(f"v_add_u32 v{V_KE}, {WIN*2560}, v{V_KE}")
        off = (t % WIN) * 2560
        a(f"ds_read_b128 {vr(V_K + 8*kb, 4)}, v{V_KM} offset:{off}")
        a(f"ds_read_b32 v{V_K + 8*kb + 4}, v{V_KE} offset:{off}")

    def read_v(t):
        if 'xlds' in DBG and t > 2: return
        vb = t % 2
        if t and t % WIN == 0:
            a(f"v_add_u32 v{V_VV}, {WIN*2560}, v{V_VV}")
        off = (t % WIN) * 2560
        a(f"s_mov_b64 exec, s[{S_VMASK}:{S_VMASK+1}]")
        for m in range(2):
            a(f"ds_read_b128 {vr(V_V + 8*vb + 4*m, 4)}, v{V_VV} offset:{off + m*640}")
        a("s_mov_b64 exec, -1")

    def qk(t, which):
        if 'xqk2' in DBG and which == 1: return
        kb = t % 2
        S = vr(V_S + 16 * (t % 2), 16)
        if which == 0:
            a(f"v_mfma_f32_32x32x16_bf16 {S}, {vr(V_K + 8*kb, 4)}, {vr(V_Q1, 4)}, 0")
        elif 'q16' not in DBG:
            a(f"v_mfma_f32_32x32x8_bf16 {S}, {vr(V_K + 8*kb + 4, 2)}, {vr(V_Q2, 2)}, {S}")
        else:
            a(f"v_mfma_f32_32x32x16_bf16 {S}, {vr(V_K + 8*kb + 4, 4)}, {vr(V_Q2, 4)}, {S}")

    def pv(t, m):
        if 'xpv' in DBG and t > 0: return
        vb = t % 2
        O = vr(V_O, 16)
        cin = "0" if (t == 0 and m == 0) else O
        a(f"v_mfma_f32_32x32x16_bf16 {O}, {vr(V_V + 8*vb + 4*m, 4)}, {vr(V_P + 4*m, 4)}, {cin}")

    def ld_a(i):
        if i >= NSTEP: return wo_reg(V_RA + 4*(i % NA))
        if 'nofl' in DBG: return
        vo = V_DMA
        a(f"s_add_u32 s{S_T0}, s{S_FA}, {i*4*1024}")
        a(f"buffer_load_dwordx4 {vr(V_RA + 4*(i % NA), 4)}, v{vo}, s[{S_SRDH}:{S_SRDH+3}], s{S_T0} offen")
        vm.add(('a', i))

    def ld_b(m):
        if m >= NSTEP * 5: return wo_reg(V_RB + 4*(m % NB))
        if 'nofl' in DBG: return
        i, j = divmod(m, 5)
        vo = V_DMA
        a(f"s_add_u32 s{S_T0}, s{S_FB}, {i*4*20480 + j*1024}")
        a(f"buffer_load_dwordx4 {vr(V_RB + 4*(m % NB), 4)}, v{vo}, s[{S_SRDW}:{S_SRDW+3}], s{S_T0} offen")
        vm.add(('b', m))

    def ffn(m):
        i, j = divmod(m, 5)
        acc = vr(V_ACC + 16 * j, 16)
        if 'nofl' not in DBG and 'nofw' not in DBG:
            a(f"s_waitcnt vmcnt({vm.need(('a', i), ('b', m))})")
        if 'nofm' not in DBG: a(f"v_mfma_f32_32x32x16_bf16 {acc}, {vr(V_RB + 4*(m % NB), 4)}, {vr(V_RA + 4*(i % NA), 4)}, {'0' if i == 0 else acc}")
        ld_b(m + NB)
        if j == 4:
            ld_a(i + NA)

    att_dma(0)
    make_srd(a, S_SRDH, P_WS, H_OFF, H_SIZE)
    make_srd(a, S_SRDW, P_WS, WF_OFF, WF_SIZE)
    make_srd(a, S_SRDO, P_WS, O_OFF, O_SIZE)
    a(f"s_and_b32 s{S_KQ}, s{S_WAVE}, 3")
    a(f"s_mul_i32 s{S_FB2}, s{S_KQ}, 200")
    a(f"s_mul_i32 s{S_T0}, s{S_CB}, 5")
    a(f"s_add_u32 s{S_FB2}, s{S_FB2}, s{S_T0}")
    a(f"s_lshr_b32 s{S_T0}, s{S_WAVE}, 2")
    a(f"s_mul_i32 s{S_T0}, s{S_T0}, 3")
    a(f"s_add_u32 s{S_FB2}, s{S_FB2}, s{S_T0}")
    a(f"s_add_u32 s{S_FB2}, s{S_FB2}, {108*20}")
    a(f"s_lshl_b32 s{S_FB2}, s{S_FB2}, 10")
    a(f"s_mul_i32 s{S_M5}, s{S_WAVE}, 10240")
    if F:
        ld_a(0)
        for m in range(5): ld_b(m)
    att_dma(1)
    make_srd(a, S_SRDY, P_WS, G_OFF, G_SIZE)
    a(f"v_lshlrev_b32 v{T+2}, 2, v{T}")
    a(f"s_lshl_b32 s{S_T0}, s{S_RB}, 7")
    a(f"buffer_load_dword v{V_G}, v{T+2}, s[{S_SRDY}:{S_SRDY+3}], s{S_T0} offen")
    vm.add('g')
    dq = []
    if F:
        dq = [lambda: ld_a(1)] + [(lambda m: lambda: ld_b(m))(m) for m in range(5, 10)] + [lambda: ld_a(2)] + [(lambda m: lambda: ld_b(m))(m) for m in range(10, NB)]
    dq += [(lambda c, i: lambda: att_dma1(c, i))(c, i) for c in (2, 3) for i in range(5)]
    for r in (V_Q2 + 1, V_Q2 + 2, V_Q2 + 3, V_K + 6, V_K + 7, V_K + 14, V_K + 15):
        a(f"v_mov_b32 v{r}, 0")
    a("v_cmp_gt_u32 vcc, 32, v1")
    a(f"v_mov_b32 v{T+2}, 0x3f80")
    a("s_nop 1")
    a(f"v_cndmask_b32 v{V_K+5}, 0, v{T+2}, vcc")
    a(f"v_cndmask_b32 v{V_K+13}, 0, v{T+2}, vcc")
    a(f"v_cmp_eq_u32 vcc, 20, v{T}")
    a(f"v_cmp_eq_u32 s[{S_EX0}:{S_EX0+1}], 24, v{T}")
    a(f"s_or_b64 vcc, vcc, s[{S_EX0}:{S_EX0+1}]")
    a(f"v_mov_b32 v{T+2}, 0x3f803f80")
    a("s_nop 1")
    a(f"v_cndmask_b32 v{T+2}, 0, v{T+2}, vcc")
    for r in range(16):
        a(f"v_mov_b32 v{V_V + r}, v{T+2}")
    a(f"s_mov_b32 s{S_VMASK}, 0x000fffff")
    a(f"s_mov_b32 s{S_VMASK+1}, 0x000fffff")
    a(f"s_waitcnt vmcnt({vm.need('q', 'c00' if NPF else ('c', 0))})")
    a("s_barrier")
    stamp(a, 1)
    if ('prioN' in DBG and not F) or ('prioF' in DBG and F): a("s_setprio 1")
    read_k(0)
    read_k(1)
    read_v(0)
    a("s_waitcnt lgkmcnt(4)")
    qk(0, 0)
    qk(0, 1)
    a("s_nop 15")
    a("s_nop 3")
    S0 = V_S
    a(f"v_max3_f32 v{T}, v{S0}, v{S0+1}, v{S0+2}")
    for i in range(3, 15, 2):
        a(f"v_max3_f32 v{T}, v{T}, v{S0+i}, v{S0+i+1}")
    a(f"v_max_f32 v{T}, v{T}, v{S0+15}")
    a(f"v_mov_b32 v{T+1}, v{T}")
    a("s_nop 1")
    a(f"v_permlane32_swap_b32 v{T}, v{T+1}")
    a("s_nop 1")
    a(f"v_max_f32 v{T}, v{T}, v{T+1}")
    a(f"v_sub_f32 v{T}, 0, v{T}")
    a(f"v_cvt_pk_bf16_f32 v{V_Q2+1}, v{T}, 0")
    a("s_nop 1")
    qk(0, 0)
    qk(0, 1)
    a("s_nop 7")
    NT = 64
    curp = [0]
    PRTH = (9, 4, 1)
    if 'pr2' in DBG: PRTH = (12, 8, 4)
    if 'pr3' in DBG: PRTH = (8, 3, 1)
    if 'pr4' in DBG: PRTH = (10, 5, 2)
    NM = NSTEP * 5 if F else 0
    T0, T1 = 2, 63
    cnt = lambda t: min(NM, max(0, ((t - T0) * NM + (T1 - T0) - 1) // (T1 - T0)))
    for t in range(NT):
        S = V_S + 16 * (t % 2)
        e = lambda i: a(f"v_exp_f32 v{S+i}, v{S+i}")
        cv = lambda i: a(f"v_cvt_pk_bf16_f32 v{V_P+i}, v{S+2*i}, v{S+2*i+1}")
        fl = list(range(cnt(t), cnt(t + 1)))
        assert len(fl) <= 3
        if t + 1 < NT:
            a("s_waitcnt lgkmcnt(2)")
            qk(t + 1, 0)
        for i in range(4):
            e(i)
        if t > 0:
            pv(t - 1, 1)
        nout = 0
        if t == TB:
            a(f"s_waitcnt vmcnt({vm.need(('c', 0))})")
            a("s_barrier")
        if t in (14, 30, 46):
            a(f"s_waitcnt vmcnt({vm.need(('c', (t + 2) // 16))})")
            a("s_barrier")
            if t >= 30 and F:
                dq += [(lambda i: lambda: wo_stage(i))(i) for i in (range(10) if t == 30 else range(10, 13))]
            if t == 30 and not F:
                dq += [(lambda i: lambda: wo_reg(176 + 4 * i))(i) for i in range(20)]
        if 'noprio' not in DBG:
            nbd = min(b for b in (14, 30, 46, 64) if b > t)
            th = PRTH
            lvl = lambda r: 3 if r > th[0] else (2 if r > th[1] else (1 if r > th[2] else 0))
            if lvl(nbd - t) != curp[0]:
                curp[0] = lvl(nbd - t)
                a(f"s_setprio {curp[0]}")
        if t + 2 < NT:
            read_k(t + 2)
            nout += 2
        if t + 1 < NT:
            read_v(t + 1)
            nout += 2
        e(4)
        e(5)
        if len(fl) == 3: ffn(fl.pop(0))
        e(6)
        e(7)
        if t + 1 < NT:
            qk(t + 1, 1)
        for i in range(4):
            cv(i)
        for _ in range(3 if t < 8 else 1):
            if dq: dq.pop(0)()
        e(8)
        e(9)
        a(f"s_waitcnt lgkmcnt({nout})")
        pv(t, 0)
        for i in range(10, 14):
            e(i)
        if fl: ffn(fl.pop(0))
        e(14)
        e(15)
        for i in range(4, 8):
            cv(i)
        if fl: ffn(fl.pop(0))
    assert not dq and len(ring_free) == (17 if F else 20), len(ring_free)
    a("s_nop 1")
    pv(NT - 1, 1)
    a("s_nop 15")
    a("s_nop 3")
    stamp(a, 2)
    a("v_cmp_gt_u32 vcc, 32, v1")
    a(f"s_mov_b32 s{S_T0}, 0x5f800000")
    a(f"s_movk_i32 s{S_T1}, 0x207")
    a(f"v_cndmask_b32 v{T}, v{V_O+8}, v{V_O+12}, vcc")
    a(f"v_cmp_nlt_f32 vcc, v{T}, s{S_T0}")
    a(f"s_mov_b32 s{S_T0}, 0x1f800000")
    a(f"v_cmp_ngt_f32 s[{S_EX0}:{S_EX0+1}], v{T}, s{S_T0}")
    a(f"s_or_b64 vcc, vcc, s[{S_EX0}:{S_EX0+1}]")
    for r in range(16):
        a(f"v_cmp_class_f32 s[{S_EX0}:{S_EX0+1}], v{V_O+r}, s{S_T1}")
        a(f"s_or_b64 vcc, vcc, s[{S_EX0}:{S_EX0+1}]")
    if 'forcefb' not in DBG:
        a("s_cbranch_vccz " + L("k2_norm"))
    M = T + 2
    a(f"v_mov_b32 v{M}, 0xff800000")
    a(f"v_mov_b32 v{V_Q2+1}, 0")
    a(f"v_subrev_u32 v{V_KE}, {2*WIN*2560}, v{V_KE}")
    a(f"v_subrev_u32 v{V_VV}, {2*WIN*2560}, v{V_VV}")
    for r in range(16):
        a(f"v_mov_b32 v{V_O+r}, 0")
    a(f"s_mul_i32 s{S_T0}, s{S_HEAD}, {64*2560}")
    a(f"s_mov_b32 s{S_T1}, 64")
    a.label(L("k2_slow"))
    a(f"buffer_load_dwordx4 {vr(V_K,4)}, v{V_DMA}, s[{S_SRDA}:{S_SRDA+3}], s{S_T0} offen")
    a(f"buffer_load_dword v{V_K+4}, v{V_KE}, s[{S_SRDA}:{S_SRDA+3}], s{S_T0} offen")
    a(f"s_mov_b64 exec, s[{S_VMASK}:{S_VMASK+1}]")
    a(f"buffer_load_dwordx4 {vr(V_V,4)}, v{V_VV}, s[{S_SRDA}:{S_SRDA+3}], s{S_T0} offen")
    a(f"buffer_load_dwordx4 {vr(V_V+4,4)}, v{V_VV}, s[{S_SRDA}:{S_SRDA+3}], s{S_T0} offen offset:640")
    a("s_mov_b64 exec, -1")
    a("s_waitcnt vmcnt(0)")
    a(f"v_mfma_f32_32x32x16_bf16 {vr(V_S,16)}, {vr(V_K,4)}, {vr(V_Q1,4)}, 0")
    a(f"v_mfma_f32_32x32x16_bf16 {vr(V_S,16)}, {vr(V_K+4,4)}, {vr(V_Q2,4)}, {vr(V_S,16)}")
    a("s_nop 15")
    a("s_nop 3")
    a(f"v_max3_f32 v{T}, v{S0}, v{S0+1}, v{S0+2}")
    for i in range(3, 15, 2):
        a(f"v_max3_f32 v{T}, v{T}, v{S0+i}, v{S0+i+1}")
    a(f"v_max_f32 v{T}, v{T}, v{S0+15}")
    a(f"v_mov_b32 v{T+1}, v{T}")
    a("s_nop 1")
    a(f"v_permlane32_swap_b32 v{T}, v{T+1}")
    a("s_nop 1")
    a(f"v_max3_f32 v{T}, v{T}, v{T+1}, v{M}")
    a(f"v_sub_f32 v{T+1}, v{M}, v{T}")
    a(f"v_exp_f32 v{T+1}, v{T+1}")
    a(f"v_mov_b32 v{M}, v{T}")
    for r in range(16):
        a(f"v_sub_f32 v{S0+r}, v{S0+r}, v{T}")
        a(f"v_exp_f32 v{S0+r}, v{S0+r}")
    for r in range(16):
        a(f"v_mul_f32 v{V_O+r}, v{V_O+r}, v{T+1}")
    for i in range(8):
        a(f"v_cvt_pk_bf16_f32 v{V_P+i}, v{S0+2*i}, v{S0+2*i+1}")
    a("s_nop 3")
    a(f"v_mfma_f32_32x32x16_bf16 {vr(V_O,16)}, {vr(V_V,4)}, {vr(V_P,4)}, {vr(V_O,16)}")
    a(f"v_mfma_f32_32x32x16_bf16 {vr(V_O,16)}, {vr(V_V+4,4)}, {vr(V_P+4,4)}, {vr(V_O,16)}")
    a("s_nop 15")
    a("s_nop 3")
    a(f"s_add_u32 s{S_T0}, s{S_T0}, 2560")
    a(f"s_sub_u32 s{S_T1}, s{S_T1}, 1")
    a(f"s_cmp_lg_u32 s{S_T1}, 0")
    a("s_cbranch_scc1 " + L("k2_slow"))
    a.label(L("k2_norm"))
    stamp(a, 3)
    a("v_cmp_gt_u32 vcc, 32, v1")
    a("s_nop 1")
    a(f"v_cndmask_b32 v{T}, v{V_O+8}, v{V_O+12}, vcc")
    a(f"v_rcp_f32 v{T+1}, v{T}")
    a(f"v_lshlrev_b32 v{T+2}, 3, v1")
    a(f"s_lshr_b32 s{S_T1}, s{S_HEAD}, 3")
    a(f"s_mul_i32 s{S_T1}, s{S_T1}, 10")
    a(f"s_mul_i32 s{S_T0}, s{S_QT}, 40")
    a(f"s_add_u32 s{S_T1}, s{S_T1}, s{S_T0}")
    a(f"s_and_b32 s{S_T2}, s{S_HEAD}, 7")
    a(f"s_add_u32 s{S_T0}, s{S_T1}, s{S_T2}")
    a(f"s_lshl_b32 s{S_T0}, s{S_T0}, 10")
    a(f"s_lshl_b32 s{S_T1}, s{S_T1}, 10")
    a(f"s_lshl_b32 s{S_T2}, s{S_T2}, 8")
    a(f"s_add_u32 s{S_T1}, s{S_T1}, s{S_T2}")
    a(f"s_add_u32 s{S_T1}, s{S_T1}, 8192")
    for r in range(12):
        a(f"v_mul_f32 v{V_O+r}, v{V_O+r}, v{T+1}")
    for r in range(6):
        a(f"v_cvt_pk_bf16_f32 v{V_P+r}, v{V_O+2*r}, v{V_O+2*r+1}")
    for r in range(6):
        a(f"v_min_u32 v{V_P+r}, -2, v{V_P+r}")
    a(f"buffer_store_dwordx4 v[{V_P}:{V_P+3}], v{V_DMA}, s[{S_SRDO}:{S_SRDO+3}], s{S_T0} offen sc1")
    a("s_mov_b64 exec, vcc")
    a(f"buffer_store_dwordx2 v[{V_P+4}:{V_P+5}], v{T+2}, s[{S_SRDO}:{S_SRDO+3}], s{S_T1} offen sc1")
    a("s_mov_b64 exec, -1")
    a(f"v_mov_b32 v{V_D13}, v{T+2}")
    stamp(a, 4)
    a(f"s_mul_i32 s{S_FA}, s{S_RB}, 40")
    a(f"s_mul_i32 s{S_T0}, s{S_KQ}, 10")
    a(f"s_add_u32 s{S_FA}, s{S_FA}, s{S_T0}")
    a(f"s_lshl_b32 s{S_FA}, s{S_FA}, 10")
    a(f"s_add_u32 s{S_FB}, s{S_FA}, 4096")
    a(f"s_add_u32 s{S_FB2}, s{S_FA}, 8192")

    def a_load(sl, sc=' sc1'):
        if sl < 8:
            a(f"buffer_load_dwordx4 {vr(AQ[sl], 4)}, v{V_DMA}, s[{S_SRDO}:{S_SRDO+3}], s{(S_FA, S_FB)[sl // 4]} offen offset:{(sl%4)*1024}{sc}")
        else:
            for e in range(2):
                a(f"buffer_load_dwordx2 {vr(AQ[sl] + 2*e, 2)}, v{V_D13}, s[{S_SRDO}:{S_SRDO+3}], s{S_FB2} offen offset:{(sl%4)*1024 + e*512}{sc}")
    SC0 = '' if 'aplain' in DBG else ' sc1'
    EARLY = 'aearly' in DBG
    AMID = not (EARLY or 'a5' in DBG or 'alate' in DBG)
    if EARLY:
        for sl in range(10): a_load(sl, SC0)
    a(f"v_add_u32 v{V_KE}, s{S_M5}, v{V_DMA}")
    a(f"s_mul_i32 s{S_T0}, s{S_WAVE}, 20480")
    a(f"v_add_u32 v{V_KM}, s{S_T0}, v{V_DMA}")
    make_srd(a, S_SRDB, P_OUT, 0, O_SIZE)
    if F:
        a(f"s_waitcnt vmcnt({vm.need(('ws', NSTG - 1)) + (14 if EARLY else 2)})")
        for i in range(NSTG):
            a(f"ds_read_b128 {vr(BQ[WL[i]], 4)}, v{V_KE} offset:{stg_off(i)}")
    a("s_waitcnt lgkmcnt(0)")
    a("s_barrier")
    stamp(a, 5)
    if 'a5' in DBG:
        for sl in range(10): a_load(sl, SC0)
    V_BF = 156
    V_AC = 108
    ASTR = 12288 if F else 8192
    S_DONE = S_M5

    if True:
        for j in range(5 if F else 0):
            for q in range(4):
                a(f"ds_write_b128 v{V_KM}, {vr(V_ACC + 16*j + 4*q, 4)} offset:{(j*4+q)*1024}")
        a(f"s_lshl_b32 s{S_T0}, s{S_KQ}, 10")
        a(f"s_add_u32 s{S_T0}, s{S_T0}, {j0*4096}")
        a(f"v_add_u32 v{T}, s{S_T0}, v{V_DMA}")
        a(f"v_add_u32 v{T+1}, {3*20480}, v{T}")
        a("s_waitcnt lgkmcnt(0)")
        a("s_barrier")
        stamp(a, 6)
        for jj in range(nt):
            for w in range(4):
                a(f"ds_read_b128 {vr(V_AC + 16*jj + 4*w, 4)}, v{T + w//3} offset:{(w%3)*20480 + jj*4096}")
        if AMID:
            for sl in range(10): a_load(sl, SC0)
        a(f"v_and_b32 v{T+2}, 31, v1")
        a(f"v_mul_u32_u24 v{T+2}, 1280, v{T+2}")
        a(f"v_lshrrev_b32 v{T+3}, 5, v1")
        a(f"v_lshl_add_u32 v{T+2}, v{T+3}, 3, v{T+2}")
        a(f"s_mul_i32 s{S_T1}, s{S_RB}, 40960")
        a(f"s_mul_i32 s{S_T0}, s{S_CB}, 320")
        a(f"s_add_u32 s{S_T1}, s{S_T1}, s{S_T0}")
        a(f"s_lshl_b32 s{S_T0}, s{S_KQ}, 4")
        a(f"s_add_u32 s{S_T1}, s{S_T1}, s{S_T0}")
        a(f"v_sub_f32 v{T+3}, 1.0, v{V_G}")
        a(f"v_cvt_pk_bf16_f32 v{T+3}, v{T+3}, v{T+3}")
        a(f"v_lshlrev_b32 v{T+3}, 16, v{T+3}")
        a(f"s_mov_b32 s{S_T2}, 0xffff0000")
        X = V_BF + 6
        for jj in range(nt):
            tb = V_AC + 16 * jj
            a(f"s_waitcnt lgkmcnt({4*(nt-1-jj)})")
            for i in range(4):
                a(f"v_add_f32 v{tb+i}, v{tb+i}, v{tb+4+i}")
                a(f"v_add_f32 v{tb+8+i}, v{tb+8+i}, v{tb+12+i}")
            for i in range(4):
                a(f"v_add_f32 v{tb+i}, v{tb+i}, v{tb+8+i}")
            a(f"v_cvt_pk_bf16_f32 v{V_BF+2*jj}, v{tb}, v{tb+1}")
            a(f"v_cvt_pk_bf16_f32 v{V_BF+2*jj+1}, v{tb+2}, v{tb+3}")
        stamp(a, 7)
        if not EARLY and not AMID and 'a5' not in DBG:
            for sl in range(10): a_load(sl, SC0)
        a(f"s_mul_i32 s{S_T0}, s{S_KQ}, {ASTR}")
        a(f"s_add_u32 s{S_T0}, s{S_T0}, {81920 + tg*49152}")
        a(f"v_add_u32 v{T}, s{S_T0}, v{V_DMA}")
        a(f"s_lshl_b32 s{S_T0}, s{S_KQ}, 10")
        a(f"s_add_u32 s{S_T0}, s{S_T0}, {81920 + tg*49152}")
        a(f"v_add_u32 v{T+1}, s{S_T0}, v{V_DMA}")
        for sl in range(10):
            q = AQ[sl]
            a.label(f"k2_pc{tg}_{sl}")
            a(f"s_waitcnt vmcnt({11 - sl if sl < 8 else 2 * (9 - sl)})")
            a(f"v_max3_u32 v{X}, v{q}, v{q+1}, v{q+2}")
            a(f"v_max_u32 v{X}, v{X}, v{q+3}")
            a(f"v_cmp_eq_u32 vcc, -1, v{X}")
            a(f"s_cbranch_vccnz k2_pr{tg}_{sl}")
            for jj in range(nt):
                acc = vr(V_AC + 16 * jj, 16)
                a(f"v_mfma_f32_32x32x16_bf16 {acc}, {vr(BQ[(sl, jj)], 4)}, {vr(q, 4)}, {'0' if sl == 0 else acc}")

        def retries():
            for sl in range(10):
                a.label(f"k2_pr{tg}_{sl}")
                a("s_waitcnt vmcnt(0)")
                a(f"s_sleep {2 if 'sleep2' in DBG else (8 if 'sleep8' in DBG else 4)}")
                for s2 in range(sl, 10): a_load(s2)
                a(f"s_branch k2_pc{tg}_{sl}")
        stamp(a, 8)
        for r in range(2 * nt):
            a(f"v_lshlrev_b32 v{X}, 16, v{V_BF+r}")
            a(f"v_and_b32 v{X+1}, s{S_T2}, v{V_BF+r}")
            a(f"v_mul_f32 v{X}, v{X}, v{T+3}")
            a(f"v_mul_f32 v{X+1}, v{X+1}, v{T+3}")
            a(f"v_cvt_pk_bf16_f32 v{V_BF+r}, v{X}, v{X+1}")
        for jj in range(nt):
            for q in range(4):
                a(f"ds_write_b128 v{T}, {vr(V_AC + 16*jj + 4*q, 4)} offset:{(jj*4+q)*1024}")
        a("s_waitcnt lgkmcnt(0)")
        a("s_barrier")
        stamp(a, 9)
        RD = 12
        for jj in range(nt):
            for k in range(4):
                a(f"ds_read_b128 {vr(RD + 16*jj + 4*k, 4)}, v{T+1} offset:{k*ASTR + jj*4096}")
        for jj in range(nt):
            r = RD + 16 * jj
            a(f"s_waitcnt lgkmcnt({4*(nt-1-jj)})")
            for i in range(4):
                a(f"v_add_f32 v{r+i}, v{r+i}, v{r+4+i}")
                a(f"v_add_f32 v{r+8+i}, v{r+8+i}, v{r+12+i}")
            for i in range(4):
                a(f"v_add_f32 v{r+i}, v{r+i}, v{r+8+i}")
            for p in range(2):
                x0, x1 = r + 2 * p, r + 2 * p + 1
                bb = V_BF + 2 * jj + p
                y = r + 4
                a(f"v_cvt_pk_bf16_f32 v{y}, v{x0}, v{x1}")
                a(f"v_lshlrev_b32 v{x0}, 16, v{y}")
                a(f"v_and_b32 v{x1}, s{S_T2}, v{y}")
                a(f"v_mul_f32 v{x0}, v{x0}, v{V_G}")
                a(f"v_mul_f32 v{x1}, v{x1}, v{V_G}")
                a(f"v_cvt_pk_bf16_f32 v{y}, v{x0}, v{x1}")
                a(f"v_lshlrev_b32 v{x0}, 16, v{y}")
                a(f"v_and_b32 v{x1}, s{S_T2}, v{y}")
                a(f"v_lshlrev_b32 v{y}, 16, v{bb}")
                a(f"v_and_b32 v{y+1}, s{S_T2}, v{bb}")
                a(f"v_add_f32 v{x0}, v{x0}, v{y}")
                a(f"v_add_f32 v{x1}, v{x1}, v{y+1}")
                a(f"v_cvt_pk_bf16_f32 v{r+8+p}, v{x0}, v{x1}")
            a(f"buffer_store_dwordx2 v[{r+8}:{r+9}], v{T+2}, s[{S_SRDB}:{S_SRDB+3}], s{S_T1} offen offset:{(j0+jj)*64}{' sc1' if 'osc1' in DBG else (' nt' if 'ont' in DBG else (' sc0 sc1' if 'osc01' in DBG else ''))}")
        stamp_out(a, 11, T)
        tl_end(a, 1)
        a("s_endpgm")
        retries()


def gen_k2(a):
    T = V_TMP
    a.label("k2_kernel")
    tl_start(a)
    stamp(a, 0)
    a(f"s_cmp_ge_u32 s2, {K2_WGS}")
    a("s_cbranch_scc1 k2_end")
    load_ptrs(a)
    a("v_lshrrev_b32 v1, 6, v0")
    a("s_nop 0")
    a(f"v_readfirstlane_b32 s{S_WAVE}, v1")
    a(f"s_and_b32 s{S_T0}, s2, 7")
    a(f"s_lshl_b32 s{S_T0}, s{S_T0}, 2")
    a(f"s_lshr_b32 s{S_T1}, s2, 3")
    a(f"s_and_b32 s{S_T1}, s{S_T1}, 3")
    a(f"s_add_u32 s{S_HEAD}, s{S_T0}, s{S_T1}")
    a(f"s_lshr_b32 s{S_T0}, s2, 5")
    a(f"s_lshl_b32 s{S_T0}, s{S_T0}, 3")
    a(f"s_add_u32 s{S_QT}, s{S_T0}, s{S_WAVE}")
    a(f"s_and_b32 s{S_T0}, s2, 7")
    a(f"s_lshl_b32 s{S_T0}, s{S_T0}, 3")
    a(f"s_bfe_u32 s{S_T1}, s2, 0x30003")
    a(f"s_add_u32 s{S_RB}, s{S_T0}, s{S_T1}")
    a(f"s_lshr_b32 s{S_CB}, s2, 6")
    a(f"s_mul_i32 s{S_FA}, s{S_RB}, 108")
    a(f"s_add_u32 s{S_FA}, s{S_FA}, s{S_WAVE}")
    a(f"s_lshl_b32 s{S_FA}, s{S_FA}, 10")
    a(f"s_mul_i32 s{S_FB}, s{S_WAVE}, 20")
    a(f"s_mul_i32 s{S_T0}, s{S_CB}, 5")
    a(f"s_add_u32 s{S_FB}, s{S_FB}, s{S_T0}")
    a(f"s_lshl_b32 s{S_FB}, s{S_FB}, 10")
    a("v_and_b32 v1, 63, v0")
    a(f"v_lshlrev_b32 v{V_DMA}, 4, v1")
    a(f"v_mov_b32 v{V_KM}, v{V_DMA}")
    a(f"v_and_b32 v{T}, 31, v1")
    a(f"v_lshrrev_b32 v{T+1}, 5, v1")
    a(f"v_lshlrev_b32 v{V_KE}, 3, v{T}")
    a(f"v_lshl_add_u32 v{V_KE}, v{T+1}, 2, v{V_KE}")
    a(f"v_add_u32 v{V_KE}, 0x400, v{V_KE}")
    a(f"v_mul_u32_u24 v{V_VV}, 320, v{T+1}")
    a(f"v_lshl_add_u32 v{V_VV}, v{T}, 4, v{V_VV}")
    a(f"v_add_u32 v{V_VV}, 1280, v{V_VV}")
    a("s_waitcnt lgkmcnt(0)")
    make_srd(a, S_SRDA, P_WS, KV_OFF, KV_SIZE)
    make_srd(a, S_SRDB, P_WS, QF_OFF, QF_SIZE)
    a(f"s_lshl_b32 s{S_T0}, s{S_HEAD}, 6")
    a(f"s_add_u32 s{S_T0}, s{S_T0}, s{S_QT}")
    a(f"s_mul_i32 s{S_T0}, s{S_T0}, 1280")
    a(f"buffer_load_dwordx4 {vr(V_Q1,4)}, v{V_DMA}, s[{S_SRDB}:{S_SRDB+3}], s{S_T0} offen")
    a(f"buffer_load_dword v{V_Q2}, v{V_KE}, s[{S_SRDB}:{S_SRDB+3}], s{S_T0} offen")
    a(f"s_lshl_b32 s{S_MW}, s{S_WAVE}, 10")
    a(f"s_mul_i32 s{S_AW}, s{S_HEAD}, {64*2560}")
    a(f"s_add_u32 s{S_AW}, s{S_AW}, s{S_MW}")
    a(f"s_cmp_ge_u32 s{S_WAVE}, 4")
    a("s_cbranch_scc1 k2_role1")
    role(a, 0)
    a.label("k2_role1")
    role(a, 1)
    a.label("k2_end")
    a("s_endpgm")
    return dict(name="k2_kernel", vgpr=256, sgpr=100, grid=K2_WGS, block=512, lds=163840)


KERNELS = [gen_k2]
```
